```python
import torch

def _softmax(x, axis=-1):
    return torch.softmax(x, dim=axis)
def _gelu(x):
    return torch.nn.functional.gelu(x, approximate="tanh")
def _silu(x):
    return torch.nn.functional.silu(x)
def _sigmoid(x):
    return torch.sigmoid(x)
def _layernorm(x, axis=-1, eps=1e-5):
    m = x.mean(dim=axis, keepdim=True)
    v = x.var(dim=axis, keepdim=True, unbiased=False)
    return (x - m) / torch.sqrt(v + eps)
def _scatter_add(tgt, idx, src, axis=0):
    return tgt.clone().index_add_(axis, idx, src)
def _segment_sum(src, seg, n):
    out = torch.zeros((n,) + src.shape[1:], dtype=src.dtype)
    return out.index_add_(0, seg, src)
def _pad(x, pw):
    flat = tuple(v for pair in reversed(pw) for v in pair)
    return torch.nn.functional.pad(x, flat)

kernel_name = 'gated_mix__linear_attn_block__linear_attn_block__prompt'

def setup_inputs():

    _w = (lambda a: (lambda t: t.to(torch.bfloat16) if t.is_floating_point() else t)(torch.as_tensor(a)))
    def _A_setup():
        B, S, D = 1, 2048, 512
        return {
            "x": _w((lambda *s: torch.randn(*s, dtype=torch.bfloat16) * 0.05)(B, S, D)),
            "wqkv": _w((lambda *s: torch.randn(*s, dtype=torch.bfloat16) * 0.8)(D, 3 * D)),
            "wo": _w((lambda *s: torch.randn(*s, dtype=torch.bfloat16) * 0.05)(D, D)),
        }
    _A_in = _A_setup()

    def _B_setup():
        B, S, D = 1, 2048, 512
        return {
            "x": _w((lambda *s: torch.randn(*s, dtype=torch.bfloat16) * 0.05)(B, S, D)),
            "wqkv": _w((lambda *s: torch.randn(*s, dtype=torch.bfloat16) * 0.8)(D, 3 * D)),
            "wo": _w((lambda *s: torch.randn(*s, dtype=torch.bfloat16) * 0.05)(D, D)),
        }
    _B_in = _B_setup()

    return {
        "A_x": _A_in["x"],
        "A_wqkv": _A_in["wqkv"],
        "A_wo": _A_in["wo"],
        "B_x": _B_in["x"],
        "B_wqkv": _B_in["wqkv"],
        "B_wo": _B_in["wo"],
        "gate_w": _w((lambda *s: torch.randn(*s, dtype=torch.bfloat16) * 0.05)(512) * 16.0),
    }

def reference(A_x, A_wqkv, A_wo, B_x, B_wqkv, B_wo, gate_w):
    def _A_ref(x, wqkv, wo):
        B, S, D = x.shape
        H = 32; Dh = D // H
        qkv = (lambda x, *d: x.permute(*d))((x @ wqkv).reshape(B, S, 3, H, Dh), 2, 0, 3, 1, 4)
        q, k, v = qkv[0], qkv[1], qkv[2]
        phi = lambda t: torch.where(t > 0, t + 1, torch.exp(t)) + 1e-6
        pq, pk = phi(q), phi(k)
        kv = torch.einsum("bhsd,bhse->bhde", pk, v)
        z = torch.einsum("bhsd->bhd", pk)
        num = torch.einsum("bhqd,bhde->bhqe", pq, kv)
        den = torch.einsum("bhqd,bhd->bhq", pq, z)[..., None] + 1e-6
        o = num / den
        return (lambda x, *d: x.permute(*d))(o, 0, 2, 1, 3).reshape(B, S, D) @ wo

    def _B_ref(x, wqkv, wo):
        B, S, D = x.shape
        H = 32; Dh = D // H
        qkv = (lambda x, *d: x.permute(*d))((x @ wqkv).reshape(B, S, 3, H, Dh), 2, 0, 3, 1, 4)
        q, k, v = qkv[0], qkv[1], qkv[2]
        phi = lambda t: torch.where(t > 0, t + 1, torch.exp(t)) + 1e-6
        pq, pk = phi(q), phi(k)
        kv = torch.einsum("bhsd,bhse->bhde", pk, v)
        z = torch.einsum("bhsd->bhd", pk)
        num = torch.einsum("bhqd,bhde->bhqe", pq, kv)
        den = torch.einsum("bhqd,bhd->bhq", pq, z)[..., None] + 1e-6
        o = num / den
        return (lambda x, *d: x.permute(*d))(o, 0, 2, 1, 3).reshape(B, S, D) @ wo

    x = A_x
    g = _sigmoid((x * gate_w).sum(-1, keepdims=True))
    a = _A_ref(x, A_wqkv, A_wo)
    b = _B_ref(x, B_wqkv, B_wo)
    return g * a + (1 - g) * b
```

```python
NAME = "gated_mix__linear_attn_block__linear_attn_block__prompt"
STAMP = 128 << 20

class Asm:
    def __init__(self):
        self.lines = []
        self.lab = 0
    def __call__(self, s):
        for l in s.split("\n"):
            self.lines.append("    " + l.strip() if l.strip() and not l.strip().endswith(":") else l.strip())
    def label(self, base="L"):
        self.lab += 1
        return f"{base}_{self.lab}"
    def text(self):
        return "\n".join(self.lines) + "\n"

def kernel_header(name):
    return f""".globl {name}
.p2align 8
.type {name},@function
{name}:
"""

def kd(name, vgpr, sgpr=102, accum=None):
    if accum is None:
        accum = min(256, (vgpr + 3) // 4 * 4)
    return f""".amdhsa_kernel {name}
  .amdhsa_next_free_vgpr {vgpr}
  .amdhsa_next_free_sgpr {sgpr}
  .amdhsa_accum_offset {accum}
  .amdhsa_group_segment_fixed_size 0
  .amdhsa_kernarg_size 80
  .amdhsa_user_sgpr_count 2
  .amdhsa_user_sgpr_kernarg_segment_ptr 1
  .amdhsa_system_sgpr_workgroup_id_x 1
.end_amdhsa_kernel
"""

def file_text(launches, kernels):
    out = []
    if len(launches) == 1 and launches[0][0] == NAME + "_kernel":
        k, g, b, lds = launches[0]
        out.append(f"; @launch grid=({g},1,1) block=({b},1,1) lds={lds}")
    else:
        for k, g, b, lds in launches:
            out.append(f"; @launch kernel={k} grid=({g},1,1) block=({b},1,1) lds={lds}")
    out.append('.amdgcn_target "amdgcn-amd-amdhsa--gfx950"')
    out.append(".text")
    for k, body, vg, ac in kernels:
        out.append(kernel_header(k) + body)
    out.append('.section .rodata,"a"')
    for k, body, vg, ac in kernels:
        out.append(".p2align 6")
        out.append(kd(k, vg, accum=ac))
    return "\n".join(out)

def srd(a, d, base, nbytes):
    a(f"s_mov_b32 s{d}, s{base}")
    a(f"s_mov_b32 s{d+1}, s{base+1}")
    a(f"s_mov_b32 s{d+2}, {nbytes}")
    a(f"s_mov_b32 s{d+3}, 0x20000")

def emit_stamp_store(a, kidx, nslots, sbase, ws_lo, wgreg, vtmp, nwg=256, tid="v0", stmp=None):
    t = sbase + 2 * nslots
    t += t & 1
    if stmp is not None: t = stmp
    L = a.label("Lst")
    a(f"s_waitcnt lgkmcnt(0)")
    a(f"v_cmp_eq_u32 vcc, 0, {tid}")
    a(f"s_and_saveexec_b64 s[{t}:{t+1}], vcc")
    a(f"s_cbranch_execz {L}")
    a(f"s_mul_i32 s{t+2}, s{wgreg}, {nslots*8}")
    a(f"s_add_u32 s{t+2}, s{t+2}, {STAMP + kidx*nwg*nslots*8}")
    a(f"v_mov_b32 v{vtmp}, s{t+2}")
    for i in range(nslots):
        a(f"v_mov_b32 v{vtmp+2}, s{sbase+2*i}")
        a(f"v_mov_b32 v{vtmp+3}, s{sbase+2*i+1}")
        a(f"global_store_dwordx2 v{vtmp}, v[{vtmp+2}:{vtmp+3}], s[{ws_lo}:{ws_lo+1}] offset:{i*8}")
        a("s_nop 1")
    a(f"{L}:")
    a(f"s_mov_b64 exec, s[{t}:{t+1}]")
```

```python
import sys
from asmlib import *

opts = dict(o.split("=") if "=" in o else (o, "1") for o in sys.argv[2:])
STAMPS = int(opts.get("stamps", 0))
a = Asm()

KVACC = 0x0
KVSTR = 1152
KVCNT = 0x20000
OCNT = 0x28000
OBUF = 0x100000
WS_BYTES = 0x500000
EPS = 0x358637bd
LOG2E = 0x3fb8aa3b
import struct
NEG_EPS_LOG2E = struct.unpack("<I", struct.pack("<f", -1e-6 * 1.4426950408889634))[0]
SPIN = 20000

vm = []
def vm_issue(tag): vm.append(tag)
def vm_wait(tag):
    idx = max(i for i, t in enumerate(vm) if t == tag)
    n = len(vm) - 1 - idx
    assert n <= 63
    a(f"s_waitcnt vmcnt({n})")
def vm_wait_all():
    a("s_waitcnt vmcnt(0)")

nst = [0]
def stamp():
    if STAMPS:
        i = nst[0]; nst[0] += 1
        assert i < STAMPS
        a(f"s_memrealtime s[{70+2*i}:{71+2*i}]")

X, W, WOA, WOB, WS, OUT, GW = 24, 28, 32, 36, 40, 44, 48
RB, CB, WV, ROT, XS, WSB, W1K, T0, T1, T2, T3, WOS, ROT2 = 52, 53, 54, 55, 56, 57, 58, 59, 60, 61, 62, 63, 64

stamp()
a(f"""
s_cmp_ge_u32 s2, 256
s_cbranch_scc1 Lend
s_load_dwordx16 s[4:19], s[0:1], 0
s_load_dwordx4 s[20:23], s[0:1], 64
v_lshrrev_b32 v20, 6, v0
v_and_b32 v1, 63, v0
v_readfirstlane_b32 s{WV}, v20
s_and_b32 s{T0}, s2, 7
s_lshr_b32 s{T1}, s2, 3
s_and_b32 s{RB}, s{T0}, 1
s_lshl_b32 s{RB}, s{RB}, 3
s_and_b32 s{ROT2}, s{T1}, 7
s_add_u32 s{RB}, s{RB}, s{ROT2}
s_lshr_b32 s{CB}, s{T0}, 1
s_lshl_b32 s{CB}, s{CB}, 2
s_lshr_b32 s{T2}, s{T1}, 3
s_add_u32 s{CB}, s{CB}, s{T2}
s_lshl_b32 s{ROT}, s{T2}, 1
s_add_u32 s{ROT}, s{ROT}, s{ROT2}
s_and_b32 s{ROT}, s{ROT}, 7
v_lshrrev_b32 v20, 3, v1
v_and_b32 v21, 7, v1
v_lshrrev_b32 v22, 4, v1
v_xor_b32 v23, v21, v22
v_lshlrev_b32 v2, 10, v20
v_lshl_add_u32 v2, v23, 4, v2
v_xor_b32 v3, 64, v2
v_and_b32 v23, 1, v22
v_lshlrev_b32 v23, 2, v23
v_xor_b32 v23, v21, v23
v_mul_u32_u24 v4, 3072, v20
v_lshl_add_u32 v4, v23, 4, v4
s_lshl_b32 s{W1K}, s{WV}, 10
s_lshl_b32 s{XS}, s{RB}, 17
s_lshl_b32 s{T0}, s{WV}, 14
s_add_u32 s{XS}, s{XS}, s{T0}
s_and_b32 s{WSB}, s{CB}, 7
s_lshl_b32 s{WSB}, s{WSB}, 7
s_mul_i32 s{T0}, s{WV}, {8*3072}
s_add_u32 s{WSB}, s{WSB}, s{T0}
s_waitcnt lgkmcnt(0)
s_cmp_ge_u32 s{CB}, 8
s_cselect_b32 s6, s12, s6
s_cselect_b32 s7, s13, s7
""")
srd(a, X, 4, 2048 * 1024)
srd(a, W, 6, 512 * 3072)
srd(a, WS, 22, WS_BYTES)

def dma(voff, sr, soff, tag, extra=""):
    a(f"buffer_load_dwordx4 v{voff}, s[{sr}:{sr+3}], s{soff} offen {extra} lds")
    vm_issue(tag)

def issue_chunk(c):
    slot = (c % 5) * 32768
    if c < 8:
        a(f"s_add_u32 s{T0}, s{ROT}, {c}")
        a(f"s_and_b32 s{T0}, s{T0}, 7")
        a(f"s_lshl_b32 s{T1}, s{T0}, 7")
        a(f"s_add_u32 s{T1}, s{T1}, s{XS}")
        a(f"s_lshl_b32 s{T3}, s{W1K}, 1")
        a(f"s_add_u32 m0, s{T3}, {slot}")
        a(f"s_mul_i32 s{T2}, s{T0}, {64*3072}")
        dma(2, X, T1, f"c{c}")
        a(f"s_add_u32 m0, s{T3}, {slot+1024}")
        a(f"s_add_u32 s{T1}, s{T1}, 8192")
        dma(3, X, T1, f"c{c}")
        a(f"s_add_u32 s{T2}, s{T2}, s{WSB}")
        a(f"s_add_u32 m0, s{W1K}, {slot+16384-1024}")
        a(f"s_nop 0")
        dma(4, W, T2, f"c{c}", "offset:1024")
        a(f"s_add_u32 m0, s{W1K}, {slot+24576-2048}")
        a(f"s_nop 0")
        dma(4, W, T2, f"c{c}", "offset:2048")
    else:
        for q in range(4):
            a(f"s_add_u32 s{T0}, s{ROT}, {4*(c-8)+q}")
            a(f"s_and_b32 s{T0}, s{T0}, 7")
            a(f"s_mul_i32 s{T2}, s{T0}, {64*3072}")
            a(f"s_add_u32 m0, s{W1K}, {slot+q*8192}")
            a(f"s_add_u32 s{T2}, s{T2}, s{WSB}")
            dma(4, W, T2, f"c{c}")

def issue_wo(j, slotidx):
    slot = slotidx * 32768
    a(f"s_add_u32 s{T0}, s{ROT2}, {j}")
    a(f"s_and_b32 s{T0}, s{T0}, 7")
    a(f"s_lshl_b32 s{T0}, s{T0}, 16")
    a(f"s_add_u32 s{T0}, s{T0}, s{WOS}")
    a(f"s_add_u32 s{T1}, s{T0}, 4096")
    a(f"s_lshl_b32 s{T3}, s{W1K}, 1")
    for br, sr in ((0, WOA), (1, WOB)):
        for q in range(2):
            a(f"s_add_u32 m0, s{T3}, {slot + br*16384 + q*1024}")
            a(f"s_nop 0")
            dma(5, sr, T0 if q == 0 else T1, f"wo{j}")

a(f"""
s_cmp_eq_u32 s{RB}, s{CB}
s_cbranch_scc0 Lnozero
s_cmp_lt_u32 s{WV}, 4
s_cbranch_scc0 Lnozero
v_mov_b32 v24, 0
v_mov_b32 v25, 0
v_mov_b32 v26, 0
v_mov_b32 v27, 0
v_lshlrev_b32 v28, 4, v1
s_lshl_b32 s{T0}, s{CB}, 2
s_add_u32 s{T0}, s{T0}, s{WV}
s_mul_i32 s{T1}, s{T0}, {KVSTR}
buffer_store_dwordx4 v[24:27], v28, s[{WS}:{WS+3}], s{T1} offen sc1
s_lshl_b32 s{T2}, s{T0}, 8
s_add_u32 s{T3}, s{T2}, {OCNT}
s_add_u32 s{T2}, s{T2}, {KVCNT}
s_mov_b64 exec, 0xff
buffer_store_dwordx4 v[24:27], v28, s[{WS}:{WS+3}], s{T1} offen offset:1024 sc1
buffer_store_dwordx4 v[24:27], v28, s[{WS}:{WS+3}], s{T2} offen sc1
buffer_store_dwordx4 v[24:27], v28, s[{WS}:{WS+3}], s{T3} offen sc1
s_mov_b64 exec, -1
Lnozero:
""")
for c in range(5):
    issue_chunk(c)
stamp()
srd(a, WOA, 8, 512 * 1024)
srd(a, WOB, 14, 512 * 1024)
srd(a, OUT, 18, 2048 * 1024)
srd(a, GW, 16, 1024)
a(f"""
v_and_b32 v20, 15, v1
v_lshlrev_b32 v21, 3, v20
""")
for i in range(8):
    a(f"s_add_u32 s{T0}, s{ROT}, {i}")
    a(f"s_and_b32 s{T0}, s{T0}, 7")
    a(f"s_lshl_b32 s{T0}, s{T0}, 7")
    a(f"buffer_load_dwordx2 v[{48+2*i}:{49+2*i}], v21, s[{GW}:{GW+3}], s{T0} offen")
    vm_issue("gw")
a(f"""
v_lshrrev_b32 v22, 4, v1
v_lshlrev_b32 v23, 2, v22
v_xor_b32 v23, v20, v23
v_lshlrev_b32 v5, 10, v22
v_lshl_add_u32 v5, v23, 4, v5
s_and_b32 s{WOS}, s{CB}, 3
s_lshl_b32 s{WOS}, s{WOS}, 8
s_lshl_b32 s{T0}, s{WV}, 13
s_add_u32 s{WOS}, s{WOS}, s{T0}
v_and_b32 v22, 31, v1
s_and_b32 s{T0}, s{WV}, 3
s_lshl_b32 s{T0}, s{T0}, 12
v_lshl_add_u32 v6, v22, 7, s{T0}
v_lshrrev_b32 v23, 5, v1
v_bfe_u32 v24, v1, 1, 3
v_xor_b32 v24, v23, v24
v_lshl_add_u32 v6, v24, 4, v6
v_xor_b32 v7, 32, v6
v_xor_b32 v8, 64, v6
v_xor_b32 v9, 96, v6
v_lshrrev_b32 v24, 2, v20
v_lshl_add_u32 v25, v23, 3, v24
v_lshlrev_b32 v10, 7, v25
v_bfe_u32 v25, v1, 4, 1
v_and_b32 v26, 3, v1
v_lshlrev_b32 v26, 3, v26
v_lshl_add_u32 v26, v25, 5, v26
s_lshr_b32 s{T0}, s{WV}, 2
v_bfe_u32 v27, v1, 3, 1
v_xor_b32 v27, s{T0}, v27
v_lshl_add_u32 v27, v27, 6, v26
v_add_u32 v10, v10, v27
v_lshl_add_u32 v25, v23, 2, v24
v_lshlrev_b32 v18, 8, v25
s_and_b32 s{T1}, s{WV}, 3
v_xor_b32 v27, s{T1}, v24
v_lshl_add_u32 v27, v27, 6, v26
v_add_u32 v18, v18, v27
s_lshl_b32 s{T0}, s{T0}, 14
v_add_u32 v18, s{T0}, v18
s_lshr_b32 s{T0}, s{CB}, 2
s_lshl_b32 s{T0}, s{T0}, 5
s_lshl_b32 s{T1}, s{WV}, 2
s_add_u32 s{T0}, s{T0}, s{T1}
v_lshrrev_b32 v25, 4, v1
v_add_u32 v25, s{T0}, v25
v_bfe_u32 v26, v25, 1, 3
v_lshrrev_b32 v27, 1, v20
v_xor_b32 v26, v26, v27
v_lshlrev_b32 v11, 7, v25
v_lshl_add_u32 v11, v26, 4, v11
v_and_b32 v26, 1, v1
v_lshl_add_u32 v11, v26, 3, v11
v_lshlrev_b32 v19, 4, v1
""")
for r in range(96, 112):
    a(f"v_mov_b32 v{r}, 0x{EPS:x}")
for r in range(112, 128):
    a(f"v_mov_b32 v{r}, 0")

BUFA, BUFB, ACCK, ACCV, XR = 64, 80, 96, 112, 128
def mfma(d, sa, sb, c=None):
    cc = f"v[{d}:{d+15}]" if c is None else c
    a(f"v_mfma_f32_32x32x16_bf16 v[{d}:{d+15}], v[{sa}:{sa+3}], v[{sb}:{sb+3}], {cc}")

def reads_half(i, h):
    buf = BUFA if h == 0 else BUFB
    for tt in range(2):
        t = 2 * h + tt
        xr = XR + (4 * i + t) * 4
        a(f"ds_read_b128 v[{xr}:{xr+3}], v{12+t}")
        for sec in range(2):
            r = buf + tt * 8 + sec * 4
            for u in range(2):
                a(f"ds_read_b64_tr_b16 v[{r+2*u}:{r+2*u+1}], v16 offset:{16384 + sec*8192 + t*2048 + u*512}")
def mfma_half(i, h, first_wait=None):
    buf = BUFA if h == 0 else BUFB
    for tt in range(2):
        t = 2 * h + tt
        xr = XR + (4 * i + t) * 4
        if first_wait is not None:
            a(f"s_waitcnt lgkmcnt({first_wait[tt]})")
        mfma(ACCK, xr, buf + tt * 8)
        mfma(ACCV, xr, buf + tt * 8 + 4)

for i in range(8):
    slot = (i % 5) * 32768
    for k in range(4):
        a(f"v_add_u32 v{12+k}, {slot}, v{6+k}")
    a(f"v_add_u32 v16, {slot}, v10")
    a(f"v_add_u32 v17, {slot}, v11")
    vm_wait(f"c{i}")
    a("s_barrier")
    if i == 0:
        stamp()
        a(f"""
s_cmp_eq_u32 s{RB}, s{CB}
s_cbranch_scc0 Lnoflag
s_cmp_lt_u32 s{WV}, 4
s_cbranch_scc0 Lnoflag
s_lshl_b32 s{T0}, s{CB}, 2
s_add_u32 s{T0}, s{T0}, s{WV}
s_lshl_b32 s{T0}, s{T0}, 2
v_mov_b32 v24, s{T0}
v_mov_b32 v25, 1
s_mov_b64 exec, 1
global_store_dword v24, v25, s[20:21] sc1
s_mov_b64 exec, -1
Lnoflag:
""")
    reads_half(i, 0)
    if i > 0:
        mfma_half(i - 1, 1)
    reads_half(i, 1)
    a(f"ds_read_b64 v[{32+2*i}:{33+2*i}], v17")
    if i >= 1:
        c = i + 4
        if c < 10:
            issue_chunk(c)
        else:
            issue_wo(c - 10, c % 5)
    mfma_half(i, 0, first_wait=(15, 11))
    a("s_waitcnt lgkmcnt(0)")
mfma_half(7, 1)
stamp()
a(f"""
v_lshlrev_b32 v20, 2, v1
s_cmp_eq_u32 s{WV}, 7
s_cbranch_scc0 Lnochk
s_mov_b32 s{T0}, 0
Lchk:
global_load_dword v21, v20, s[20:21] sc1
s_waitcnt vmcnt(0)
v_cmp_eq_u32 vcc, 0, v21
s_add_u32 s{T0}, s{T0}, 1
s_cmp_ge_u32 s{T0}, {SPIN}
s_cbranch_scc1 Lnochk
s_cbranch_vccnz Lchk
Lnochk:
v_mov_b32 v22, 0x{LOG2E:x}
s_mov_b32 s65, 0x{EPS:x}
s_nop 7
s_nop 3
""")
def phi(acc, tmp):
    for r in range(16):
        a(f"v_fmaak_f32 v{tmp+r}, v22, v{acc+r}, 0x{NEG_EPS_LOG2E:x}")
    for r in range(16):
        a(f"v_exp_f32 v{tmp+r}, v{tmp+r} clamp")
        a(f"v_max_f32 v{acc+r}, s65, v{acc+r}")
    for r in range(16):
        a(f"v_add_f32 v{acc+r}, v{acc+r}, v{tmp+r}")
    for r in range(8):
        a(f"v_cvt_pk_bf16_f32 v{acc+r}, v{acc+2*r}, v{acc+2*r+1}")
phi(ACCK, 64)
for r in range(8):
    a(f"v_cvt_pk_bf16_f32 v{ACCV+r}, v{ACCV+2*r}, v{ACCV+2*r+1}")
for r in range(4):
    a(f"v_mov_b32 v{104+r}, 0x3f803f80")
a("s_nop 1")
mfma(64, ACCK, ACCV, "0")
mfma(80, ACCK, 104, "0")
mfma(64, ACCK + 4, ACCV + 4)
mfma(80, ACCK + 4, 104)
SCR = 2 * 32768
a(f"""
s_and_b32 s{T0}, s{WV}, 3
s_mul_i32 s{T0}, s{T0}, {4*1088}
s_lshr_b32 s{T2}, s{WV}, 2
s_mul_i32 s{T2}, s{T2}, {2*1088}
s_add_u32 s{T0}, s{T0}, s{T2}
s_add_u32 s{T0}, s{T0}, {SCR}
v_bfe_u32 v23, v1, 4, 1
v_mul_u32_u24 v24, 1088, v23
v_lshrrev_b32 v25, 5, v1
v_lshl_add_u32 v24, v25, 5, v24
v_add_u32 v24, s{T0}, v24
v_and_b32 v25, 15, v1
v_lshl_add_u32 v26, v25, 6, v24
v_cmp_eq_u32 vcc, 1, v23
v_cmp_eq_u32 s[66:67], 0, v25
s_nop 7
""")
for r in range(8):
    a(f"v_cndmask_b32 v{64+r}, v{64+r}, v{72+r}, vcc")
for r in range(8):
    a(f"v_cndmask_b32 v{80+r}, v{80+r}, v{88+r}, vcc")
a("s_barrier")
a(f"""
ds_write_b128 v26, v[64:67]
ds_write_b128 v26, v[68:71] offset:16
s_mov_b64 exec, s[66:67]
ds_write_b128 v24, v[80:83] offset:1024
ds_write_b128 v24, v[84:87] offset:1040
s_mov_b64 exec, -1
""")
for r in range(16):
    a(f"v_mov_b32 v{96+r}, 0x{EPS:x}")
vm_wait("c9")
a("s_waitcnt lgkmcnt(0)")
a("s_barrier")
stamp()
a(f"""
s_cmp_lt_u32 s{WV}, 4
s_cbranch_scc0 Lnoatom
s_mul_i32 s{T0}, s{WV}, 1088
s_add_u32 s{T0}, s{T0}, {SCR}
v_lshl_add_u32 v24, v1, 2, s{T0}
""")
for m in range(5):
    for p in range(4):
        a(f"ds_read_b32 v{64+m*4+p}, v24 offset:{p*4*1088 + m*256}")
a(f"""
s_lshl_b32 s{T0}, s{CB}, 2
s_add_u32 s{T0}, s{T0}, s{WV}
s_mul_i32 s{T2}, s{T0}, {KVSTR}
s_lshl_b32 s{T3}, s{T0}, 8
s_add_u32 s{T3}, s{T3}, {KVCNT}
""")
for m in range(5):
    a(f"s_waitcnt lgkmcnt({min(15, 16-4*m)})" if m < 4 else "s_waitcnt lgkmcnt(0)")
    if m == 0:
        a("s_waitcnt lgkmcnt(15)")
    a(f"v_add_f32 v{64+m*4}, v{64+m*4}, v{65+m*4}")
    a(f"v_add_f32 v{66+m*4}, v{66+m*4}, v{67+m*4}")
    a(f"v_add_f32 v{64+m*4}, v{64+m*4}, v{66+m*4}")
    if m == 4:
        a("s_mov_b64 exec, 0xffff")
    a(f"buffer_atomic_add_f32 v{64+m*4}, v20, s[{WS}:{WS+3}], s{T2} offen offset:{m*256}")
a(f"""
s_mov_b64 exec, 1
v_mov_b32 v25, 1
s_waitcnt vmcnt(0)
buffer_atomic_add v25, v20, s[{WS}:{WS+3}], s{T3} offen sc1
s_mov_b64 exec, -1
Lnoatom:
""")
stamp()
a(f"v_add_u32 v16, {3*32768}, v10")
def qread(s):
    r = 64 + (s % 4) * 4
    off = (s // 4) * 8192 + (s % 4) * 2048
    for u in range(2):
        a(f"ds_read_b64_tr_b16 v[{r+2*u}:{r+2*u+1}], v16 offset:{off + u*512}")
for s in range(3):
    qread(s)
for s in range(32):
    if s + 3 < 32:
        qread(s + 3)
        a("s_waitcnt lgkmcnt(6)")
    else:
        a(f"s_waitcnt lgkmcnt({2*(31-s)})")
    mfma(96, 64 + (s % 4) * 4, XR + s * 4)
stamp()
vm_wait("gw")
a("v_mov_b32 v24, 0")
for i in range(16):
    a(f"v_dot2c_f32_bf16 v24, v{32+i}, v{48+i}")
a("s_nop 2")
for sh in (8, 4, 2, 1):
    a(f"v_add_f32_dpp v24, v24, v24 row_ror:{sh} row_mask:0xf bank_mask:0xf")
    a("s_nop 1")
a(f"""
v_mul_f32 v24, 0xbfb8aa3b, v24
v_exp_f32 v24, v24
s_nop 0
v_add_f32 v24, 1.0, v24
v_rcp_f32 v31, v24
""")
a("s_barrier")
issue_wo(2, 2); issue_wo(3, 3); issue_wo(4, 4)
phi(96, 64)
stamp()
def wo_read(j, slotidx):
    a(f"v_add_u32 v16, {slotidx*32768}, v18")
    for hl in range(4):
        r = XR + (j * 4 + hl) * 4
        for u in range(2):
            a(f"ds_read_b64_tr_b16 v[{r+2*u}:{r+2*u+1}], v16 offset:{hl*4096 + u*2048}")
vm_wait("wo1")
a("s_barrier")
wo_read(0, 0); wo_read(1, 1)
a("s_waitcnt lgkmcnt(0)")
vm_wait("wo2")
a("s_barrier")
issue_wo(5, 0); issue_wo(6, 1)
wo_read(2, 2)
a("s_waitcnt lgkmcnt(0)")
vm_wait("wo4")
a("s_barrier")
issue_wo(7, 2)
wo_read(3, 3); wo_read(4, 4)
a("s_waitcnt lgkmcnt(0)")
vm_wait("wo7")
a("s_barrier")
wo_read(5, 0); wo_read(6, 1); wo_read(7, 2)
stamp()
a(f"""
s_lshl_b32 s{T0}, s{CB}, 2
s_lshr_b32 s{T1}, s{WV}, 2
s_lshl_b32 s{T1}, s{T1}, 1
s_add_u32 s{T0}, s{T0}, s{T1}
s_lshl_b32 s{T2}, s{T0}, 8
s_add_u32 s{T2}, s{T2}, {KVCNT}
v_lshlrev_b32 v20, 8, v1
s_mov_b32 s{T3}, 0
s_mov_b64 exec, 3
Lpollkv:
buffer_load_dword v21, v20, s[{WS}:{WS+3}], s{T2} offen sc1
s_waitcnt vmcnt(0)
v_cmp_ne_u32 vcc, 16, v21
s_add_u32 s{T3}, s{T3}, 1
s_cmp_ge_u32 s{T3}, {SPIN}
s_cbranch_scc1 Lpollkv_done
s_cbranch_vccnz Lpollkv
Lpollkv_done:
s_mov_b64 exec, -1
""")
stamp()
a(f"""
s_mul_i32 s{T2}, s{T0}, {KVSTR}
v_and_b32 v20, 31, v1
v_min_u32 v20, 16, v20
v_lshrrev_b32 v21, 5, v1
v_lshlrev_b32 v21, 5, v21
v_lshl_add_u32 v20, v20, 6, v21
buffer_load_dwordx4 v[64:67], v20, s[{WS}:{WS+3}], s{T2} offen sc1
buffer_load_dwordx4 v[68:71], v20, s[{WS}:{WS+3}], s{T2} offen offset:16 sc1
buffer_load_dwordx4 v[72:75], v20, s[{WS}:{WS+3}], s{T2} offen offset:{KVSTR} sc1
buffer_load_dwordx4 v[76:79], v20, s[{WS}:{WS+3}], s{T2} offen offset:{KVSTR+16} sc1
s_lshl_b32 s{T1}, s{RB}, 2
s_and_b32 s{T3}, s{WV}, 3
s_add_u32 s{T1}, s{T1}, s{T3}
s_lshl_b32 s{T3}, s{T1}, 16
s_lshl_b32 s{T0}, s{T0}, 10
s_add_u32 s{T0}, s{T0}, s{T3}
s_add_u32 s{T0}, s{T0}, {OBUF}
s_lshl_b32 s{T1}, s{T1}, 8
s_add_u32 s{T1}, s{T1}, {OCNT}
s_waitcnt vmcnt(0)
""")
for r in range(8):
    a(f"v_cvt_pk_bf16_f32 v{64+r}, v{64+2*r}, v{65+2*r}")
a("s_nop 1")
mfma(80, 64, 96, "0")
mfma(112, 68, 100, "0")
a("s_nop 7\ns_nop 3")
for h, d in ((0, 80), (1, 112)):
    a(f"v_add_f32 v{d+8}, 0x{EPS:x}, v{d+8}")
    a(f"v_rcp_f32 v{d+8}, v{d+8}")
    a("s_nop 0")
    for r in range(8):
        a(f"v_mul_f32 v{d+r}, v{d+r}, v{d+8}")
    for r in range(4):
        a(f"v_cvt_pk_bf16_f32 v{d+r}, v{d+2*r}, v{d+2*r+1}")
    a(f"buffer_store_dwordx4 v[{d}:{d+3}], v19, s[{WS}:{WS+3}], s{T0} offen offset:{h*1024} sc1")
GL = 0
a(f"""
v_mov_b32 v25, 1
v_mov_b32 v20, 0
s_waitcnt vmcnt(0)
s_mov_b64 exec, 1
buffer_atomic_add v25, v20, s[{WS}:{WS+3}], s{T1} offen sc1
s_mov_b64 exec, -1
""")
stamp()
a(f"""
s_lshl_b32 s{T1}, s{RB}, 2
s_lshr_b32 s{T3}, s{CB}, 2
s_add_u32 s{T1}, s{T1}, s{T3}
s_cmp_eq_u32 s{WV}, 0
s_cbranch_scc0 Lpollo_done
s_lshl_b32 s{T2}, s{T1}, 8
s_add_u32 s{T2}, s{T2}, {OCNT}
s_mov_b32 s{T3}, 0
s_mov_b64 exec, 1
Lpollo:
buffer_load_dword v21, v20, s[{WS}:{WS+3}], s{T2} offen sc1
s_waitcnt vmcnt(0)
v_cmp_ne_u32 vcc, 32, v21
s_add_u32 s{T3}, s{T3}, 1
s_cmp_ge_u32 s{T3}, {SPIN}
s_cbranch_scc1 Lpollo_done
s_cbranch_vccnz Lpollo
Lpollo_done:
s_mov_b64 exec, -1
s_waitcnt lgkmcnt(0)
s_barrier
""")
stamp()
OL = 3 * 32768
a(f"""
s_add_u32 s{T0}, s{ROT2}, s{WV}
s_and_b32 s{T0}, s{T0}, 7
s_lshl_b32 s{T0}, s{T0}, 12
s_lshl_b32 s{T2}, s{T1}, 16
s_add_u32 s{T0}, s{T0}, s{T2}
s_add_u32 s{T0}, s{T0}, {OBUF}
s_add_u32 s{T2}, s{T0}, 32768
s_lshl_b32 s{T3}, s{W1K}, 2
""")
for br in range(2):
    a(f"s_add_u32 m0, s{T3}, {OL + br*32768}")
    a("s_nop 0")
    for hl in range(4):
        a(f"buffer_load_dwordx4 v19, s[{WS}:{WS+3}], s{T0 if br == 0 else T2} offen offset:{hl*1024} sc1 lds")
a(f"""
v_lshrrev_b32 v20, 4, v1
s_lshl_b32 s{T3}, s{WV}, 4
v_lshl_add_u32 v20, v20, 2, s{T3}
ds_write_b32 v20, v31 offset:{GL}
s_lshr_b32 s{T3}, s{WV}, 2
s_lshl_b32 s{T3}, s{T3}, 15
s_add_u32 s{T3}, s{T3}, {OL}
v_add_u32 v16, s{T3}, v19
s_waitcnt vmcnt(0) lgkmcnt(0)
s_barrier
""")
stamp()
def oread(s):
    r = 64 + (s % 8) * 4
    a(f"ds_read_b128 v[{r}:{r+3}], v16 offset:{s*1024}")
a("v_and_b32 v20, 31, v1\nv_lshlrev_b32 v20, 2, v20")
a(f"ds_read_b32 v30, v20 offset:{GL}")
for s in range(6):
    oread(s)
for s in range(32):
    if s + 6 < 32:
        oread(s + 6)
        a("s_waitcnt lgkmcnt(6)")
    else:
        a(f"s_waitcnt lgkmcnt({31-s})")
    if s == 0:
        mfma(96, XR + s * 4, 64 + (s % 8) * 4, "0")
    else:
        mfma(96, XR + s * 4, 64 + (s % 8) * 4)
stamp()
RED = 1024
a(f"""
v_sub_f32 v29, 1.0, v30
s_cmp_ge_u32 s{WV}, 4
s_cselect_b64 vcc, -1, 0
s_lshl_b32 s{T0}, s{WV}, 11
s_xor_b32 s{T2}, s{T0}, {4<<11}
v_add_u32 v20, s{T0}, v19
v_add_u32 v21, s{T2}, v19
v_cndmask_b32 v30, v30, v29, vcc
s_nop 7
""")
for r in range(16):
    a(f"v_mul_f32 v{96+r}, v{96+r}, v30")
for r in range(8):
    a(f"v_cndmask_b32 v{64+r}, v{104+r}, v{96+r}, vcc")
for r in range(8):
    a(f"v_cndmask_b32 v{96+r}, v{96+r}, v{104+r}, vcc")
a(f"""
ds_write_b128 v20, v[64:67] offset:{RED}
ds_write_b128 v20, v[68:71] offset:{RED+1024}
s_lshl_b32 s{T1}, s{T1}, 15
s_and_b32 s{T0}, s{CB}, 3
s_lshl_b32 s{T0}, s{T0}, 8
s_add_u32 s{T1}, s{T1}, s{T0}
s_and_b32 s{T0}, s{WV}, 3
s_lshl_b32 s{T0}, s{T0}, 6
s_add_u32 s{T1}, s{T1}, s{T0}
s_lshr_b32 s{T0}, s{WV}, 2
s_lshl_b32 s{T0}, s{T0}, 5
s_add_u32 s{T1}, s{T1}, s{T0}
v_and_b32 v22, 31, v1
v_lshlrev_b32 v22, 10, v22
v_lshrrev_b32 v23, 5, v1
v_lshl_add_u32 v22, v23, 4, v22
s_waitcnt lgkmcnt(0)
s_barrier
ds_read_b128 v[64:67], v21 offset:{RED}
ds_read_b128 v[68:71], v21 offset:{RED+1024}
s_waitcnt lgkmcnt(0)
""")
for r in range(8):
    a(f"v_add_f32 v{96+r}, v{96+r}, v{64+r}")
for r in range(4):
    a(f"v_cvt_pk_bf16_f32 v{96+r}, v{96+2*r}, v{97+2*r}")
a(f"""
s_nop 1
v_permlane32_swap_b32 v96, v98
v_permlane32_swap_b32 v97, v99
buffer_store_dwordx4 v[96:99], v22, s[{OUT}:{OUT+3}], s{T1} offen
""")
if STAMPS:
    a("s_waitcnt vmcnt(0)")
    stamp()
    while nst[0] < STAMPS:
        stamp()
    emit_stamp_store(a, 0, STAMPS, 70, 22, 2, 20, stmp=60)
a("Lend:")
a("s_endpgm")
open(sys.argv[1], "w").write(file_text([(NAME + "_kernel", 256, 512, 163840)], [(NAME + "_kernel", a.text(), 256, None)]))
```

```python
import sys, struct
from asmlib import *

opts = dict(o.split("=") if "=" in o else (o, "1") for o in sys.argv[2:])
STAMPS = int(opts.get("stamps", 0))
SWAVE = int(opts.get("swave", 0))
ROTMODE = opts.get("rot", "2")
TOUCH = 99
LAGA = int(opts.get("lag", 6))
ACKN = int(opts.get("ackn", 24))
a = Asm()

KVACC = 0x0
KVSTR = 1152
KVCNT = 0x20000
OCNT = 0x30000
GBUF = 0x40000
OBUF = 0x100000
WS_BYTES = 0x500000
EPS = 0x358637bd
LOG2E = 0x3fb8aa3b
NEG_EPS_LOG2E = struct.unpack("<I", struct.pack("<f", -1e-6 * 1.4426950408889634))[0]
SPIN = int(opts.get("spin", 20000))
SL = [0, 32768, 65536, 98304, 131072]
WQ = SL[0]
STG = SL[2]
RED = SL[4]
MISC = SL[4] + 16384
KVF = SL[4] + 20480

class Cnt:
    def __init__(self, name, mx): self.q = []; self.name = name; self.mx = mx
    def issue(self, tag): self.q.append(tag)
    def n_after(self, tag):
        idx = max(i for i, t in enumerate(self.q) if t == tag)
        return len(self.q) - 1 - idx
    def wait(self, *tags):
        n = min(self.mx, min(self.n_after(t) for t in tags))
        a(f"s_waitcnt {self.name}({n})")
def VM(): return Cnt("vmcnt", 63)
def LG(): return Cnt("lgkmcnt", 15)

class Stamper:
    def __init__(self, start=0): self.n = start
    def __call__(self):
        if STAMPS:
            assert self.n < STAMPS, self.n
            a(f"{'s_memtime' if 'cyc' in opts else 's_memrealtime'} s[{70+2*self.n}:{71+2*self.n}]")
            self.n += 1

X, W, WO, WS, OUT = 24, 28, 32, 40, 44
RB, CB, WV, ROT, XS, WSB, WL, T0, T1, T2, T3, WOS, ROT3, SEPS, RT, CBK = 52, 53, 54, 55, 56, 57, 58, 59, 60, 61, 62, 63, 64, 65, 48, 49

def mfma(d, sa, sb, c=None):
    cc = f"v[{d}:{d+15}]" if c is None else c
    a(f"v_mfma_f32_32x32x16_bf16 v[{d}:{d+15}], v[{sa}:{sa+3}], v[{sb}:{sb+3}], {cc}")
def mfma16(d, sa, sb, c=None):
    cc = f"v[{d}:{d+3}]" if c is None else c
    a(f"v_mfma_f32_16x16x32_bf16 v[{d}:{d+3}], v[{sa}:{sa+3}], v[{sb}:{sb+3}], {cc}")
def tr(r, addr, off):
    a(f"ds_read_b64_tr_b16 v[{r}:{r+1}], v{addr} offset:{off}")
def phi_ops(acc, n, tmp, vlog, pk=False):
    ops = []
    if pk:
        for r in range(0, n, 2):
            ops.append(f"v_pk_fma_f32 v[{tmp+r}:{tmp+r+1}], v[{acc+r}:{acc+r+1}], v[{vlog}:{vlog+1}], v[{vlog+2}:{vlog+3}]")
    else:
        for r in range(n):
            ops.append(f"v_fmaak_f32 v{tmp+r}, v{vlog}, v{acc+r}, 0x{NEG_EPS_LOG2E:x}")
    for r in range(n):
        ops.append(f"v_exp_f32 v{tmp+r}, v{tmp+r} clamp")
        ops.append(f"v_max_f32 v{acc+r}, s{SEPS}, v{acc+r}")
    if pk:
        for r in range(0, n, 2):
            ops.append(f"v_pk_add_f32 v[{acc+r}:{acc+r+1}], v[{acc+r}:{acc+r+1}], v[{tmp+r}:{tmp+r+1}]")
    else:
        for r in range(n):
            ops.append(f"v_add_f32 v{acc+r}, v{acc+r}, v{tmp+r}")
    for r in range(n // 2):
        ops.append(f"v_cvt_pk_bf16_f32 v{acc+r}, v{acc+2*r}, v{acc+2*r+1}")
    return ops
def logconsts(v):
    a(f"v_mov_b32 v{v}, 0x{LOG2E:x}\nv_mov_b32 v{v+1}, 0x{LOG2E:x}\nv_mov_b32 v{v+2}, 0x{NEG_EPS_LOG2E:x}\nv_mov_b32 v{v+3}, 0x{NEG_EPS_LOG2E:x}")
def spin(label, body, cnt, sleep=None):
    a(f"{label}:\ns_mov_b32 s{cnt}, 0\n{label}_top:")
    a(body)
    a(f"s_add_u32 s{cnt}, s{cnt}, 1\ns_cmp_ge_u32 s{cnt}, {SPIN}\ns_cbranch_scc1 {label}_done")
    if sleep:
        a(f"s_cbranch_vccz {label}_done\ns_sleep {sleep}\ns_branch {label}_top")
    else:
        a(f"s_cbranch_vccnz {label}_top")
    a(f"{label}_done:")
rare = []
def lds_check(label, vtmp, vaddr, off, val, cnt):
    a(f"v_cmp_ne_u32 vcc, {val}, v{vtmp}\ns_cbranch_vccnz {label}\n{label}_done:")
    rare.append(f"""{label}:
s_mov_b32 s{cnt}, 0
{label}_top:
ds_read_b32 v{vtmp}, v{vaddr} offset:{off}
s_waitcnt lgkmcnt(0)
v_cmp_ne_u32 vcc, {val}, v{vtmp}
s_add_u32 s{cnt}, s{cnt}, 1
s_cmp_ge_u32 s{cnt}, {SPIN*8}
s_cbranch_scc1 {label}_done
s_cbranch_vccnz {label}_top
s_branch {label}_done""")
def lds_add(vaddr, vone, off):
    a(f"s_mov_b64 exec, 1\nds_add_u32 v{vaddr}, v{vone} offset:{off}\ns_mov_b64 exec, -1")
def dma(voff, sr, soff, off, tag, vmq, extra=""):
    o = f"offset:{off} " if off else ""
    a(f"buffer_load_dwordx4 v{voff}, s[{sr}:{sr+3}], s{soff} offen {o}{extra}lds")
    vmq.issue(tag)

st = Stamper()
st()
a(f"""
s_load_dwordx16 s[4:19], s[0:1], 0
s_load_dwordx4 s[20:23], s[0:1], 64
s_cmp_ge_u32 s2, 256
s_cbranch_scc1 Lend
v_lshrrev_b32 v20, 6, v0
v_and_b32 v1, 63, v0
v_readfirstlane_b32 s{WV}, v20
s_and_b32 s{T0}, s2, 7
s_lshr_b32 s{T1}, s2, 3
s_and_b32 s{CBK}, s{T1}, 7
s_lshr_b32 s{T2}, s{T1}, 3
s_and_b32 s{RB}, s{T0}, 1
s_lshl_b32 s{RB}, s{RB}, 3
s_add_u32 s{RB}, s{RB}, s{CBK}
s_lshr_b32 s{CB}, s{T0}, 1
s_lshl_b32 s{CB}, s{CB}, 2
s_add_u32 s{CB}, s{CB}, s{T2}
s_lshl_b32 s{RT}, s{T0}, 2
s_add_u32 s{RT}, s{RT}, s{T2}
s_lshl_b32 s{ROT3}, s{T2}, 1
s_add_u32 s{ROT3}, s{ROT3}, s{CBK}
s_and_b32 s{ROT3}, s{ROT3}, 7
""")
if ROTMODE == "8":
    a(f"s_mov_b32 s{ROT}, s{ROT3}")
elif ROTMODE == "0":
    a(f"s_mov_b32 s{ROT}, 0")
elif ROTMODE == "2":
    a(f"s_add_u32 s{ROT}, s{CBK}, s{T2}\ns_and_b32 s{ROT}, s{ROT}, 1\ns_lshl_b32 s{ROT}, s{ROT}, 2")
elif ROTMODE == "4":
    a(f"s_add_u32 s{ROT}, s{CBK}, s{T2}\ns_and_b32 s{ROT}, s{ROT}, 3\ns_lshl_b32 s{ROT}, s{ROT}, 1")
a(f"""
s_and_b32 s{WL}, s{WV}, 3
s_cmp_lt_u32 s{WV}, 4
s_cbranch_scc1 Lx
""")

vm = VM()
sty = Stamper(1)
if opts.get("yprio") == "1": a("s_setprio 3")
a(f"""
v_lshrrev_b32 v20, 3, v1
v_and_b32 v21, 7, v1
v_lshrrev_b32 v22, 4, v1
v_xor_b32 v23, v21, v22
v_lshlrev_b32 v2, 10, v20
v_lshl_add_u32 v2, v23, 4, v2
v_xor_b32 v3, 64, v2
v_add_u32 v3, {8192-1024}, v3
v_add_u32 v4, {2*(8192-1024)}, v2
v_add_u32 v5, {2*(8192-1024)}, v3
v_and_b32 v23, 1, v22
v_lshlrev_b32 v24, 1, v23
v_xor_b32 v24, v21, v24
v_mul_u32_u24 v25, 3072, v20
v_lshl_add_u32 v6, v24, 4, v25
v_xor_b32 v7, 64, v6
v_add_u32 v7, {8*3072-1024}, v7
v_add_u32 v10, 1024, v6
v_add_u32 v11, 1024, v7
s_lshl_b32 s{XS}, s{RB}, 17
s_lshl_b32 s{T0}, s{WL}, 15
s_add_u32 s{XS}, s{XS}, s{T0}
s_and_b32 s{WSB}, s{CB}, 7
s_lshl_b32 s{WSB}, s{WSB}, 7
s_mul_i32 s66, s{WL}, {16*3072}
s_add_u32 s66, s66, s{WSB}
s_lshl_b32 s67, s{WL}, 12
s_mov_b32 s{X+2}, {2048*1024}
s_mov_b32 s{X+3}, 0x20000
s_mov_b32 s{W+2}, {512*3072}
s_mov_b32 s{W+3}, 0x20000
s_cmp_ge_u32 s{CB}, 8
s_waitcnt lgkmcnt(0)
s_mov_b32 s{X}, s4
s_mov_b32 s{X+1}, s5
s_cselect_b32 s{W}, s12, s6
s_cselect_b32 s{W+1}, s13, s7
""")
def issue_chunk(c):
    slot = SL[c % 4]
    a(f"s_add_u32 s{T0}, s{ROT}, {c}")
    a(f"s_and_b32 s{T0}, s{T0}, 7")
    a(f"s_lshl_b32 s{T1}, s{T0}, 7")
    a(f"s_add_u32 m0, s67, {slot}")
    a(f"s_add_u32 s{T1}, s{T1}, s{XS}")
    for q in range(4):
        dma(2 + q, X, T1, q * 1024, f"c{c}", vm)
        if q == 0:
            a(f"s_mul_i32 s{T2}, s{T0}, {64*3072}")
        if q == 1:
            a(f"s_add_u32 s{T2}, s{T2}, s66")
    a(f"s_add_u32 m0, s67, {slot+16384}")
    a("s_nop 0")
    dma(10, W, T2, 0, f"c{c}", vm)
    dma(11, W, T2, 1024, f"c{c}", vm)
    dma(6, W, T2, 2048, f"c{c}", vm)
    dma(7, W, T2, 3072, f"c{c}", vm)
def issue_wq(h):
    a(f"s_add_u32 s{T0}, s{ROT}, s{WL}")
    a(f"s_add_u32 s{T0}, s{T0}, {4*h}")
    a(f"s_and_b32 s{T0}, s{T0}, 7")
    a(f"s_mul_i32 s{T2}, s{T0}, {64*3072}")
    a(f"s_lshl_b32 s{T1}, s67, 1")
    a(f"s_add_u32 m0, s{T1}, {WQ+h*32768}")
    a(f"s_add_u32 s{T2}, s{T2}, s{WSB}")
    for q in range(4):
        dma(26 + q, W, T2, q * 1024, f"q{h}", vm)
    a(f"s_add_u32 m0, s{T1}, {WQ+h*32768+4096}")
    a(f"s_add_u32 s{T2}, s{T2}, {32*3072}")
    for q in range(4):
        dma(26 + q, W, T2, q * 1024, f"q{h}", vm)
issue_chunk(0)
issue_chunk(1)
sty()
a(f"""
v_lshlrev_b32 v24, 2, v23
v_xor_b32 v24, v21, v24
v_lshl_add_u32 v26, v24, 4, v25
v_add_u32 v27, {8*3072-1024}, v26
v_add_u32 v28, {2*(8*3072-1024)}, v26
v_add_u32 v29, {3*(8*3072-1024)}, v26
v_lshlrev_b32 v12, 10, v20
v_lshl_add_u32 v12, v24, 4, v12
v_add_u32 v13, {8192-1024}, v12
v_add_u32 v14, {2*(8192-1024)}, v12
v_add_u32 v15, {3*(8192-1024)}, v12
s_lshl_b32 s69, s{CBK}, 7
s_and_b32 s{T0}, s{WL}, 1
s_add_u32 s50, s{T0}, s{ROT3}
s_lshl_b32 s{T1}, s{T0}, 6
s_add_u32 s{WOS}, s69, s{T1}
s_lshl_b32 s68, s{WL}, 14
v_lshrrev_b32 v16, 5, v1
v_bfe_u32 v17, v1, 2, 2
v_lshl_add_u32 v16, v16, 2, v17
v_lshlrev_b32 v16, 7, v16
v_lshl_add_u32 v16, v23, 5, v16
v_and_b32 v24, 3, v1
v_lshl_add_u32 v16, v24, 3, v16
v_bfe_u32 v17, v1, 3, 1
v_xor_b32 v17, s{T0}, v17
v_lshl_add_u32 v16, v17, 6, v16
s_add_u32 s{T1}, s68, {STG}
v_add_u32 v16, s{T1}, v16
v_xor_b32 v18, 64, v16
v_lshlrev_b32 v19, 4, v1
v_mov_b32 v30, {MISC}
v_mov_b32 v31, 1
s_cmp_ge_u32 s{WL}, 2
s_cselect_b32 s8, s14, s8
s_cselect_b32 s9, s15, s9
""")
srd(a, WO, 8, 512 * 1024)
srd(a, WS, 22, WS_BYTES)
srd(a, OUT, 18, 2048 * 1024)
def touch():
    pass
for i in range(8):
    vm.wait(f"c{i}")
    a("s_barrier")
    if i in (0, 7): sty()
    if i + 2 < 8:
        issue_chunk(i + 2)
    if i == TOUCH:
        touch()
    if TOUCH != 6 and i == 6:
        issue_wq(0)
if TOUCH == 6:
    issue_wq(0)
issue_wq(1)
if TOUCH == 8:
    touch()
if opts.get("yprio") == "2": a("s_setprio 3")
vm.wait("q0")
lds_add(30, 31, 8)
sty()
spin("Lad", "ds_read_b32 v17, v30 offset:12\ns_waitcnt lgkmcnt(0)\nv_cmp_gt_u32 vcc, 4, v17", T3, sleep=1)
def issue_wo(sg):
    a(f"s_add_u32 s{T2}, s50, {2*sg}")
    a(f"s_and_b32 s{T2}, s{T2}, 7")
    a(f"s_lshl_b32 s{T2}, s{T2}, 16")
    a(f"s_add_u32 m0, s68, {STG + (sg % 2) * 8192}")
    a(f"s_add_u32 s{T2}, s{T2}, s69")
    for q in range(4):
        dma(12 + q, WO, T2, q * 1024, f"wo{sg}", vm)
    a(f"s_add_u32 m0, s68, {STG + (sg % 2) * 8192 + 4096}")
    a(f"s_add_u32 s{T2}, s{T2}, 32768")
    for q in range(4):
        dma(12 + q, WO, T2, q * 1024, f"wo{sg}", vm)
EARLY = int(opts.get("early", 1))
vm.wait("q1")
lds_add(30, 31, 0)
for G in range(EARLY): issue_wo(G)
if EARLY < 2:
    spin("Lai", "ds_read_b32 v17, v30 offset:24\ns_waitcnt lgkmcnt(0)\nv_cmp_gt_u32 vcc, 4, v17", T3, sleep=1)
for G in range(EARLY, 2): issue_wo(G)
WR = 128
def wreg(sg, hl, c): return WR + ((sg * 4 + hl) * 2 + c) * 4
for sg in range(4):
    vm.wait(f"wo{sg}")
    for hl in range(4):
        for c in range(2):
            r = wreg(sg, hl, c)
            off = (sg % 2) * 8192 + hl * 2048
            tr(r, 16 + 2 * c, off); tr(r + 2, 16 + 2 * c, off + 1024)
    if sg + 2 < 4:
        a("s_waitcnt lgkmcnt(0)")
        issue_wo(sg + 2)
sty()
a(f"""
s_lshl_b32 s{T0}, s{CB}, 2
s_add_u32 s{T0}, s{T0}, s{WL}
s_lshl_b32 s{T2}, s{T0}, 10
s_add_u32 s{T2}, s{T2}, {KVCNT}
s_mul_i32 s{T1}, s{T0}, {KVSTR}
v_and_b32 v2, 31, v1
v_min_u32 v3, 16, v2
v_lshrrev_b32 v4, 5, v1
v_lshlrev_b32 v5, 5, v4
v_lshl_add_u32 v3, v3, 6, v5
v_mov_b32 v6, 0
s_lshl_b32 s{T0}, s{WL}, 10
s_add_u32 s{T0}, s{T0}, {KVF}
v_add_u32 v7, s{T0}, v19
s_mov_b64 exec, 1
""")
spin("Lpollkv", f"buffer_load_dword v17, v6, s[{WS}:{WS+3}], s{T2} offen sc1\ns_waitcnt vmcnt(0)\nv_cmp_ne_u32 vcc, 16, v17", T3, sleep=int(opts.get("ksleep", 2)))
a("s_mov_b64 exec, -1")
sty()
a(f"""
buffer_load_dwordx4 v[32:35], v3, s[{WS}:{WS+3}], s{T1} offen sc1
buffer_load_dwordx4 v[36:39], v3, s[{WS}:{WS+3}], s{T1} offen offset:16 sc1
s_lshl_b32 s{T0}, s{WL}, 15
v_add_u32 v11, s{T0}, v19
v_xor_b32 v12, 0x8000, v11
v_xor_b32 v13, 0x10000, v11
v_xor_b32 v14, 0x18000, v11
v_lshlrev_b32 v10, 10, v2
v_lshl_add_u32 v10, v4, 4, v10
v_lshlrev_b32 v2, 2, v2
s_lshl_b32 s{T1}, s{RT}, 1
s_lshr_b32 s{T0}, s{WL}, 1
s_add_u32 s{T1}, s{T1}, s{T0}
s_lshl_b32 s66, s{T1}, 7
s_add_u32 s66, s66, {GBUF}
s_lshl_b32 s{T1}, s{T1}, 15
s_add_u32 s{T1}, s{T1}, s{WOS}
s_lshl_b32 s{T2}, s{RT}, 11
s_add_u32 s{T2}, s{T2}, {OCNT}
v_lshlrev_b32 v18, 10, v1
s_waitcnt vmcnt(0)
v_cvt_pk_bf16_f32 v32, v32, v33
v_cvt_pk_bf16_f32 v33, v34, v35
v_cvt_pk_bf16_f32 v34, v36, v37
v_cvt_pk_bf16_f32 v35, v38, v39
ds_write_b128 v7, v[32:35]
""")
lds_add(30, 31, 4)
sty()
a(f"""
s_cmp_eq_u32 s{WV}, 4
s_cbranch_scc0 Lpollo_done
s_sleep {opts.get("odelay", 16)}
s_mov_b64 exec, 3
""")
spin("Lpollo", f"buffer_load_dword v17, v18, s[{WS}:{WS+3}], s{T2} offen sc1\ns_waitcnt vmcnt(0)\nv_cmp_ne_u32 vcc, 16, v17", T3, sleep=int(opts.get("osleep", 2)))
a("s_mov_b64 exec, -1\ns_waitcnt lgkmcnt(0)")
sty()
a("s_barrier")
a(f"buffer_load_dword v15, v2, s[{WS}:{WS+3}], s66 offen sc1")
ACC = [32, 48, 64, 80]
OB = 96
lg = LG()
def rdO(sg, rg, hl):
    r = OB + (rg * 4 + hl) * 4
    a(f"ds_read_b128 v[{r}:{r+3}], v11 offset:{sg*8192 + rg*4096 + hl*1024}")
    lg.issue(f"O{sg}{rg}{hl}")
def mfO(sg, rg, hl, c, wait=True):
    if wait: lg.wait(f"O{sg}{rg}{hl}")
    mfma(ACC[rg * 2 + c], wreg(sg, hl, c), OB + (rg * 4 + hl) * 4, "0" if (sg == 0 and hl == 0) else None)
order = [(1, 0), (1, 1), (1, 2), (1, 3), (0, 0), (0, 1), (0, 2), (0, 3)]
pend = []
for sg in range(4):
    a("s_barrier")
    if sg in (0, 3): sty()
    if sg < 3:
        for (rg, hl) in order:
            rdO(sg, rg, hl)
            pend.append((sg, rg, hl))
            if len(pend) > 2:
                p = pend.pop(0)
                mfO(*p, 0); mfO(*p, 1, wait=False)
    else:
        for (rg, hl) in order[:4]:
            rdO(sg, rg, hl)
        for k in range(2):
            p = pend.pop(0)
            mfO(*p, 0); mfO(*p, 1, wait=False)
            rdO(sg, *order[4 + k])
        rdO(sg, *order[6]); rdO(sg, *order[7])
        def wr(t, k):
            a(f"ds_write_b128 v11, v[{ACC[t]+4*k}:{ACC[t]+4*k+3}] offset:{(t-1)*4096 + k*1024}")
            lg.issue("W")
        for hl in range(4): mfO(3, 1, hl, 1)
        for hl in range(4): mfO(3, 1, hl, 0, wait=False)
        a("s_nop 7")
        for hl in range(4):
            mfO(3, 0, hl, 1); wr(3, hl)
        for hl in range(4):
            mfO(3, 0, hl, 0, wait=False); wr(2, hl)
        a("s_nop 3")
        for k in range(4): wr(1, k)
sty()
a(f"""
s_waitcnt vmcnt(0)
v_sub_f32 v16, 1.0, v15
s_cmp_ge_u32 s{WL}, 2
s_cselect_b64 vcc, -1, 0
v_cndmask_b32 v17, v15, v16, vcc
v_cndmask_b32 v16, v16, v15, vcc
s_waitcnt lgkmcnt(0)
s_barrier
""")
for t, vr in ((1, 12), (2, 13), (3, 14)):
    for k in range(4):
        a(f"ds_read_b128 v[{ACC[t]+4*k}:{ACC[t]+4*k+3}], v{vr} offset:{(t-1)*4096 + k*1024}")
a("s_waitcnt lgkmcnt(8)")
for r in range(0, 16, 2):
    a(f"v_pk_add_f32 v[{32+r}:{33+r}], v[{32+r}:{33+r}], v[{48+r}:{49+r}]")
for r in range(16):
    a(f"v_mul_f32 v{32+r}, v{32+r}, v17")
a("s_waitcnt lgkmcnt(0)")
for r in range(0, 16, 2):
    a(f"v_pk_add_f32 v[{64+r}:{65+r}], v[{64+r}:{65+r}], v[{80+r}:{81+r}]")
for r in range(16):
    a(f"v_fmac_f32 v{32+r}, v{64+r}, v16")
for r in range(8):
    a(f"v_cvt_pk_bf16_f32 v{32+r}, v{32+2*r}, v{33+2*r}")
a(f"""
s_nop 1
v_permlane32_swap_b32 v32, v34
v_permlane32_swap_b32 v33, v35
v_permlane32_swap_b32 v36, v38
v_permlane32_swap_b32 v37, v39
buffer_store_dwordx4 v[32:35], v10, s[{OUT}:{OUT+3}], s{T1} offen
buffer_store_dwordx4 v[36:39], v10, s[{OUT}:{OUT+3}], s{T1} offen offset:32
""")
if STAMPS:
    sty()
    a("s_waitcnt vmcnt(0)")
    while sty.n < STAMPS: sty()
    a("s_branch Lstamps")
else:
    a("s_endpgm")

vm = VM()
stx = Stamper(1)
a("Lx:")
a(f"""
s_getpc_b64 s[66:67]
Lpc0:
s_sub_u32 s66, s66, Lpc0-{NAME}_kernel
s_subb_u32 s67, s67, 0
s_and_b32 s{T0}, s{CBK}, 3
s_lshl_b32 s{T0}, s{T0}, 2
s_add_u32 s{T0}, s{T0}, s{WL}
s_mul_i32 s{T0}, s{T0}, 1280
v_lshl_add_u32 v140, v1, 7, s{T0}
v_min_u32 v140, Lcode_end-{NAME}_kernel-4, v140
s_mov_b64 exec, 0x3ff
global_load_dword v141, v140, s[66:67]
s_mov_b64 exec, -1
v_lshlrev_b32 v14, 4, v1
s_lshl_b32 s{T0}, s{RB}, 7
s_lshl_b32 s{T1}, s{CB}, 3
s_add_u32 s{T0}, s{T0}, s{T1}
s_lshl_b32 s{T1}, s{WL}, 1
s_add_u32 s69, s{T0}, s{T1}
s_lshl_b32 s{T0}, s69, 10
v_add_u32 v20, s{T0}, v14
s_waitcnt lgkmcnt(0)
global_load_dwordx4 v[128:131], v20, s[4:5]
global_load_dwordx4 v[132:135], v20, s[4:5] offset:1024
global_load_dwordx4 v[136:139], v14, s[16:17]
v_mov_b32 v160, 0
v_mov_b32 v161, 0
v_mov_b32 v162, 0
v_mov_b32 v163, 0
v_mov_b32 v12, {MISC}
v_mov_b32 v13, 1
ds_write_b128 v12, v[160:163]
ds_write_b128 v12, v[160:163] offset:16
""")
srd(a, WS, 22, WS_BYTES)
a(f"""
s_cmp_eq_u32 s{RB}, s{CB}
s_cbranch_scc0 Lnozero
s_lshl_b32 s{T0}, s{CB}, 2
s_add_u32 s{T0}, s{T0}, s{WL}
s_mul_i32 s{T1}, s{T0}, {KVSTR}
buffer_store_dwordx4 v[160:163], v14, s[{WS}:{WS+3}], s{T1} offen sc1
s_lshl_b32 s{T2}, s{T0}, 10
s_add_u32 s{T3}, s{T2}, {OCNT}
s_add_u32 s{T2}, s{T2}, {KVCNT}
s_mov_b64 exec, 0xf
buffer_store_dwordx4 v[160:163], v14, s[{WS}:{WS+3}], s{T2} offen sc1
buffer_store_dwordx4 v[160:163], v14, s[{WS}:{WS+3}], s{T3} offen sc1
buffer_store_dwordx4 v[160:163], v14, s[{WS}:{WS+3}], s{T1} offen offset:1024 sc1
s_mov_b64 exec, -1
Lnozero:
s_mov_b32 s{SEPS}, 0x{EPS:x}
v_and_b32 v20, 15, v1
v_lshrrev_b32 v21, 4, v1
v_lshrrev_b32 v22, 1, v20
v_xor_b32 v22, v21, v22
v_lshlrev_b32 v2, 7, v20
v_lshl_add_u32 v2, v22, 4, v2
v_xor_b32 v3, 64, v2
; W base v4
v_lshrrev_b32 v24, 5, v1
v_lshlrev_b32 v4, 12, v24
v_and_b32 v25, 1, v21
v_lshl_add_u32 v4, v25, 10, v4
v_lshrrev_b32 v26, 2, v20
v_lshl_add_u32 v4, v26, 7, v4
v_bfe_u32 v23, v1, 3, 2
v_xor_b32 v23, s{WL}, v23
v_lshl_add_u32 v4, v23, 5, v4
v_and_b32 v23, 3, v1
v_lshl_add_u32 v4, v23, 3, v4
v_add_u32 v4, 16384, v4
v_lshlrev_b32 v5, 8, v21
v_lshl_add_u32 v5, v23, 2, v5
v_bfe_u32 v22, v1, 2, 1
v_lshl_add_u32 v5, v22, 5, v5
v_bfe_u32 v22, v1, 3, 1
v_lshl_add_u32 v5, v22, 4, v5
v_lshl_add_u32 v10, v24, 3, v26
v_lshlrev_b32 v10, 7, v10
v_lshl_add_u32 v10, v25, 5, v10
v_lshl_add_u32 v10, v23, 3, v10
v_lshl_add_u32 v10, v22, 6, v10
v_xor_b32 v11, 64, v10
v_and_b32 v20, 31, v1
s_lshl_b32 s{T0}, s{WL}, 12
v_lshl_add_u32 v6, v20, 7, s{T0}
v_bfe_u32 v25, v1, 1, 3
v_xor_b32 v25, v24, v25
v_lshl_add_u32 v6, v25, 4, v6
v_xor_b32 v7, 32, v6
v_xor_b32 v8, 64, v6
v_xor_b32 v9, 96, v6
""")
RG, BF, AK, AV, XR = 16, 48, 64, 96, 128
for r in range(AK, AK + 32):
    a(f"v_mov_b32 v{r}, 0x{EPS:x}")
a(f"""
v_mov_b32 v16, 0
v_mov_b32 v17, 0
s_waitcnt vmcnt(0)
""")
for k in range(4):
    a(f"v_dot2c_f32_bf16 v16, v{128+k}, v{136+k}")
    a(f"v_dot2c_f32_bf16 v17, v{132+k}, v{136+k}")
a(f"""
s_nop 2
v_permlane32_swap_b32 v16, v17
s_nop 1
v_add_f32 v16, v16, v17
s_nop 1
v_add_f32_dpp v16, v16, v16 row_ror:8 row_mask:0xf bank_mask:0xf
s_nop 1
v_add_f32_dpp v16, v16, v16 row_ror:4 row_mask:0xf bank_mask:0xf
s_nop 1
v_add_f32_dpp v16, v16, v16 row_ror:2 row_mask:0xf bank_mask:0xf
s_nop 1
v_add_f32_dpp v16, v16, v16 row_ror:1 row_mask:0xf bank_mask:0xf
v_mov_b32 v17, v16
s_nop 1
v_permlane16_swap_b32 v16, v17
s_nop 1
v_add_f32 v16, v16, v17
v_mul_f32 v16, 0xbfb8aa3b, v16
v_exp_f32 v16, v16
v_lshlrev_b32 v17, 2, v24
v_add_f32 v16, 1.0, v16
v_rcp_f32 v15, v16
s_lshl_b32 s{T0}, s69, 2
s_add_u32 s{T0}, s{T0}, {GBUF}
s_mov_b32 exec_lo, 1
s_mov_b32 exec_hi, 1
buffer_store_dword v15, v17, s[{WS}:{WS+3}], s{T0} offen sc1
s_mov_b64 exec, -1
s_cmp_eq_u32 s{RB}, s{CB}
s_cbranch_scc0 Lnoflag
s_lshl_b32 s{T0}, s{CB}, 2
s_add_u32 s{T0}, s{T0}, s{WL}
s_lshl_b32 s{T0}, s{T0}, 2
v_mov_b32 v20, s{T0}
s_mov_b64 exec, 1
global_store_dword v20, v13, s[20:21] sc1
s_mov_b64 exec, -1
Lnoflag:
s_waitcnt lgkmcnt(0)
""")
stx()
lg = LG()
for i in range(8):
    so = (i & 1) * 32768
    a("s_barrier")
    if i in (0, 7): stx()
    for sidx in range(16):
        n = (sidx - LAGA) % 16
        ci = i if sidx >= LAGA else i - 1
        ks = n >> 3; rt = n & 7
        em = ci >= 0
        first = (ci == 0 and ks == 0)
        if em:
            tags = [f"X{ci}_{n}"] + ([f"B{ci}_{ks}0", f"B{ci}_{ks}1"] if rt == 0 else [])
            if sidx % 2 == 0 and rt != 7:
                tags.append(f"X{ci}_{n+1}")
            if sidx % 2 == 0 or rt == 0:
                lg.wait(*tags)
            mfma16(AK + 4 * rt, RG + 4 * (n % 8), BF + ks * 8)
        def rdB(k_, sec, u):
            tr(BF + k_ * 8 + sec * 4 + 2 * u, 4, so + k_ * 8192 + sec * 2048 + u * 512)
            lg.issue(f"B{i}_{k_}{sec}")
        if sidx < 2:
            rdB(0, sidx, 0); rdB(0, sidx, 1)
        elif 6 <= sidx < 10:
            rdB(1, (sidx - 6) >> 1, sidx & 1)
        elif sidx in (2, 3, 4, 5):
            t = sidx - 2
            xr = XR + (4 * i + t) * 4
            a(f"ds_read_b128 v[{xr}:{xr+3}], v{6+t} offset:{so}")
            lg.issue("XR")
        elif (i & 1) and i < 7 and sidx == 10:
            a("v_xor_b32 v2, 0x10000, v2\nv_xor_b32 v4, 0x10000, v4")
        elif (i & 1) and i < 7 and sidx in (11, 12):
            k = 6 + 2 * (sidx - 11)
            a(f"v_xor_b32 v{k}, 0x10000, v{k}\nv_xor_b32 v{k+1}, 0x10000, v{k+1}")
        elif i == 4 and sidx == 13:
            a(f"s_waitcnt vmcnt(0)\ns_cmp_eq_u32 s{WV}, 3\ns_cbranch_scc1 Lz1\nLz1_done:")
            rare.append(f"Lz1:\nv_lshlrev_b32 v14, 2, v1\nglobal_load_dword v15, v14, s[20:21] sc1\ns_branch Lz1_done")
        elif i == 6 and sidx == 13:
            a(f"s_cmp_eq_u32 s{WV}, 3\ns_cbranch_scc1 Lz2\nLz2_done:")
            rare.append(f"""Lz2:
s_mov_b32 s{T0}, 0
Lz2_top:
s_waitcnt vmcnt(0)
v_cmp_eq_u32 vcc, 0, v15
s_add_u32 s{T0}, s{T0}, 1
s_cmp_ge_u32 s{T0}, {SPIN}
s_cbranch_scc1 Lz2_done
s_cbranch_vccz Lz2_done
global_load_dword v15, v14, s[20:21] sc1
s_branch Lz2_top""")
        if em:
            mfma16(AV + 4 * rt, RG + 4 * (n % 8), BF + ks * 8 + 4, "0" if first else None)
        if i > 0 and (i & 1) == 0 and sidx == 1:
            a("v_xor_b32 v3, 0x10000, v3")
        r = RG + 4 * (sidx % 8)
        a(f"ds_read_b128 v[{r}:{r+3}], v{2 + (sidx >> 3)} offset:{so + (sidx & 7) * 2048}")
        lg.issue(f"X{i}_{sidx}")
for n in range(16 - LAGA, 16):
    lg.wait(f"X7_{n}")
    mfma16(AK + 4 * (n & 7), RG + 4 * (n % 8), BF + 8)
lds_add(12, 13, 12)
for n in range(16 - LAGA, 16):
    mfma16(AV + 4 * (n & 7), RG + 4 * (n % 8), BF + 12)
stx()
a(f"""
s_lshl_b32 s{T0}, s{CB}, 2
s_add_u32 s{T0}, s{T0}, s{WL}
s_mul_i32 s{T1}, s{T0}, {KVSTR}
s_lshl_b32 s68, s{T0}, 10
s_add_u32 s68, s68, {KVCNT}
""")
logconsts(48)
for op in phi_ops(AK, 32, RG, 48, pk=("nopk" not in opts)):
    a(op)
a("ds_read_b32 v15, v12 offset:8")
for r in range(16):
    a(f"v_cvt_pk_bf16_f32 v{AV+r}, v{AV+2*r}, v{AV+2*r+1}")
for r in range(60, 64):
    a(f"v_mov_b32 v{r}, 0x3f803f80")
for p in range(4):
    mfma16(52, AV + 4 * p, AK + 4 * p, "0" if p == 0 else None)
for p in range(4):
    mfma16(56, 60, AK + 4 * p, "0" if p == 0 else None)
for r in range(80, 84):
    a(f"v_mov_b32 v{r}, 0x{EPS:x}")
for r in range(4):
    a(f"buffer_atomic_add_f32 v{52+r}, v5, s[{WS}:{WS+3}], s{T1} offen offset:{r*64}")
a("s_mov_b64 exec, 0xffff")
a(f"buffer_atomic_add_f32 v56, v5, s[{WS}:{WS+3}], s{T1} offen offset:1024")
lds_add(12, 13, 24)
stx()
a("s_waitcnt lgkmcnt(0)")
lds_check("Lq0", 15, 12, 8, 4, T3)
NB = 8
seq = [(ct, s) for s in range(16) for ct in range(2)] + [(0, s) for s in range(16, 32)] + [(1, s) for s in range(16, 32)]
lgq = LG()
def qread(n):
    ct, s = seq[n]
    r = RG + (n % NB) * 4
    off = WQ + (s // 4) * 8192 + (s % 4) * 2048
    tr(r, 10 + ct, off); tr(r + 2, 10 + ct, off + 512)
    lgq.issue(f"q{n}"); lgq.issue(f"q{n}")
PF = 4
for n in range(PF):
    qread(n)
for r in list(range(64, 80)) + list(range(84, 96)):
    a(f"v_mov_b32 v{r}, 0x{EPS:x}")
a("v_mov_b32 v14, 0")
stx()
ph0 = phi_ops(64, 16, 96, 48)
for n, (ct, s) in enumerate(seq):
    if n == 22:
        a("ds_read_b32 v15, v12")
        lgq.issue("cntr")
    if n + PF == 32:
        lgq.wait("cntr")
        lds_check("Lq1", 15, 12, 0, 4, T3)
    if n + PF < 64:
        qread(n + PF)
    lgq.wait(f"q{n}")
    mfma(64 + 16 * ct, RG + (n % NB) * 4, XR + s * 4)
    if n == ACKN:
        a(f"s_waitcnt vmcnt(0)\ns_mov_b64 exec, 1\nbuffer_atomic_add v13, v14, s[{WS}:{WS+3}], s68 offen sc1\ns_mov_b64 exec, -1")
        stx()
    if n >= 50:
        k = 4 if n < 63 else len(ph0)
        for op in ph0[:k]:
            a(op)
        ph0 = ph0[k:]
assert not ph0
stx()
a(f"""
v_lshlrev_b32 v2, 4, v1
v_add_u32 v3, {KVF}, v2
s_lshl_b32 s{T1}, s{RB}, 2
s_add_u32 s{T1}, s{T1}, s{WL}
s_lshl_b32 s{T0}, s{T1}, 16
s_lshl_b32 s{T3}, s{CB}, 12
s_add_u32 s{T0}, s{T0}, s{T3}
s_add_u32 s{T0}, s{T0}, {OBUF}
s_lshl_b32 s{T1}, s{T1}, 10
s_add_u32 s{T1}, s{T1}, {OCNT}
""")
ph1 = phi_ops(80, 16, 96, 48, pk=True)
for op in ph1[:-10]:
    a(op)
a("ds_read_b32 v15, v12 offset:4")
for op in ph1[-10:]:
    a(op)
stx()
a("s_waitcnt lgkmcnt(0)")
lds_check("Lkvw", 15, 12, 4, 4, T3)
stx()
for h in range(4):
    a(f"ds_read_b128 v[{16+4*h}:{19+4*h}], v3 offset:{h*1024}")
PQ = [64, 68, 80, 84]
DN = [192, 208, 224, 240]
for h in range(4):
    a(f"s_waitcnt lgkmcnt({3-h})")
    mfma(DN[h], 16 + 4 * h, PQ[h], "0")
a(f"""
s_lshr_b32 s{T2}, s{WL}, 1
s_lshl_b32 s66, s{RT}, 1
s_add_u32 s66, s66, s{T2}
s_lshl_b32 s66, s66, 16
s_lshl_b32 s{T2}, s{T2}, 15
s_add_u32 s66, s66, s{T2}
s_add_u32 s66, s66, {OBUF}
s_lshl_b32 s67, s{WL}, 15
s_and_b32 s50, s{WL}, 1
s_add_u32 s50, s50, s{ROT3}
""")
for h in range(4):
    d = DN[h]
    a(f"v_add_f32 v{d+8}, 0x{EPS:x}, v{d+8}")
    a(f"v_rcp_f32 v{d+8}, v{d+8}")
    a("s_nop 0")
    a(f"v_mov_b32 v{d+9}, v{d+8}")
    for r in range(0, 8, 2):
        a(f"v_pk_mul_f32 v[{d+r}:{d+r+1}], v[{d+r}:{d+r+1}], v[{d+8}:{d+9}]")
    for r in range(4):
        a(f"v_cvt_pk_bf16_f32 v{d+r}, v{d+2*r}, v{d+2*r+1}")
    a(f"buffer_store_dwordx4 v[{d}:{d+3}], v2, s[{WS}:{WS+3}], s{T0} offen offset:{h*1024} sc1")
stx()
a(f"""
s_waitcnt vmcnt(0)
s_mov_b64 exec, 1
buffer_atomic_add v13, v14, s[{WS}:{WS+3}], s{T1} offen sc1
s_mov_b64 exec, -1
""")
stx()
a("s_barrier")
stx()
vm = VM()
def issue_o(sg):
    a(f"s_add_u32 s{T2}, s50, {2*sg}")
    a(f"s_and_b32 s{T2}, s{T2}, 7")
    a(f"s_lshl_b32 s{T2}, s{T2}, 12")
    a(f"s_add_u32 s{T2}, s{T2}, s66")
    a(f"s_add_u32 m0, s67, {sg*8192+4096}")
    a(f"s_xor_b32 s{T3}, s{T2}, 0x10000")
    for q in range(4):
        dma(2, WS, T3, q * 1024, f"o{sg}", vm, "sc1 ")
    a(f"s_add_u32 m0, s67, {sg*8192}")
    a("s_nop 0")
    for q in range(4):
        dma(2, WS, T2, q * 1024, f"o{sg}", vm, "sc1 ")
issue_o(0)
for sg in range(4):
    if sg + 1 < 4:
        issue_o(sg + 1)
    vm.wait(f"o{sg}")
    a("s_barrier")
if STAMPS:
    a("s_barrier")
    while stx.n < STAMPS: stx()
    a("Lstamps:")
    a(f"v_subrev_u32 v40, {SWAVE*64}, v0")
    emit_stamp_store(a, 0, STAMPS, 70, 22, 2, 20, stmp=60, tid="v40")
a("Lend:")
a("s_endpgm")
for r in rare:
    a(r)
a("Lcode_end:")
open(sys.argv[1], "w").write(file_text([(NAME + "_kernel", 256, 512, 163840)], [(NAME + "_kernel", a.text(), 256, None)]))
```

```python
import sys, struct
from asmlib import *

opts = dict(o.split("=") if "=" in o else (o, "1") for o in sys.argv[2:])
STAMPS = int(opts.get("stamps", 0))
SWAVE = int(opts.get("swave", 0))
ROTMODE = opts.get("rot", "2")
LAGA = int(opts.get("lag", 6))
EARLY = int(opts.get("early", 0))
a = Asm()

KVSTR = 1152
KVCNT = 0x20000
OCNT = 0x30000
GBUF = 0x40000
OBUF = 0x100000
WS_BYTES = 0x500000
EPS = 0x358637bd
LOG2E = 0x3fb8aa3b
SPIN = int(opts.get("spin", 20000))
SL = [0, 32768, 65536, 98304, 131072]
WQ = SL[0]
STG = SL[2]
MISC = SL[4]
KVF = SL[4] + 4096
KVP = SL[4] + 8192

class Cnt:
    def __init__(self, name, mx): self.q = []; self.name = name; self.mx = mx
    def issue(self, tag): self.q.append(tag)
    def n_after(self, tag):
        idx = max(i for i, t in enumerate(self.q) if t == tag)
        return len(self.q) - 1 - idx
    def wait(self, *tags):
        n = min(self.mx, min(self.n_after(t) for t in tags))
        a(f"s_waitcnt {self.name}({n})")
def VM(): return Cnt("vmcnt", 63)
def LG(): return Cnt("lgkmcnt", 15)

class Stamper:
    def __init__(self, start=0): self.n = start
    def __call__(self):
        if STAMPS:
            assert self.n < STAMPS, self.n
            a(f"{'s_memtime' if 'cyc' in opts else 's_memrealtime'} s[{70+2*self.n}:{71+2*self.n}]")
            self.n += 1

X, W, WO, WS, OUT = 24, 28, 32, 40, 44
SLG, SEP = 36, 38
RT, CBK, RW, ONE = 48, 49, 50, 51
RB, CB, WV, ROT, XS, WSB, WL, T0, T1, T2, T3, WOS, ROT3, T4 = 52, 53, 54, 55, 56, 57, 58, 59, 60, 61, 62, 63, 64, 65

def mfma(d, sa, sb, c=None):
    cc = f"v[{d}:{d+15}]" if c is None else c
    a(f"v_mfma_f32_32x32x16_bf16 v[{d}:{d+15}], v[{sa}:{sa+3}], v[{sb}:{sb+3}], {cc}")
def mfma16(d, sa, sb, c=None):
    cc = f"v[{d}:{d+3}]" if c is None else c
    a(f"v_mfma_f32_16x16x32_bf16 v[{d}:{d+3}], v[{sa}:{sa+3}], v[{sb}:{sb+3}], {cc}")
def tr(r, addr, off):
    a(f"ds_read_b64_tr_b16 v[{r}:{r+1}], v{addr} offset:{off}")
def phi_ops(acc, n, tmp, pk=False):
    ops = []
    if pk:
        for r in range(0, n, 2):
            ops.append(f"v_pk_fma_f32 v[{tmp+r}:{tmp+r+1}], v[{acc+r}:{acc+r+1}], s[{SLG}:{SLG+1}], s[{SLG}:{SLG+1}] neg_lo:[0,0,1] neg_hi:[0,0,1]")
    else:
        for r in range(n):
            ops.append(f"v_fma_f32 v{tmp+r}, v{acc+r}, s{SLG}, -s{SLG}")
    for r in range(n):
        ops.append(f"v_exp_f32 v{tmp+r}, v{tmp+r} clamp")
        if r >= 2:
            ops.append(f"v_max_f32 v{acc+r-2}, v{acc+r-2}, v{tmp+r-2}")
    ops.append(f"v_max_f32 v{acc+n-2}, v{acc+n-2}, v{tmp+n-2}")
    ops.append(f"v_max_f32 v{acc+n-1}, v{acc+n-1}, v{tmp+n-1}")
    if pk:
        for r in range(0, n, 2):
            ops.append(f"v_pk_add_f32 v[{acc+r}:{acc+r+1}], v[{acc+r}:{acc+r+1}], s[{SEP}:{SEP+1}]")
    else:
        for r in range(n):
            ops.append(f"v_add_f32 v{acc+r}, s{SEP}, v{acc+r}")
    for r in range(n // 2):
        ops.append(f"v_cvt_pk_bf16_f32 v{acc+r}, v{acc+2*r}, v{acc+2*r+1}")
    return ops
def spin(label, body, cnt, sleep=None, mult=1):
    a(f"s_mov_b32 s{cnt}, 0\n{label}_top:")
    a(body)
    a(f"s_cbranch_vccz {label}_done")
    if sleep: a(f"s_sleep {sleep}")
    a(f"s_add_u32 s{cnt}, s{cnt}, 1\ns_cmp_lt_u32 s{cnt}, {SPIN*mult}\ns_cbranch_scc1 {label}_top")
    a(f"{label}_done:")
def sspin(label, body, cnt, sleep=None):
    a(f"s_mov_b32 s{cnt}, 0\n{label}_top:")
    a(body)
    a(f"s_cbranch_scc1 {label}_done")
    if sleep: a(f"s_sleep {sleep}")
    a(f"s_add_u32 s{cnt}, s{cnt}, 1\ns_cmp_lt_u32 s{cnt}, {SPIN}\ns_cbranch_scc1 {label}_top")
    a(f"{label}_done:")
rare = []
def lds_check(label, vtmp, vaddr, off, val, cnt):
    a(f"v_cmp_ne_u32 vcc, {val}, v{vtmp}\ns_cbranch_vccnz {label}\n{label}_done:")
    rare.append(f"""{label}:
s_mov_b32 s{cnt}, 0
{label}_top:
ds_read_b32 v{vtmp}, v{vaddr} offset:{off}
s_waitcnt lgkmcnt(0)
v_cmp_ne_u32 vcc, {val}, v{vtmp}
s_cbranch_vccz {label}_done
s_add_u32 s{cnt}, s{cnt}, 1
s_cmp_lt_u32 s{cnt}, {SPIN*8}
s_cbranch_scc1 {label}_top
s_branch {label}_done""")
def lds_add(vaddr, vone, off):
    a(f"s_mov_b64 exec, 1\nds_add_u32 v{vaddr}, v{vone} offset:{off}\ns_mov_b64 exec, -1")
def dma(voff, sr, soff, off, tag, vmq, extra=""):
    o = f"offset:{off} " if off else ""
    a(f"buffer_load_dwordx4 v{voff}, s[{sr}:{sr+3}], s{soff} offen {o}{extra}lds")
    vmq.issue(tag)

st = Stamper()
st()
a(f"""
s_load_dwordx16 s[4:19], s[0:1], 0
s_load_dwordx4 s[20:23], s[0:1], 64
s_cmp_ge_u32 s2, 256
s_cbranch_scc1 Lend
v_lshrrev_b32 v20, 6, v0
v_and_b32 v1, 63, v0
v_readfirstlane_b32 s{WV}, v20
s_and_b32 s{T0}, s2, 7
s_lshr_b32 s{T1}, s2, 3
s_and_b32 s{CBK}, s{T1}, 7
s_lshr_b32 s{T2}, s{T1}, 3
s_and_b32 s{RB}, s{T0}, 1
s_lshl_b32 s{RB}, s{RB}, 3
s_add_u32 s{RB}, s{RB}, s{CBK}
s_lshr_b32 s{CB}, s{T0}, 1
s_lshl_b32 s{CB}, s{CB}, 2
s_add_u32 s{CB}, s{CB}, s{T2}
s_lshl_b32 s{RT}, s{T0}, 2
s_add_u32 s{RT}, s{RT}, s{T2}
s_lshl_b32 s{ROT3}, s{T2}, 1
s_add_u32 s{ROT3}, s{ROT3}, s{CBK}
""")
if "m84" in opts:
    a(f"""s_lshr_b32 s{RT}, s{T0}, 1
s_lshl_b32 s{RT}, s{RT}, 3
s_add_u32 s{RT}, s{RT}, s{CBK}
s_and_b32 s3, s{T0}, 1
s_lshl_b32 s3, s3, 2
s_add_u32 s3, s3, s{T2}""")
else:
    a(f"s_mov_b32 s3, s{CBK}")
a(f"""
s_and_b32 s{WL}, s{WV}, 3
s_and_b32 s{RW}, s{WL}, 1
s_add_u32 s{RW}, s{RW}, s{ROT3}
s_mov_b32 s{ONE}, 1
s_cmp_lt_u32 s{WV}, 4
s_cbranch_scc1 Lx
""")

vm = VM()
sty = Stamper(1)
if ROTMODE == "8":
    a(f"s_mov_b32 s{ROT}, s{ROT3}")
elif ROTMODE == "0":
    a(f"s_mov_b32 s{ROT}, 0")
elif ROTMODE == "2":
    a(f"s_add_u32 s{ROT}, s{CBK}, s{T2}\ns_lshl_b32 s{ROT}, s{ROT}, 2")
elif ROTMODE == "4":
    a(f"s_add_u32 s{ROT}, s{CBK}, s{T2}\ns_lshl_b32 s{ROT}, s{ROT}, 1")
a(f"""
v_lshrrev_b32 v20, 3, v1
v_and_b32 v21, 7, v1
v_lshrrev_b32 v22, 4, v1
v_xor_b32 v23, v21, v22
v_lshlrev_b32 v2, 10, v20
v_lshl_add_u32 v2, v23, 4, v2
v_xor_b32 v3, 64, v2
v_add_u32 v3, {8192-1024}, v3
v_add_u32 v4, {2*(8192-1024)}, v2
v_add_u32 v5, {2*(8192-1024)}, v3
v_and_b32 v23, 1, v22
v_lshlrev_b32 v24, 1, v23
v_xor_b32 v24, v21, v24
v_mul_u32_u24 v25, 3072, v20
v_lshl_add_u32 v6, v24, 4, v25
v_xor_b32 v7, 64, v6
v_add_u32 v7, {8*3072-1024}, v7
v_add_u32 v10, 1024, v6
v_add_u32 v11, 1024, v7
s_lshl_b32 s{XS}, s{RB}, 17
s_lshl_b32 s{T0}, s{WL}, 15
s_add_u32 s{XS}, s{XS}, s{T0}
s_and_b32 s{WSB}, s{CB}, 7
s_lshl_b32 s{WSB}, s{WSB}, 7
s_mul_i32 s66, s{WL}, {16*3072}
s_add_u32 s66, s66, s{WSB}
s_lshl_b32 s67, s{WL}, 12
s_mov_b32 s{X+2}, {2048*1024}
s_mov_b32 s{X+3}, 0x20000
s_mov_b32 s{W+2}, {512*3072}
s_mov_b32 s{W+3}, 0x20000
""")
def chunk_setup(c):
    slot = SL[c % 4]
    a(f"s_add_u32 s{T0}, s{ROT}, {c}")
    a(f"s_and_b32 s{T0}, s{T0}, 7")
    a(f"s_lshl_b32 s{T1}, s{T0}, 7")
    a(f"s_add_u32 m0, s67, {slot}")
    a(f"s_add_u32 s{T1}, s{T1}, s{XS}")
def issue_chunk(c, setup=True):
    slot = SL[c % 4]
    if setup: chunk_setup(c)
    for q in range(4):
        dma(2 + q, X, T1, q * 1024, f"c{c}", vm)
        if q == 0:
            a(f"s_mul_i32 s{T2}, s{T0}, {64*3072}")
        if q == 1:
            a(f"s_add_u32 s{T2}, s{T2}, s66")
    a(f"s_add_u32 m0, s67, {slot+16384}")
    a("s_nop 0")
    dma(10, W, T2, 0, f"c{c}", vm)
    dma(11, W, T2, 1024, f"c{c}", vm)
    dma(6, W, T2, 2048, f"c{c}", vm)
    dma(7, W, T2, 3072, f"c{c}", vm)
def issue_wq(h):
    a(f"s_add_u32 s{T0}, s{ROT}, s{WL}")
    a(f"s_add_u32 s{T0}, s{T0}, {4*h}")
    a(f"s_and_b32 s{T0}, s{T0}, 7")
    a(f"s_mul_i32 s{T2}, s{T0}, {64*3072}")
    a(f"s_lshl_b32 s{T1}, s67, 1")
    a(f"s_add_u32 m0, s{T1}, {WQ+h*32768}")
    a(f"s_add_u32 s{T2}, s{T2}, s{WSB}")
    for q in range(4):
        dma(26 + q, W, T2, q * 1024, f"q{h}", vm)
    a(f"s_add_u32 m0, s{T1}, {WQ+h*32768+4096}")
    a(f"s_add_u32 s{T2}, s{T2}, {32*3072}")
    for q in range(4):
        dma(26 + q, W, T2, q * 1024, f"q{h}", vm)
chunk_setup(0)
a(f"""
s_cmp_ge_u32 s{CB}, 8
s_waitcnt lgkmcnt(0)
s_mov_b32 s{X}, s4
s_mov_b32 s{X+1}, s5
s_cselect_b32 s{W}, s12, s6
s_cselect_b32 s{W+1}, s13, s7
""")
issue_chunk(0, setup=False)
sty()
a(f"""
v_lshlrev_b32 v24, 2, v23
v_xor_b32 v24, v21, v24
v_lshl_add_u32 v26, v24, 4, v25
v_add_u32 v27, {8*3072-1024}, v26
v_add_u32 v28, {2*(8*3072-1024)}, v26
v_add_u32 v29, {3*(8*3072-1024)}, v26
v_lshlrev_b32 v12, 10, v20
v_lshl_add_u32 v12, v24, 4, v12
v_add_u32 v13, {8192-1024}, v12
v_add_u32 v14, {2*(8192-1024)}, v12
v_add_u32 v15, {3*(8192-1024)}, v12
s_lshl_b32 s69, s3, 7
s_and_b32 s{T0}, s{WL}, 1
s_lshl_b32 s{T1}, s{T0}, 6
s_add_u32 s{WOS}, s69, s{T1}
s_lshl_b32 s68, s{WL}, 14
v_lshrrev_b32 v8, 5, v1
v_bfe_u32 v17, v1, 2, 2
v_lshl_add_u32 v16, v8, 2, v17
v_lshlrev_b32 v16, 7, v16
v_lshl_add_u32 v16, v23, 5, v16
v_and_b32 v24, 3, v1
v_lshl_add_u32 v16, v24, 3, v16
v_bfe_u32 v17, v1, 3, 1
v_xor_b32 v25, s{T0}, v17
v_lshl_add_u32 v16, v25, 6, v16
s_add_u32 s{T1}, s68, {STG}
v_add_u32 v16, s{T1}, v16
v_xor_b32 v18, 64, v16
v_lshlrev_b32 v9, 8, v22
v_lshl_add_u32 v9, v24, 2, v9
v_bfe_u32 v25, v1, 2, 1
v_lshl_add_u32 v9, v25, 5, v9
v_lshl_add_u32 v9, v17, 4, v9
v_lshlrev_b32 v19, 4, v1
v_mov_b32 v30, {MISC}
v_mov_b32 v31, 1
s_lshl_b32 s{T1}, s{WL}, 11
s_add_u32 s{T1}, s{T1}, {KVP}
v_add_u32 v20, s{T1}, v19
v_lshl_add_u32 v21, v1, 2, s{T1}
s_cmp_ge_u32 s{WL}, 2
s_cselect_b32 s8, s14, s8
s_cselect_b32 s9, s15, s9
""")
srd(a, WO, 8, 512 * 1024)
a(f"s_and_b32 s15, s{WL}, 1\ns_lshl_b32 s14, s15, 15\ns_add_u32 s14, s14, s69\ns_lshl_b32 s15, s15, 12\ns_add_u32 s15, s15, s68")
srd(a, WS, 22, WS_BYTES)
srd(a, OUT, 18, 2048 * 1024)
issue_chunk(1)
a("global_load_dwordx4 v[40:43], v19, s[16:17]")
vm.issue("gw")
for i in range(8):
    vm.wait(f"c{i}")
    a("s_barrier")
    if i in (0, 3, 7): sty()
    if i == 6: a(f"s_load_dword s{T4}, s[20:21], 0")
    if i + 2 < 8:
        issue_chunk(i + 2)
    else:
        issue_wq(i - 6)
a(f"""
s_lshl_b32 s{T0}, s{CB}, 11
s_add_u32 s{T0}, s{T0}, s{XS}
buffer_load_dwordx4 v[48:51], v19, s[{X}:{X+3}], s{T0} offen
buffer_load_dwordx4 v[52:55], v19, s[{X}:{X+3}], s{T0} offen offset:1024
""")
for _ in range(2): vm.issue("gate")
def issue_wo(sg, part=(0, 1)):
    a(f"s_add_u32 s{T2}, s{RW}, {2*sg}")
    a(f"s_and_b32 s{T2}, s{T2}, 7")
    a(f"s_lshl_b32 s{T2}, s{T2}, 16")
    a(f"s_add_u32 m0, s15, {STG + (sg % 2) * 8192}")
    a(f"s_add_u32 s{T2}, s{T2}, s14")
    if 0 in part:
        for q in range(4):
            dma(12 + q, WO, T2, q * 1024, f"wo{sg}", vm)
    if 1 in part:
        a(f"s_xor_b32 m0, m0, 4096")
        a(f"s_xor_b32 s{T2}, s{T2}, 32768")
        for q in range(4):
            dma(12 + q, WO, T2, q * 1024, f"wo{sg}", vm)
spin("Lad", "ds_read_b32 v17, v30 offset:12\ns_waitcnt lgkmcnt(0)\nv_cmp_gt_u32 vcc, 4, v17", T3, sleep=1, mult=8)
if EARLY in (1, 2, 4, 5): issue_wo(0, part=(0,))
vm.wait("q1")
lds_add(30, 31, 0)
if EARLY == 1: issue_wo(0, part=(1,))
a(f"""
s_lshr_b32 s66, s{T0}, 8
s_add_u32 s66, s66, {GBUF}
s_lshl_b32 s{T0}, s{CB}, 2
s_add_u32 s{T0}, s{T0}, s{WL}
s_mul_i32 s{XS}, s{T0}, {KVSTR}
s_lshl_b32 s{WSB}, s{T0}, 10
s_add_u32 s{WSB}, s{WSB}, {KVCNT}
v_mov_b32 v44, 0
v_mov_b32 v45, 0
s_waitcnt lgkmcnt(0)
s_cmp_ge_u32 s{T4}, 64
s_cbranch_scc0 Lzc
Lzc_done:
""")
rare.append(f"""Lzc:
s_mov_b32 s{T3}, 0
Lzc_top:
s_load_dword s{T4}, s[20:21], 0 glc
s_waitcnt lgkmcnt(0)
s_cmp_ge_u32 s{T4}, 64
s_cbranch_scc1 Lzc_done
s_sleep 4
s_add_u32 s{T3}, s{T3}, 1
s_cmp_lt_u32 s{T3}, {SPIN}
s_cbranch_scc1 Lzc_top
s_branch Lzc_done""")
sty()
vm.wait("gate")
for k in range(4):
    a(f"v_dot2c_f32_bf16 v44, v{48+k}, v{40+k}")
    a(f"v_dot2c_f32_bf16 v45, v{52+k}, v{40+k}")
a(f"""
s_nop 2
v_permlane32_swap_b32 v44, v45
s_nop 1
v_add_f32 v44, v44, v45
s_nop 1
v_add_f32_dpp v44, v44, v44 row_ror:8 row_mask:0xf bank_mask:0xf
s_nop 1
v_add_f32_dpp v44, v44, v44 row_ror:4 row_mask:0xf bank_mask:0xf
s_nop 1
v_add_f32_dpp v44, v44, v44 row_ror:2 row_mask:0xf bank_mask:0xf
s_nop 1
v_add_f32_dpp v44, v44, v44 row_ror:1 row_mask:0xf bank_mask:0xf
v_mov_b32 v45, v44
s_nop 1
v_permlane16_swap_b32 v44, v45
s_nop 1
v_add_f32 v44, v44, v45
v_mul_f32 v44, 0xbfb8aa3b, v44
v_exp_f32 v44, v44
v_lshlrev_b32 v45, 2, v8
v_add_f32 v44, 1.0, v44
v_rcp_f32 v44, v44
""")
a("s_setprio 2")
spin("Lkp", "ds_read_b32 v36, v21 offset:1024\nds_read_b128 v[32:35], v20\ns_waitcnt lgkmcnt(0)\nv_cmp_eq_u32 vcc, 0, v36", T3, sleep=1, mult=8)
for r in range(4):
    a(f"buffer_atomic_add_f32 v{32+r}, v9, s[{WS}:{WS+3}], s{XS} offen offset:{r*64}")
    vm.issue("atom")
a(f"""
s_mov_b64 exec, 0xffff
buffer_atomic_add_f32 v36, v9, s[{WS}:{WS+3}], s{XS} offen offset:1024
s_mov_b64 exec, -1
""")
vm.issue("atom")
a(f"""
s_mov_b32 exec_lo, 1
s_mov_b32 exec_hi, 1
buffer_store_dword v44, v45, s[{WS}:{WS+3}], s66 offen sc1
s_mov_b64 exec, -1
""")
vm.issue("gst")
sty()
if EARLY == 0:
    lds_add(30, 31, 12)
    spin("Lai", "ds_read_b32 v17, v30 offset:12\ns_waitcnt lgkmcnt(0)\nv_cmp_gt_u32 vcc, 8, v17", T3, mult=8)
    issue_wo(0)
if EARLY in (4, 5): issue_wo(0, part=(1,))
if EARLY == 5: issue_wo(1, part=(0,))
vm.wait("atom")
a(f"s_atomic_add s{ONE}, s[22:23], s{WSB}")
a("s_setprio 0")
sty()
if EARLY == 2: issue_wo(0, part=(1,))
if EARLY == 3: issue_wo(0)
issue_wo(1, part=((1,) if EARLY == 5 else (0, 1)))
WR = 128
def wreg(sg, hl, c): return WR + ((sg * 4 + hl) * 2 + c) * 4
def wo_tr(sg):
    vm.wait(f"wo{sg}")
    for hl in range(4):
        for c in range(2):
            r = wreg(sg, hl, c)
            off = (sg % 2) * 8192 + hl * 2048
            tr(r, 16 + 2 * c, off); tr(r + 2, 16 + 2 * c, off + 1024)
for sg in range(2):
    wo_tr(sg)
    a("s_waitcnt lgkmcnt(0)")
    issue_wo(sg + 2)
sty()
a(f"""
v_and_b32 v2, 31, v1
v_min_u32 v3, 16, v2
v_lshlrev_b32 v5, 5, v8
v_lshl_add_u32 v3, v3, 6, v5
s_lshl_b32 s{T0}, s{WL}, 10
s_add_u32 s{T0}, s{T0}, {KVF}
v_add_u32 v7, s{T0}, v19
""")
sspin("Lpollkv", f"s_load_dword s{T4}, s[22:23], s{WSB} glc\ns_waitcnt lgkmcnt(0)\ns_cmp_eq_u32 s{T4}, 16", T3, sleep=int(opts.get("ksleep", 1)))
a(f"""
buffer_load_dwordx4 v[32:35], v3, s[{WS}:{WS+3}], s{XS} offen sc1
buffer_load_dwordx4 v[36:39], v3, s[{WS}:{WS+3}], s{XS} offen offset:16 sc1
; P3 addressing
s_lshl_b32 s{T0}, s{WL}, 15
v_add_u32 v11, s{T0}, v19
v_xor_b32 v12, 0x8000, v11
v_xor_b32 v13, 0x10000, v11
v_xor_b32 v14, 0x18000, v11
v_lshlrev_b32 v10, 10, v2
v_lshl_add_u32 v10, v8, 4, v10
v_lshlrev_b32 v2, 2, v2
s_lshl_b32 s{T1}, s{RT}, 1
s_lshr_b32 s{T0}, s{WL}, 1
s_add_u32 s{T1}, s{T1}, s{T0}
s_lshl_b32 s66, s{T1}, 7
s_add_u32 s66, s66, {GBUF}
s_lshl_b32 s{T2}, s{T1}, 10
s_add_u32 s{T2}, s{T2}, {OCNT}
s_lshl_b32 s{T1}, s{T1}, 15
s_add_u32 s{T1}, s{T1}, s{WOS}
s_waitcnt vmcnt(0)
v_cvt_pk_bf16_f32 v32, v32, v33
v_cvt_pk_bf16_f32 v33, v34, v35
v_cvt_pk_bf16_f32 v34, v36, v37
v_cvt_pk_bf16_f32 v35, v38, v39
ds_write_b128 v7, v[32:35]
""")
lds_add(30, 31, 4)
sty()
wo_tr(2); wo_tr(3)
a(f"""
s_waitcnt lgkmcnt(0)
s_bitcmp1_b32 s{WL}, 0
s_cbranch_scc1 Lpollo_done
""")
if "ovec" in opts:
    a("v_mov_b32 v6, 0\ns_sleep %s\ns_mov_b64 exec, 1" % opts["ovec"])
    spin("Lpollo", f"buffer_load_dword v17, v6, s[{WS}:{WS+3}], s{T2} offen sc1\ns_waitcnt vmcnt(0)\nv_cmp_ne_u32 vcc, 16, v17", T3, sleep=int(opts.get("osleep", 1)))
    a("s_mov_b64 exec, -1")
else:
    sspin("Lpollo", f"s_load_dword s{T4}, s[22:23], s{T2} glc\ns_waitcnt lgkmcnt(0)\ns_cmp_eq_u32 s{T4}, 16", T3, sleep=int(opts.get("osleep", 1)))
sty()
a("s_barrier")
a(f"buffer_load_dword v15, v2, s[{WS}:{WS+3}], s66 offen sc1")
ACC = [32, 48, 64, 80]
OB = 96
lg = LG()
def rdO(sg, rg, hl):
    r = OB + (rg * 4 + hl) * 4
    a(f"ds_read_b128 v[{r}:{r+3}], v11 offset:{sg*8192 + rg*4096 + hl*1024}")
    lg.issue(f"O{sg}{rg}{hl}")
def mfO(sg, rg, hl, c, wait=True):
    if wait: lg.wait(f"O{sg}{rg}{hl}")
    mfma(ACC[rg * 2 + c], wreg(sg, hl, c), OB + (rg * 4 + hl) * 4, "0" if (sg == 0 and hl == 0) else None)
order = [(1, 0), (1, 1), (1, 2), (1, 3), (0, 0), (0, 1), (0, 2), (0, 3)]
pend = []
for sg in range(4):
    a("s_barrier")
    if sg in (0,): sty()
    if sg < 3:
        for (rg, hl) in order:
            rdO(sg, rg, hl)
            pend.append((sg, rg, hl))
            if len(pend) > 2:
                p = pend.pop(0)
                mfO(*p, 0); mfO(*p, 1, wait=False)
    else:
        for (rg, hl) in order[:4]:
            rdO(sg, rg, hl)
        for k in range(2):
            p = pend.pop(0)
            mfO(*p, 0); mfO(*p, 1, wait=False)
            rdO(sg, *order[4 + k])
        rdO(sg, *order[6]); rdO(sg, *order[7])
        def wr(t, k):
            a(f"ds_write_b128 v11, v[{ACC[t]+4*k}:{ACC[t]+4*k+3}] offset:{(t-1)*4096 + k*1024}")
            lg.issue("W")
        for hl in range(4): mfO(3, 1, hl, 1)
        for hl in range(4): mfO(3, 1, hl, 0, wait=False)
        a(f"""s_waitcnt vmcnt(0)
v_sub_f32 v16, 1.0, v15
s_cmp_ge_u32 s{WL}, 2
s_cselect_b64 vcc, -1, 0
v_cndmask_b32 v18, v15, v16, vcc
v_cndmask_b32 v16, v16, v15, vcc
s_nop 0""")
        for hl in range(4):
            mfO(3, 0, hl, 1); wr(3, hl)
        for hl in range(4):
            mfO(3, 0, hl, 0, wait=False); wr(2, hl)
        a("s_nop 3")
        for k in range(4): wr(1, k)
sty()
a("s_waitcnt lgkmcnt(0)\ns_barrier")
for t, vr in ((1, 12), (2, 13), (3, 14)):
    for k in range(4):
        a(f"ds_read_b128 v[{ACC[t]+4*k}:{ACC[t]+4*k+3}], v{vr} offset:{(t-1)*4096 + k*1024}")
a("s_waitcnt lgkmcnt(8)")
for r in range(0, 16, 2):
    a(f"v_pk_add_f32 v[{32+r}:{33+r}], v[{32+r}:{33+r}], v[{48+r}:{49+r}]")
for r in range(0, 16, 2):
    a(f"v_pk_mul_f32 v[{32+r}:{33+r}], v[{32+r}:{33+r}], v[18:19] op_sel_hi:[1,0]")
a("s_waitcnt lgkmcnt(0)")
for r in range(0, 16, 2):
    a(f"v_pk_add_f32 v[{64+r}:{65+r}], v[{64+r}:{65+r}], v[{80+r}:{81+r}]")
for r in range(0, 16, 2):
    a(f"v_pk_fma_f32 v[{32+r}:{33+r}], v[{64+r}:{65+r}], v[16:17], v[{32+r}:{33+r}] op_sel_hi:[1,0,1]")
for r in range(8):
    a(f"v_cvt_pk_bf16_f32 v{32+r}, v{32+2*r}, v{33+2*r}")
a(f"""
s_nop 1
v_permlane32_swap_b32 v32, v34
v_permlane32_swap_b32 v33, v35
v_permlane32_swap_b32 v36, v38
v_permlane32_swap_b32 v37, v39
buffer_store_dwordx4 v[32:35], v10, s[{OUT}:{OUT+3}], s{T1} offen
buffer_store_dwordx4 v[36:39], v10, s[{OUT}:{OUT+3}], s{T1} offen offset:32
""")
if STAMPS:
    sty()
    a("s_waitcnt vmcnt(0)")
    while sty.n < STAMPS: sty()
    a("s_branch Lstamps")
else:
    a("s_endpgm")

vm = VM()
stx = Stamper(1)
a("Lx:")
a(f"""
s_getpc_b64 s[66:67]
Lpc0:
s_sub_u32 s66, s66, Lpc0-{NAME}_kernel
s_subb_u32 s67, s67, 0
s_and_b32 s{T0}, s{CBK}, 3
s_lshl_b32 s{T0}, s{T0}, 2
s_add_u32 s{T0}, s{T0}, s{WL}
s_lshl_b32 s{T0}, s{T0}, 10
v_lshl_add_u32 v140, v1, 7, s{T0}
v_min_u32 v140, Lcode_end-{NAME}_kernel-4, v140
s_mov_b64 exec, 0xff
global_load_dword v252, v140, s[66:67]
s_mov_b64 exec, -1
v_lshlrev_b32 v14, 4, v1
v_mov_b32 v160, 0
v_mov_b32 v161, 0
v_mov_b32 v162, 0
v_mov_b32 v163, 0
v_mov_b32 v12, {MISC}
v_mov_b32 v13, 1
s_lshl_b32 s{T1}, s{WL}, 11
s_add_u32 s{T1}, s{T1}, {KVP}
v_add_u32 v5, s{T1}, v14
v_lshl_add_u32 v15, v1, 2, s{T1}
ds_write_b128 v12, v[160:163]
ds_write_b32 v15, v160 offset:1024
s_mov_b32 s{WS+2}, {WS_BYTES}
s_mov_b32 s{WS+3}, 0x20000
s_cmp_eq_u32 s{RB}, s{CB}
s_waitcnt lgkmcnt(0)
s_mov_b32 s{WS}, s22
s_mov_b32 s{WS+1}, s23
s_cbranch_scc0 Lnozero
s_lshl_b32 s{T0}, s{CB}, 2
s_add_u32 s{T0}, s{T0}, s{WL}
s_mul_i32 s{T1}, s{T0}, {KVSTR}
buffer_store_dwordx4 v[160:163], v14, s[{WS}:{WS+3}], s{T1} offen sc1
s_lshl_b32 s{T2}, s{T0}, 10
s_add_u32 s{T3}, s{T2}, {OCNT}
s_add_u32 s{T2}, s{T2}, {KVCNT}
s_mov_b64 exec, 0xf
buffer_store_dwordx4 v[160:163], v14, s[{WS}:{WS+3}], s{T2} offen sc1
buffer_store_dwordx4 v[160:163], v14, s[{WS}:{WS+3}], s{T3} offen sc1
buffer_store_dwordx4 v[160:163], v14, s[{WS}:{WS+3}], s{T1} offen offset:1024 sc1
s_mov_b64 exec, -1
Lnozero:
""")
if "ta" in opts:
    d = int(opts["ta"])
    a(f"""
{'s_sleep %d' % d if d > 1 else ''}
s_cmp_ge_u32 s{CB}, 8
s_cselect_b32 s6, s12, s6
s_cselect_b32 s7, s13, s7
s_cmp_eq_u32 s{WL}, 0
s_cbranch_scc0 Lta1
s_lshl_b32 s{T0}, s{RB}, 17
s_lshl_b32 s{T1}, s{CB}, 13
s_add_u32 s{T0}, s{T0}, s{T1}
v_lshl_add_u32 v142, v1, 7, s{T0}
global_load_dword v253, v142, s[4:5]
s_branch Lta_done
Lta1:
s_cmp_eq_u32 s{WL}, 3
s_cbranch_scc1 Lta3
s_mul_i32 s{T0}, s{RB}, {32*3072}
s_and_b32 s{T1}, s{CB}, 7
s_lshl_b32 s{T1}, s{T1}, 7
s_add_u32 s{T0}, s{T0}, s{T1}
s_sub_u32 s{T1}, s{WL}, 1
s_lshl_b32 s{T1}, s{T1}, 11
s_add_u32 s{T0}, s{T0}, s{T1}
v_and_b32 v142, 31, v1
v_mul_u32_u24 v142, 3072, v142
v_lshrrev_b32 v143, 5, v1
v_lshl_add_u32 v142, v143, 10, v142
v_add_u32 v142, s{T0}, v142
s_cmp_eq_u32 s{WL}, 2
s_cselect_b32 exec_hi, 0, -1
global_load_dword v253, v142, s[6:7]
s_branch Lta_done
Lta3:
s_lshl_b32 s{T0}, s{RT}, 14
s_lshl_b32 s{T1}, s{CBK}, 7
s_add_u32 s{T0}, s{T0}, s{T1}
v_lshl_add_u32 v142, v1, 10, s{T0}
s_mov_b64 exec, 0xffff
global_load_dword v253, v142, s[8:9]
global_load_dword v254, v142, s[14:15]
Lta_done:
s_mov_b64 exec, -1
""")
a(f"""
s_mov_b32 s{SLG}, 0x{LOG2E:x}
s_mov_b32 s{SLG+1}, 0x{LOG2E:x}
s_mov_b32 s{SEP}, 0x{EPS:x}
s_mov_b32 s{SEP+1}, 0x{EPS:x}
v_and_b32 v20, 15, v1
v_lshrrev_b32 v21, 4, v1
v_lshrrev_b32 v22, 1, v20
v_xor_b32 v22, v21, v22
v_lshlrev_b32 v2, 7, v20
v_lshl_add_u32 v2, v22, 4, v2
v_xor_b32 v3, 64, v2
; W base v4
v_lshrrev_b32 v24, 5, v1
v_lshlrev_b32 v4, 12, v24
v_and_b32 v25, 1, v21
v_lshl_add_u32 v4, v25, 10, v4
v_lshrrev_b32 v26, 2, v20
v_lshl_add_u32 v4, v26, 7, v4
v_bfe_u32 v23, v1, 3, 2
v_xor_b32 v23, s{WL}, v23
v_lshl_add_u32 v4, v23, 5, v4
v_and_b32 v23, 3, v1
v_lshl_add_u32 v4, v23, 3, v4
v_add_u32 v4, 16384, v4
v_bfe_u32 v22, v1, 3, 1
v_lshl_add_u32 v10, v24, 3, v26
v_lshlrev_b32 v10, 7, v10
v_lshl_add_u32 v10, v25, 5, v10
v_lshl_add_u32 v10, v23, 3, v10
v_lshl_add_u32 v10, v22, 6, v10
v_xor_b32 v11, 64, v10
v_and_b32 v20, 31, v1
s_lshl_b32 s{T0}, s{WL}, 12
v_lshl_add_u32 v6, v20, 7, s{T0}
v_bfe_u32 v25, v1, 1, 3
v_xor_b32 v25, v24, v25
v_lshl_add_u32 v6, v25, 4, v6
v_xor_b32 v7, 32, v6
v_xor_b32 v8, 64, v6
v_xor_b32 v9, 96, v6
s_lshl_b32 s{T1}, s{RB}, 2
s_add_u32 s{T1}, s{T1}, s{WL}
s_lshl_b32 s68, s{T1}, 16
s_lshl_b32 s{T3}, s{CB}, 12
s_add_u32 s68, s68, s{T3}
s_add_u32 s68, s68, {OBUF}
s_lshl_b32 s69, s{T1}, 10
s_add_u32 s69, s69, {OCNT}
s_lshr_b32 s{T2}, s{WL}, 1
s_lshl_b32 s66, s{RT}, 1
s_add_u32 s66, s66, s{T2}
s_lshl_b32 s66, s66, 16
s_lshl_b32 s{T2}, s{T2}, 15
s_add_u32 s66, s66, s{T2}
s_add_u32 s66, s66, {OBUF}
s_lshl_b32 s67, s{WL}, 15
""")
RG, BF, AK, AV, XR = 16, 48, 64, 96, 128
stx()
lg = LG()
for i in range(8):
    so = (i & 1) * 32768
    a("s_barrier")
    if i in (0, 7): stx()
    for sidx in range(16):
        n = (sidx - LAGA) % 16
        ci = i if sidx >= LAGA else i - 1
        ks = n >> 3; rt = n & 7
        em = ci >= 0
        first = (ci == 0 and ks == 0)
        if em:
            tags = [f"X{ci}_{n}"] + ([f"B{ci}_{ks}0", f"B{ci}_{ks}1"] if rt == 0 else [])
            if sidx % 2 == 0 and rt != 7:
                tags.append(f"X{ci}_{n+1}")
            if sidx % 2 == 0 or rt == 0:
                lg.wait(*tags)
            mfma16(AK + 4 * rt, RG + 4 * (n % 8), BF + ks * 8, "1.0" if first else None)
        def rdB(k_, sec, u):
            tr(BF + k_ * 8 + sec * 4 + 2 * u, 4, so + k_ * 8192 + sec * 2048 + u * 512)
            lg.issue(f"B{i}_{k_}{sec}")
        if sidx < 2:
            rdB(0, sidx, 0); rdB(0, sidx, 1)
        elif 6 <= sidx < 10:
            rdB(1, (sidx - 6) >> 1, sidx & 1)
        elif sidx in (10, 11, 12, 13):
            t = sidx - 10
            xr = XR + (4 * i + t) * 4
            a(f"ds_read_b128 v[{xr}:{xr+3}], v{6+t} offset:{so}")
            lg.issue("XR")
        elif (i & 1) and i < 7 and sidx == 14:
            a("v_xor_b32 v2, 0x10000, v2\nv_xor_b32 v4, 0x10000, v4")
        elif i > 0 and (i & 1) == 0 and sidx in (2, 3):
            k = 6 + 2 * (sidx - 2)
            a(f"v_xor_b32 v{k}, 0x10000, v{k}\nv_xor_b32 v{k+1}, 0x10000, v{k+1}")
        elif "tb" in opts and i == int(opts["tb"]) and sidx == 5:
            a("s_branch Ltb\nLtb_done:")
            rare.append(f"""Ltb:
s_cmp_eq_u32 s{WL}, 1
s_cbranch_scc1 Ltb1
s_cmp_eq_u32 s{WL}, 3
s_cbranch_scc1 Ltb3
s_cmp_eq_u32 s{WL}, 0
s_cbranch_scc0 Ltb_done
v_lshlrev_b32 v255, 7, v1
s_mov_b64 exec, 0xff
global_load_dword v253, v255, s[16:17]
s_branch Ltb_fin
Ltb1:
s_cmp_ge_u32 s{CB}, 8
s_cselect_b32 s6, s12, s6
s_cselect_b32 s7, s13, s7
s_mul_i32 s{T0}, s{RB}, {32*3072}
s_and_b32 s{T1}, s{CB}, 7
s_lshl_b32 s{T1}, s{T1}, 7
s_add_u32 s{T0}, s{T0}, s{T1}
v_mul_u32_u24 v255, 3072, v1
v_add_u32 v255, s{T0}, v255
s_mov_b32 exec_hi, 0
global_load_dword v253, v255, s[6:7]
s_branch Ltb_fin
Ltb3:
s_lshl_b32 s{T0}, s{RT}, 14
s_lshl_b32 s{T1}, s{CBK}, 7
s_add_u32 s{T0}, s{T0}, s{T1}
v_lshl_add_u32 v255, v1, 10, s{T0}
s_mov_b64 exec, 0xffff
global_load_dword v253, v255, s[8:9]
global_load_dword v254, v255, s[14:15]
Ltb_fin:
s_mov_b64 exec, -1
s_branch Ltb_done""")
        elif i == 5 and sidx == 2:
            a("s_waitcnt vmcnt(0)")
        elif i == 1 and sidx == 2:
            a(f"s_cmp_eq_u32 s{RB}, s{CB}\ns_cbranch_scc1 Lflag\nLflag_done:")
            rare.append(f"Lflag:\ns_waitcnt vmcnt(0)\ns_atomic_add s{ONE}, s[20:21], 0\ns_branch Lflag_done")
        elif i > 0 and (i & 1) == 0 and sidx == 4:
            a("v_xor_b32 v3, 0x10000, v3")
        if em:
            mfma16(AV + 4 * rt, RG + 4 * (n % 8), BF + ks * 8 + 4, "0" if first else None)
        r = RG + 4 * (sidx % 8)
        a(f"ds_read_b128 v[{r}:{r+3}], v{2 + (sidx >> 3)} offset:{so + (sidx & 7) * 2048}")
        lg.issue(f"X{i}_{sidx}")
for n in range(16 - LAGA, 16):
    lg.wait(f"X7_{n}")
    mfma16(AK + 4 * (n & 7), RG + 4 * (n % 8), BF + 8)
lds_add(12, 13, 12)
for n in range(16 - LAGA, 16):
    mfma16(AV + 4 * (n & 7), RG + 4 * (n % 8), BF + 12)
stx()
for op in phi_ops(AK, 32, RG, pk=("nopk" not in opts)):
    a(op)
a("ds_read_b32 v2, v12")
for r in range(60, 64):
    a(f"v_mov_b32 v{r}, 0x3f803f80")
for r in range(16):
    a(f"v_cvt_pk_bf16_f32 v{AV+r}, v{AV+2*r}, v{AV+2*r+1}")
    if r % 4 == 1:
        mfma16(56, 60, AK + (r // 4) * 4, "0" if r < 4 else None)
a("s_waitcnt lgkmcnt(0)")
for p in range(4):
    mfma16(52, AV + 4 * p, AK + 4 * p, "0" if p == 0 else None)
a("s_nop 7")
a("ds_write_b128 v5, v[52:55]\nds_write_b32 v15, v56 offset:1024")
lds_check("Lq0", 2, 12, 0, 4, T3)
NB = 8
seq = [(ct, s) for ct in range(2) for s in range(32)]
lgq = LG()
def qread(n):
    ct, s = seq[n]
    r = RG + (n % NB) * 4
    off = WQ + (s // 4) * 8192 + (s % 4) * 2048
    tr(r, 10 + ct, off); tr(r + 2, 10 + ct, off + 512)
    lgq.issue(f"q{n}"); lgq.issue(f"q{n}")
PF = int(opts.get('pf', 4))
for n in range(PF):
    qread(n)
stx()
ph0 = phi_ops(64, 16, 96)
for n, (ct, s) in enumerate(seq):
    if n + PF < 64:
        qread(n + PF)
    if "w2" in opts:
        if n % 2 == 0: lgq.wait(f"q{n+1}")
    else:
        lgq.wait(f"q{n}")
    mfma(64 + 16 * ct, RG + (n % NB) * 4, XR + s * 4, "1.0" if s == 0 else None)
    if "bst" in opts and n in (15, 31, 47): stx()
    if n >= 34:
        k = 2 if n < 63 else len(ph0)
        for op in ph0[:k]:
            a(op)
        ph0 = ph0[k:]
assert not ph0
stx()
a(f"v_add_u32 v3, {KVF}, v14")
ph1 = phi_ops(80, 16, 96, pk=True)
for op in ph1[:-10]:
    a(op)
a("ds_read_b32 v2, v12 offset:4")
for op in ph1[-10:]:
    a(op)
stx()
a("s_waitcnt lgkmcnt(0)")
lds_check("Lkvw", 2, 12, 4, 4, T3)
stx()
for h in range(4):
    a(f"ds_read_b128 v[{16+4*h}:{19+4*h}], v3 offset:{h*1024}")
PQ = [64, 68, 80, 84]
DN = [192, 208, 224, 240]
for h in range(4):
    a(f"s_waitcnt lgkmcnt({3-h})")
    mfma(DN[h], 16 + 4 * h, PQ[h], "0")
a("s_nop 5")
for h in range(4):
    d = DN[h]
    a(f"v_add_f32 v{d+8}, s{SEP}, v{d+8}")
    a(f"v_rcp_f32 v{d+8}, v{d+8}")
    a("s_nop 0")
    for r in range(0, 8, 2):
        a(f"v_pk_mul_f32 v[{d+r}:{d+r+1}], v[{d+r}:{d+r+1}], v[{d+8}:{d+9}] op_sel_hi:[1,0]")
    for r in range(4):
        a(f"v_cvt_pk_bf16_f32 v{d+r}, v{d+2*r}, v{d+2*r+1}")
    a(f"buffer_store_dwordx4 v[{d}:{d+3}], v14, s[{WS}:{WS+3}], s68 offen offset:{h*1024} sc1")
stx()
vm = VM()
def o_setup(sg):
    a(f"s_add_u32 s{T2}, s{RW}, {2*sg}")
    a(f"s_and_b32 s{T2}, s{T2}, 7")
    a(f"s_lshl_b32 s{T2}, s{T2}, 12")
    a(f"s_add_u32 s{T2}, s{T2}, s66")
    a(f"s_add_u32 m0, s67, {sg*8192+4096}")
    a(f"s_xor_b32 s{T3}, s{T2}, 0x10000")
def issue_o(sg, setup=True):
    if setup: o_setup(sg)
    for q in range(4):
        dma(14, WS, T3, q * 1024, f"o{sg}", vm, "sc1 ")
    a(f"s_add_u32 m0, s67, {sg*8192}")
    a("s_nop 0")
    for q in range(4):
        dma(14, WS, T2, q * 1024, f"o{sg}", vm, "sc1 ")
o_setup(0)
a(f"s_waitcnt vmcnt(0)\ns_atomic_add s{ONE}, s[22:23], s69")
stx()
a("s_barrier")
stx()
issue_o(0, setup=False)
for sg in range(4):
    if sg + 1 < 4:
        issue_o(sg + 1)
    vm.wait(f"o{sg}")
    a("s_barrier")
if STAMPS:
    a("s_barrier")
    while stx.n < STAMPS: stx()
    a("Lstamps:")
    a(f"v_subrev_u32 v40, {SWAVE*64}, v0")
    emit_stamp_store(a, 0, STAMPS, 70, 22, 2, 20, stmp=60, tid="v40")
a("Lend:")
a("s_endpgm")
for r in rare:
    a(r)
a("Lcode_end:")
open(sys.argv[1], "w").write(file_text([(NAME + "_kernel", 256, 512, 163840)], [(NAME + "_kernel", a.text(), 256, None)]))
```

```python
import sys, struct
from asmlib import *

opts = dict(o.split("=") if "=" in o else (o, "1") for o in sys.argv[2:])
STAMPS = int(opts.get("stamps", 0))
SWAVE = int(opts.get("swave", 0))
ROTMODE = opts.get("rot", "2")
LAGA = int(opts.get("lag", 6))
EARLY = int(opts.get("early", 4))
a = Asm()
OSF = opts.get("osf", "").replace("+", " ")

KVSTR = 1152
KVCNT = 0x20000
OCNT = 0x30000
GBUF = 0x40000
OBUF = 0x100000
WS_BYTES = 0x500000
EPS = 0x358637bd
LOG2E = 0x3fb8aa3b
SPIN = int(opts.get("spin", 20000))
SL = [0, 32768, 65536, 98304, 131072]
WQ = SL[0]
STG = SL[2]
MISC = SL[4]
KVF = SL[4] + 4096
KVP = SL[4] + 8192

class Cnt:
    def __init__(self, name, mx): self.q = []; self.name = name; self.mx = mx
    def issue(self, tag): self.q.append(tag)
    def n_after(self, tag):
        idx = max(i for i, t in enumerate(self.q) if t == tag)
        return len(self.q) - 1 - idx
    def wait(self, *tags):
        n = min(self.mx, min(self.n_after(t) for t in tags))
        a(f"s_waitcnt {self.name}({n})")
def VM(): return Cnt("vmcnt", 63)
def LG(): return Cnt("lgkmcnt", 15)

class Stamper:
    def __init__(self, start=0): self.n = start
    def __call__(self):
        if STAMPS:
            assert self.n < STAMPS, self.n
            a(f"{'s_memtime' if 'cyc' in opts else 's_memrealtime'} s[{70+2*self.n}:{71+2*self.n}]")
            self.n += 1

X, W, WO, WS, OUT = 24, 28, 32, 40, 44
SLG, SEP = 36, 38
RT, CBK, RW, ONE = 48, 49, 50, 51
RB, CB, WV, ROT, XS, WSB, WL, T0, T1, T2, T3, WOS, ROT3, T4 = 52, 53, 54, 55, 56, 57, 58, 59, 60, 61, 62, 63, 64, 65

def mfma(d, sa, sb, c=None):
    cc = f"v[{d}:{d+15}]" if c is None else c
    a(f"v_mfma_f32_32x32x16_bf16 v[{d}:{d+15}], v[{sa}:{sa+3}], v[{sb}:{sb+3}], {cc}")
def mfma16(d, sa, sb, c=None):
    cc = f"v[{d}:{d+3}]" if c is None else c
    a(f"v_mfma_f32_16x16x32_bf16 v[{d}:{d+3}], v[{sa}:{sa+3}], v[{sb}:{sb+3}], {cc}")
def tr(r, addr, off):
    a(f"ds_read_b64_tr_b16 v[{r}:{r+1}], v{addr} offset:{off}")
def phi_ops(acc, n, tmp, pk=False):
    ops = []
    if pk:
        for r in range(0, n, 2):
            ops.append(f"v_pk_fma_f32 v[{tmp+r}:{tmp+r+1}], v[{acc+r}:{acc+r+1}], s[{SLG}:{SLG+1}], s[{SLG}:{SLG+1}] neg_lo:[0,0,1] neg_hi:[0,0,1]")
    else:
        for r in range(n):
            ops.append(f"v_fma_f32 v{tmp+r}, v{acc+r}, s{SLG}, -s{SLG}")
    for r in range(n):
        ops.append(f"v_exp_f32 v{tmp+r}, v{tmp+r} clamp")
        if r >= 2:
            ops.append(f"v_max_f32 v{acc+r-2}, v{acc+r-2}, v{tmp+r-2}")
    ops.append(f"v_max_f32 v{acc+n-2}, v{acc+n-2}, v{tmp+n-2}")
    ops.append(f"v_max_f32 v{acc+n-1}, v{acc+n-1}, v{tmp+n-1}")
    if pk:
        for r in range(0, n, 2):
            ops.append(f"v_pk_add_f32 v[{acc+r}:{acc+r+1}], v[{acc+r}:{acc+r+1}], s[{SEP}:{SEP+1}]")
    else:
        for r in range(n):
            ops.append(f"v_add_f32 v{acc+r}, s{SEP}, v{acc+r}")
    for r in range(n // 2):
        ops.append(f"v_cvt_pk_bf16_f32 v{acc+r}, v{acc+2*r}, v{acc+2*r+1}")
    return ops
def spin(label, body, cnt, sleep=None, mult=1):
    a(f"s_mov_b32 s{cnt}, 0\n{label}_top:")
    a(body)
    a(f"s_cbranch_vccz {label}_done")
    if sleep: a(f"s_sleep {sleep}")
    a(f"s_add_u32 s{cnt}, s{cnt}, 1\ns_cmp_lt_u32 s{cnt}, {SPIN*mult}\ns_cbranch_scc1 {label}_top")
    a(f"{label}_done:")
def sspin(label, body, cnt, sleep=None):
    a(f"s_mov_b32 s{cnt}, 0\n{label}_top:")
    a(body)
    a(f"s_cbranch_scc1 {label}_done")
    if sleep: a(f"s_sleep {sleep}")
    a(f"s_add_u32 s{cnt}, s{cnt}, 1\ns_cmp_lt_u32 s{cnt}, {SPIN}\ns_cbranch_scc1 {label}_top")
    a(f"{label}_done:")
rare = []
def lds_check(label, vtmp, vaddr, off, val, cnt):
    a(f"v_cmp_ne_u32 vcc, {val}, v{vtmp}\ns_cbranch_vccnz {label}\n{label}_done:")
    rare.append(f"""{label}:
s_mov_b32 s{cnt}, 0
{label}_top:
ds_read_b32 v{vtmp}, v{vaddr} offset:{off}
s_waitcnt lgkmcnt(0)
v_cmp_ne_u32 vcc, {val}, v{vtmp}
s_cbranch_vccz {label}_done
s_add_u32 s{cnt}, s{cnt}, 1
s_cmp_lt_u32 s{cnt}, {SPIN*8}
s_cbranch_scc1 {label}_top
s_branch {label}_done""")
def lds_add(vaddr, vone, off):
    a(f"s_mov_b64 exec, 1\nds_add_u32 v{vaddr}, v{vone} offset:{off}\ns_mov_b64 exec, -1")
def dma(voff, sr, soff, off, tag, vmq, extra=""):
    o = f"offset:{off} " if off else ""
    a(f"buffer_load_dwordx4 v{voff}, s[{sr}:{sr+3}], s{soff} offen {o}{extra}lds")
    vmq.issue(tag)

st = Stamper()
st()
a(f"""
s_load_dwordx16 s[4:19], s[0:1], 0
s_load_dwordx4 s[20:23], s[0:1], 64
s_cmp_ge_u32 s2, 256
s_cbranch_scc1 Lend
v_lshrrev_b32 v20, 6, v0
v_and_b32 v1, 63, v0
v_readfirstlane_b32 s{WV}, v20
s_and_b32 s{T0}, s2, 7
s_lshr_b32 s{T1}, s2, 3
s_and_b32 s{CBK}, s{T1}, 7
s_lshr_b32 s{T2}, s{T1}, 3
s_and_b32 s{RB}, s{T0}, 1
s_lshl_b32 s{RB}, s{RB}, 3
s_add_u32 s{RB}, s{RB}, s{CBK}
s_lshr_b32 s{CB}, s{T0}, 1
s_lshl_b32 s{CB}, s{CB}, 2
s_add_u32 s{CB}, s{CB}, s{T2}
s_lshl_b32 s{RT}, s{T0}, 2
s_add_u32 s{RT}, s{RT}, s{T2}
s_lshl_b32 s{ROT3}, s{T2}, 1
s_lshl_b32 s{T3}, s{CBK}, {opts.get("orot", 3)}
s_add_u32 s{ROT3}, s{ROT3}, s{T3}
""")
if "m84" in opts:
    a(f"""s_lshr_b32 s{RT}, s{T0}, 1
s_lshl_b32 s{RT}, s{RT}, 3
s_add_u32 s{RT}, s{RT}, s{CBK}
s_and_b32 s3, s{T0}, 1
s_lshl_b32 s3, s3, 2
s_add_u32 s3, s3, s{T2}""")
else:
    a(f"s_mov_b32 s3, s{CBK}")
a(f"""
s_and_b32 s{WL}, s{WV}, 3
s_and_b32 s{RW}, s{WL}, 1
s_add_u32 s{RW}, s{RW}, s{ROT3}
s_mov_b32 s{ONE}, 1
s_cmp_lt_u32 s{WV}, 4
s_cbranch_scc1 Lx
""")

vm = VM()
sty = Stamper(1)
if ROTMODE == "8":
    a(f"s_mov_b32 s{ROT}, s{ROT3}")
elif ROTMODE == "0":
    a(f"s_mov_b32 s{ROT}, 0")
elif ROTMODE == "2":
    a(f"s_add_u32 s{ROT}, s{CBK}, s{T2}\ns_lshl_b32 s{ROT}, s{ROT}, 2")
elif ROTMODE == "4":
    a(f"s_add_u32 s{ROT}, s{CBK}, s{T2}\ns_lshl_b32 s{ROT}, s{ROT}, 1")
a(f"""
v_lshrrev_b32 v20, 3, v1
v_and_b32 v21, 7, v1
v_lshrrev_b32 v22, 4, v1
v_xor_b32 v23, v21, v22
v_lshlrev_b32 v2, 10, v20
v_lshl_add_u32 v2, v23, 4, v2
v_xor_b32 v3, 64, v2
v_add_u32 v3, {8192-1024}, v3
v_add_u32 v4, {2*(8192-1024)}, v2
v_add_u32 v5, {2*(8192-1024)}, v3
v_and_b32 v23, 1, v22
v_lshlrev_b32 v24, 1, v23
v_xor_b32 v24, v21, v24
v_mul_u32_u24 v25, 3072, v20
v_lshl_add_u32 v6, v24, 4, v25
v_xor_b32 v7, 64, v6
v_add_u32 v7, {8*3072-1024}, v7
v_add_u32 v10, 1024, v6
v_add_u32 v11, 1024, v7
s_lshl_b32 s{XS}, s{RB}, 17
s_lshl_b32 s{T0}, s{WL}, 15
s_add_u32 s{XS}, s{XS}, s{T0}
s_and_b32 s{WSB}, s{CB}, 7
s_lshl_b32 s{WSB}, s{WSB}, 7
s_mul_i32 s66, s{WL}, {16*3072}
s_add_u32 s66, s66, s{WSB}
s_lshl_b32 s67, s{WL}, 12
s_mov_b32 s{X+2}, {2048*1024}
s_mov_b32 s{X+3}, 0x20000
s_mov_b32 s{W+2}, {512*3072}
s_mov_b32 s{W+3}, 0x20000
""")
def chunk_setup(c):
    slot = SL[c % 4]
    a(f"s_add_u32 s{T0}, s{ROT}, {c}")
    a(f"s_and_b32 s{T0}, s{T0}, 7")
    a(f"s_lshl_b32 s{T1}, s{T0}, 7")
    a(f"s_add_u32 m0, s67, {slot}")
    a(f"s_add_u32 s{T1}, s{T1}, s{XS}")
def issue_chunk(c, setup=True):
    slot = SL[c % 4]
    if setup: chunk_setup(c)
    for q in range(4):
        dma(2 + q, X, T1, q * 1024, f"c{c}", vm)
        if q == 0:
            a(f"s_mul_i32 s{T2}, s{T0}, {64*3072}")
        if q == 1:
            a(f"s_add_u32 s{T2}, s{T2}, s66")
    a(f"s_add_u32 m0, s67, {slot+16384}")
    a("s_nop 0")
    dma(10, W, T2, 0, f"c{c}", vm)
    dma(11, W, T2, 1024, f"c{c}", vm)
    dma(6, W, T2, 2048, f"c{c}", vm)
    dma(7, W, T2, 3072, f"c{c}", vm)
def issue_wq(h):
    a(f"s_add_u32 s{T0}, s{ROT}, s{WL}")
    a(f"s_add_u32 s{T0}, s{T0}, {4*h}")
    a(f"s_and_b32 s{T0}, s{T0}, 7")
    a(f"s_mul_i32 s{T2}, s{T0}, {64*3072}")
    a(f"s_lshl_b32 s{T1}, s67, 1")
    a(f"s_add_u32 m0, s{T1}, {WQ+h*32768}")
    a(f"s_add_u32 s{T2}, s{T2}, s{WSB}")
    for q in range(4):
        dma(26 + q, W, T2, q * 1024, f"q{h}", vm)
    a(f"s_add_u32 m0, s{T1}, {WQ+h*32768+4096}")
    a(f"s_add_u32 s{T2}, s{T2}, {32*3072}")
    for q in range(4):
        dma(26 + q, W, T2, q * 1024, f"q{h}", vm)
chunk_setup(0)
a(f"""
s_cmp_ge_u32 s{CB}, 8
s_waitcnt lgkmcnt(0)
s_mov_b32 s{X}, s4
s_mov_b32 s{X+1}, s5
s_cselect_b32 s{W}, s12, s6
s_cselect_b32 s{W+1}, s13, s7
""")
issue_chunk(0, setup=False)
sty()
a(f"""
v_lshlrev_b32 v24, 2, v23
v_xor_b32 v24, v21, v24
v_lshl_add_u32 v26, v24, 4, v25
v_add_u32 v27, {8*3072-1024}, v26
v_add_u32 v28, {2*(8*3072-1024)}, v26
v_add_u32 v29, {3*(8*3072-1024)}, v26
v_lshlrev_b32 v12, 10, v20
v_lshl_add_u32 v12, v24, 4, v12
v_add_u32 v13, {8192-1024}, v12
v_add_u32 v14, {2*(8192-1024)}, v12
v_add_u32 v15, {3*(8192-1024)}, v12
s_lshl_b32 s69, s3, 7
s_and_b32 s{T0}, s{WL}, 1
s_lshl_b32 s{T1}, s{T0}, 6
s_add_u32 s{WOS}, s69, s{T1}
s_lshl_b32 s68, s{WL}, 14
v_lshrrev_b32 v8, 5, v1
v_bfe_u32 v17, v1, 2, 2
v_lshl_add_u32 v16, v8, 2, v17
v_lshlrev_b32 v16, 7, v16
v_lshl_add_u32 v16, v23, 5, v16
v_and_b32 v24, 3, v1
v_lshl_add_u32 v16, v24, 3, v16
v_bfe_u32 v17, v1, 3, 1
v_xor_b32 v25, s{T0}, v17
v_lshl_add_u32 v16, v25, 6, v16
s_add_u32 s{T1}, s68, {STG}
v_add_u32 v16, s{T1}, v16
v_xor_b32 v18, 0x4000, v16
s_lshr_b32 s{T1}, s{WL}, 1
s_lshl_b32 s{T1}, s{T1}, 2
s_add_u32 s{T1}, s{T1}, {MISC+16}
v_mov_b32 v46, s{T1}
v_lshlrev_b32 v9, 8, v22
v_lshl_add_u32 v9, v24, 2, v9
v_bfe_u32 v25, v1, 2, 1
v_lshl_add_u32 v9, v25, 5, v9
v_lshl_add_u32 v9, v17, 4, v9
v_lshlrev_b32 v19, 4, v1
v_mov_b32 v30, {MISC}
v_mov_b32 v31, 1
s_lshl_b32 s{T1}, s{WL}, 11
s_add_u32 s{T1}, s{T1}, {KVP}
v_add_u32 v20, s{T1}, v19
v_lshl_add_u32 v21, v1, 2, s{T1}
s_cmp_ge_u32 s{WL}, 2
s_cselect_b32 s8, s14, s8
s_cselect_b32 s9, s15, s9
""")
srd(a, WO, 8, 512 * 1024)
a(f"s_and_b32 s15, s{WL}, 1\ns_lshl_b32 s14, s15, 15\ns_add_u32 s14, s14, s69\ns_lshl_b32 s15, s15, 12\ns_add_u32 s15, s15, s68")
srd(a, WS, 22, WS_BYTES)
srd(a, OUT, 18, 2048 * 1024)
issue_chunk(1)
a("global_load_dwordx4 v[40:43], v19, s[16:17]")
vm.issue("gw")
for i in range(8):
    vm.wait(f"c{i}")
    a("s_barrier")
    if i in (0, 3, 7): sty()
    if i == 6: a(f"s_load_dword s{T4}, s[20:21], 0")
    if i + 2 < 8:
        issue_chunk(i + 2)
    else:
        issue_wq(i - 6)
a(f"""
s_lshl_b32 s{T0}, s{CB}, 11
s_add_u32 s{T0}, s{T0}, s{XS}
buffer_load_dwordx4 v[48:51], v19, s[{X}:{X+3}], s{T0} offen
buffer_load_dwordx4 v[52:55], v19, s[{X}:{X+3}], s{T0} offen offset:1024
""")
for _ in range(2): vm.issue("gate")
def issue_wo(sg, part=(0, 1)):
    a(f"s_add_u32 s{T2}, s{RW}, {2*sg}")
    a(f"s_and_b32 s{T2}, s{T2}, 7")
    a(f"s_lshl_b32 s{T2}, s{T2}, 16")
    a(f"s_add_u32 m0, s15, {STG + (sg % 2) * 8192}")
    a(f"s_add_u32 s{T2}, s{T2}, s14")
    if 0 in part:
        for q in range(4):
            dma(12 + q, WO, T2, q * 1024, f"wo{sg}", vm)
    if 1 in part:
        a(f"s_xor_b32 m0, m0, 4096")
        a(f"s_xor_b32 s{T2}, s{T2}, 32768")
        for q in range(4):
            dma(12 + q, WO, T2, q * 1024, f"wo{sg}", vm)
spin("Lad", "ds_read_b32 v17, v30 offset:12\ns_waitcnt lgkmcnt(0)\nv_cmp_gt_u32 vcc, 4, v17", T3, sleep=1, mult=8)
if EARLY in (1, 2, 4, 5): issue_wo(0, part=(0,))
vm.wait("q1")
lds_add(30, 31, 0)
if EARLY == 1: issue_wo(0, part=(1,))
a(f"""
s_lshr_b32 s66, s{T0}, 8
s_add_u32 s66, s66, {GBUF}
s_lshl_b32 s{T0}, s{CB}, 2
s_add_u32 s{T0}, s{T0}, s{WL}
s_mul_i32 s{XS}, s{T0}, {KVSTR}
s_lshl_b32 s{WSB}, s{T0}, 10
s_add_u32 s{WSB}, s{WSB}, {KVCNT}
v_mov_b32 v44, 0
v_mov_b32 v45, 0
s_waitcnt lgkmcnt(0)
s_cmp_ge_u32 s{T4}, 64
s_cbranch_scc0 Lzc
Lzc_done:
""")
rare.append(f"""Lzc:
s_mov_b32 s{T3}, 0
Lzc_top:
s_load_dword s{T4}, s[20:21], 0 glc
s_waitcnt lgkmcnt(0)
s_cmp_ge_u32 s{T4}, 64
s_cbranch_scc1 Lzc_done
s_sleep 4
s_add_u32 s{T3}, s{T3}, 1
s_cmp_lt_u32 s{T3}, {SPIN}
s_cbranch_scc1 Lzc_top
s_branch Lzc_done""")
sty()
vm.wait("gate")
for k in range(4):
    a(f"v_dot2c_f32_bf16 v44, v{48+k}, v{40+k}")
    a(f"v_dot2c_f32_bf16 v45, v{52+k}, v{40+k}")
a(f"""
s_nop 2
v_permlane32_swap_b32 v44, v45
s_nop 1
v_add_f32 v44, v44, v45
s_nop 1
v_add_f32_dpp v44, v44, v44 row_ror:8 row_mask:0xf bank_mask:0xf
s_nop 1
v_add_f32_dpp v44, v44, v44 row_ror:4 row_mask:0xf bank_mask:0xf
s_nop 1
v_add_f32_dpp v44, v44, v44 row_ror:2 row_mask:0xf bank_mask:0xf
s_nop 1
v_add_f32_dpp v44, v44, v44 row_ror:1 row_mask:0xf bank_mask:0xf
v_mov_b32 v45, v44
s_nop 1
v_permlane16_swap_b32 v44, v45
s_nop 1
v_add_f32 v44, v44, v45
v_mul_f32 v44, 0xbfb8aa3b, v44
v_exp_f32 v44, v44
v_lshlrev_b32 v45, 2, v8
v_add_f32 v44, 1.0, v44
v_rcp_f32 v44, v44
""")
a("s_setprio 2")
spin("Lkp", "ds_read_b32 v36, v21 offset:1024\nds_read_b128 v[32:35], v20\ns_waitcnt lgkmcnt(0)\nv_cmp_eq_u32 vcc, 0, v36", T3, sleep=1, mult=8)
for r in range(4):
    a(f"buffer_atomic_add_f32 v{32+r}, v9, s[{WS}:{WS+3}], s{XS} offen offset:{r*64}")
    vm.issue("atom")
a(f"""
s_mov_b64 exec, 0xffff
buffer_atomic_add_f32 v36, v9, s[{WS}:{WS+3}], s{XS} offen offset:1024
s_mov_b64 exec, -1
""")
vm.issue("atom")
a(f"""
s_mov_b32 exec_lo, 1
s_mov_b32 exec_hi, 1
buffer_store_dword v44, v45, s[{WS}:{WS+3}], s66 offen sc1
s_mov_b64 exec, -1
""")
vm.issue("gst")
sty()
if EARLY == 0:
    lds_add(30, 31, 12)
    spin("Lai", "ds_read_b32 v17, v30 offset:12\ns_waitcnt lgkmcnt(0)\nv_cmp_gt_u32 vcc, 8, v17", T3, mult=8)
    issue_wo(0)
if EARLY in (4, 5): issue_wo(0, part=(1,))
if EARLY == 5: issue_wo(1, part=(0,))
a(f"""
s_mov_b32 s{T4}, 1
s_mov_b32 s38, 16
v_and_b32 v2, 31, v1
v_min_u32 v3, 16, v2
v_lshlrev_b32 v5, 5, v8
v_lshl_add_u32 v3, v3, 6, v5
s_lshl_b32 s{T0}, s{WL}, 10
s_add_u32 s{T0}, s{T0}, {KVF}
v_add_u32 v7, s{T0}, v19
""")
vm.wait("atom")
a(f"s_atomic_add s{T4}, s[22:23], s{WSB} glc")
sty()
WR = 128
def wreg(sg, hl, c): return WR + ((sg * 4 + hl) * 2 + c) * 4
def wo_tr(sg):
    vm.wait(f"wo{sg}")
    for hl in range(4):
        for c in range(2):
            r = wreg(sg, hl, c)
            off = (sg % 2) * 8192 + hl * 2048
            tr(r, 16 + 2 * c, off); tr(r + 2, 16 + 2 * c, off + 1024)
fst = [sty.n + 1]
def fetch():
    a(f"""buffer_load_dwordx4 v[32:35], v3, s[{WS}:{WS+3}], s{XS} offen sc1
buffer_load_dwordx4 v[36:39], v3, s[{WS}:{WS+3}], s{XS} offen offset:16 sc1
s_mov_b32 s38, -1
s_waitcnt vmcnt(0)
v_cvt_pk_bf16_f32 v32, v32, v33
v_cvt_pk_bf16_f32 v33, v34, v35
v_cvt_pk_bf16_f32 v34, v36, v37
v_cvt_pk_bf16_f32 v35, v38, v39
ds_write_b128 v7, v[32:35]""")
    lds_add(30, 31, 4)
    a("s_setprio 0")
    if STAMPS: a(f"{'s_memtime' if 'cyc' in opts else 's_memrealtime'} s[{70+2*fst[0]}:{71+2*fst[0]}]")
def maybe_fetch(k, poll=True):
    a(f"s_cmp_eq_u32 s{T4}, s38\ns_cbranch_scc0 Lmf{k}")
    fetch()
    a(f"Lmf{k}:")
    if poll: a(f"s_load_dword s{T4}, s[22:23], s{WSB} glc")
def pair_sync(label, tag, val):
    vm.wait(tag)
    lds_add(46, 31, 0)
    spin(label, f"ds_read_b32 v17, v46\ns_waitcnt lgkmcnt(0)\nv_cmp_gt_u32 vcc, {val}, v17", T3, mult=8)
def wo_tr2(sg):
    for hl in range(4):
        for c in range(2):
            r = wreg(sg, hl, c)
            off = (sg % 2) * 8192 + hl * 2048
            tr(r, 16 + 2 * c, off); tr(r + 2, 16 + 2 * c, off + 1024)
issue_wo(1)
a(f"s_waitcnt lgkmcnt(0)\ns_add_u32 s{T4}, s{T4}, 1")
maybe_fetch(0, poll=False)
pair_sync("Lps0", "wo1", 2)
a(f"s_load_dword s{T4}, s[22:23], s{WSB} glc")
wo_tr2(0); wo_tr2(1)
a("s_waitcnt lgkmcnt(0)")
lds_add(46, 31, 0)
sty()
sty.n += 1
a(f"""
s_waitcnt lgkmcnt(0)
s_cmp_eq_u32 s38, -1
s_cbranch_scc1 Lkv_have
s_cmp_eq_u32 s{T4}, 16
s_cbranch_scc1 Lpollkv_done
""")
sspin("Lpollkv", f"s_load_dword s{T4}, s[22:23], s{WSB} glc\ns_waitcnt lgkmcnt(0)\ns_cmp_eq_u32 s{T4}, 16", T3, sleep=int(opts.get("ksleep", 1)))
LPS1 = "ds_read_b32 v17, v46\ns_waitcnt lgkmcnt(0)\nv_cmp_gt_u32 vcc, 4, v17"
LXO = "ds_read_b32 v17, v30 offset:8\ns_waitcnt lgkmcnt(0)\nv_cmp_gt_u32 vcc, 4, v17"
R2 = opts.get("r2", "1")
fetch()
a("Lkv_have:")
if R2 == "0":
    spin("Lxo", LXO, T3, sleep=1, mult=8)
    spin("Lps1", LPS1, T3, mult=8)
    issue_wo(2); issue_wo(3)
elif R2 == "1":
    spin("Lps1", LPS1, T3, mult=8)
    issue_wo(2)
    spin("Lxo", LXO, T3, sleep=1, mult=8)
    issue_wo(3)
elif R2 == "2":
    spin("Lps1", LPS1, T3, mult=8)
    issue_wo(2); issue_wo(3)
elif R2 == "3":
    spin("Lps1", LPS1, T3, mult=8)
    issue_wo(2, part=(0,))
    spin("Lxo", LXO, T3, sleep=1, mult=8)
    issue_wo(2, part=(1,)); issue_wo(3)
a(f"""
; P3 addressing
s_lshl_b32 s{T0}, s{WL}, 15
v_add_u32 v11, s{T0}, v19
v_xor_b32 v12, 0x8000, v11
s_lshl_b32 s{T0}, s{WL}, 12
s_add_u32 s{T0}, s{T0}, {SL[4]+16384}
v_add_u32 v13, s{T0}, v19
v_xor_b32 v14, 0x2000, v13
v_lshlrev_b32 v10, 10, v2
v_lshl_add_u32 v10, v8, 4, v10
v_lshlrev_b32 v2, 2, v2
s_lshl_b32 s{T1}, s{RT}, 1
s_lshr_b32 s{T0}, s{WL}, 1
s_add_u32 s{T1}, s{T1}, s{T0}
s_lshl_b32 s66, s{T1}, 7
s_add_u32 s66, s66, {GBUF}
s_lshl_b32 s{T2}, s{T1}, 10
s_add_u32 s{T2}, s{T2}, {OCNT}
s_lshl_b32 s{T1}, s{T1}, 15
s_add_u32 s{T1}, s{T1}, s{WOS}
""")
pair_sync("Lps2", "wo3", 6)
wo_tr2(2); wo_tr2(3)
a(f"""
s_waitcnt lgkmcnt(0)
s_bitcmp1_b32 s{WL}, 0
s_cbranch_scc1 Lpollo_done
""")
if "ovec" in opts:
    a("v_mov_b32 v6, 0\ns_sleep %s\ns_mov_b64 exec, 1" % opts["ovec"])
    spin("Lpollo", f"buffer_load_dword v17, v6, s[{WS}:{WS+3}], s{T2} offen sc1\ns_waitcnt vmcnt(0)\nv_cmp_ne_u32 vcc, 16, v17", T3, sleep=int(opts.get("osleep", 1)))
    a("s_mov_b64 exec, -1")
else:
    sspin("Lpollo", f"s_load_dword s{T4}, s[22:23], s{T2} glc\ns_waitcnt lgkmcnt(0)\ns_cmp_eq_u32 s{T4}, 16", T3, sleep=int(opts.get("osleep", 1)))
if "p3st" in opts: sty.n = 1
sty()
a("s_barrier")
a(f"buffer_load_dword v15, v2, s[{WS}:{WS+3}], s66 offen sc1")
ACC = [32, 48]
OB = 64; NBUF = 16
lg = LG()
items = [(st, k, c) for st in range(4) for k in range(8) for c in range(2)]
def rdO(n):
    st, k, c = items[n]
    r = OB + 4 * (n % NBUF)
    a(f"ds_read_b128 v[{r}:{r+3}], v{11+c} offset:{st*8192 + k*1024}")
    lg.issue(f"O{n}")
def mfO(n):
    st, k, c = items[n]
    if n % 2 == 0: lg.wait(f"O{min(n+1, 63)}")
    mfma(ACC[1 if st < 2 else 0], wreg(2 * (st & 1) + (k >> 2), k & 3, c), OB + 4 * (n % NBUF), "0" if n in (0, 32) else None)
LAG = int(opts.get("plag", 4))
done = 0
wq = list(range(4))
fin = ["s_waitcnt vmcnt(0)", "v_sub_f32 v16, 1.0, v15", f"s_cmp_ge_u32 s{WL}, 2\ns_cselect_b64 vcc, -1, 0",
       "v_cndmask_b32 v18, v15, v16, vcc", "v_cndmask_b32 v16, v16, v15, vcc"]
for n in range(64):
    if n % 16 == 0:
        if "p3st" in opts and n > 0: sty()
        if n == 48: lg.wait("W")
        a("s_barrier")
        if n == 0 or "p3st" in opts: sty()
        rdO(n); rdO(n + 1)
    if n % 16 < 14: rdO(n + 2)
    if n >= LAG:
        mfO(done); done += 1
        if done in (37, 38, 40, 42):
            k = wq.pop(0)
            a(f"ds_write_b128 v13, v[{48+4*k}:{51+4*k}] offset:{k*1024}"); lg.issue("W")
        if done >= 50 and done < 54:
            k = done - 50
            a(f"ds_read_b128 v[{48+4*k}:{51+4*k}], v14 offset:{k*1024}"); lg.issue("P")
        if done >= 54 and fin: a(fin.pop(0))
assert not wq and not fin
lg.wait("P")
vq = [f"v_mul_f32 v{48+r}, v{48+r}, v16" for r in range(16)]
while done < 64:
    mfO(done); done += 1
    for _ in range(16 // LAG if done < 64 else 16):
        if vq: a(vq.pop(0))
sty()
a("s_nop 7")
for r in range(0, 16, 2):
    a(f"v_pk_fma_f32 v[{32+r}:{33+r}], v[{32+r}:{33+r}], v[18:19], v[{48+r}:{49+r}] op_sel_hi:[1,0,1]")
for r in range(8):
    a(f"v_cvt_pk_bf16_f32 v{32+r}, v{32+2*r}, v{33+2*r}")
a(f"""
s_nop 1
v_permlane32_swap_b32 v32, v34
v_permlane32_swap_b32 v33, v35
v_permlane32_swap_b32 v36, v38
v_permlane32_swap_b32 v37, v39
buffer_store_dwordx4 v[32:35], v10, s[{OUT}:{OUT+3}], s{T1} offen {OSF}
buffer_store_dwordx4 v[36:39], v10, s[{OUT}:{OUT+3}], s{T1} offen offset:32 {OSF}
""")
if STAMPS:
    sty()
    a("s_waitcnt vmcnt(0)")
    while sty.n < STAMPS: sty()
    a("s_branch Lstamps")
else:
    a("s_endpgm")

vm = VM()
stx = Stamper(1)
a("Lx:")
a(f"""
s_getpc_b64 s[66:67]
Lpc0:
s_sub_u32 s66, s66, Lpc0-{NAME}_kernel
s_subb_u32 s67, s67, 0
s_and_b32 s{T0}, s{CBK}, 3
s_lshl_b32 s{T0}, s{T0}, 2
s_add_u32 s{T0}, s{T0}, s{WL}
s_lshl_b32 s{T0}, s{T0}, 10
v_lshl_add_u32 v140, v1, 7, s{T0}
v_min_u32 v140, Lcode_end-{NAME}_kernel-4, v140
s_mov_b64 exec, 0xff
global_load_dword v252, v140, s[66:67]
s_mov_b64 exec, -1
v_lshlrev_b32 v14, 4, v1
v_mov_b32 v160, 0
v_mov_b32 v161, 0
v_mov_b32 v162, 0
v_mov_b32 v163, 0
v_mov_b32 v12, {MISC}
v_mov_b32 v13, 1
s_lshl_b32 s{T1}, s{WL}, 11
s_add_u32 s{T1}, s{T1}, {KVP}
v_add_u32 v5, s{T1}, v14
v_lshl_add_u32 v15, v1, 2, s{T1}
ds_write_b128 v12, v[160:163]
ds_write_b128 v12, v[160:163] offset:16
ds_write_b32 v15, v160 offset:1024
s_mov_b32 s{WS+2}, {WS_BYTES}
s_mov_b32 s{WS+3}, 0x20000
s_cmp_eq_u32 s{RB}, s{CB}
s_waitcnt lgkmcnt(0)
s_mov_b32 s{WS}, s22
s_mov_b32 s{WS+1}, s23
s_cbranch_scc0 Lnozero
s_lshl_b32 s{T0}, s{CB}, 2
s_add_u32 s{T0}, s{T0}, s{WL}
s_mul_i32 s{T1}, s{T0}, {KVSTR}
buffer_store_dwordx4 v[160:163], v14, s[{WS}:{WS+3}], s{T1} offen sc1
s_lshl_b32 s{T2}, s{T0}, 10
s_add_u32 s{T3}, s{T2}, {OCNT}
s_add_u32 s{T2}, s{T2}, {KVCNT}
s_mov_b64 exec, 0xf
buffer_store_dwordx4 v[160:163], v14, s[{WS}:{WS+3}], s{T2} offen sc1
buffer_store_dwordx4 v[160:163], v14, s[{WS}:{WS+3}], s{T3} offen sc1
buffer_store_dwordx4 v[160:163], v14, s[{WS}:{WS+3}], s{T1} offen offset:1024 sc1
s_mov_b64 exec, -1
Lnozero:
""")
if "ta" in opts:
    d = int(opts["ta"])
    a(f"""
{'s_sleep %d' % d if d > 1 else ''}
s_cmp_ge_u32 s{CB}, 8
s_cselect_b32 s6, s12, s6
s_cselect_b32 s7, s13, s7
s_cmp_eq_u32 s{WL}, 0
s_cbranch_scc0 Lta1
s_lshl_b32 s{T0}, s{RB}, 17
s_lshl_b32 s{T1}, s{CB}, 13
s_add_u32 s{T0}, s{T0}, s{T1}
v_lshl_add_u32 v142, v1, 7, s{T0}
global_load_dword v253, v142, s[4:5]
s_branch Lta_done
Lta1:
s_cmp_eq_u32 s{WL}, 3
s_cbranch_scc1 Lta3
s_mul_i32 s{T0}, s{RB}, {32*3072}
s_and_b32 s{T1}, s{CB}, 7
s_lshl_b32 s{T1}, s{T1}, 7
s_add_u32 s{T0}, s{T0}, s{T1}
s_sub_u32 s{T1}, s{WL}, 1
s_lshl_b32 s{T1}, s{T1}, 11
s_add_u32 s{T0}, s{T0}, s{T1}
v_and_b32 v142, 31, v1
v_mul_u32_u24 v142, 3072, v142
v_lshrrev_b32 v143, 5, v1
v_lshl_add_u32 v142, v143, 10, v142
v_add_u32 v142, s{T0}, v142
s_cmp_eq_u32 s{WL}, 2
s_cselect_b32 exec_hi, 0, -1
global_load_dword v253, v142, s[6:7]
s_branch Lta_done
Lta3:
s_lshl_b32 s{T0}, s{RT}, 14
s_lshl_b32 s{T1}, s{CBK}, 7
s_add_u32 s{T0}, s{T0}, s{T1}
v_lshl_add_u32 v142, v1, 10, s{T0}
s_mov_b64 exec, 0xffff
global_load_dword v253, v142, s[8:9]
global_load_dword v254, v142, s[14:15]
Lta_done:
s_mov_b64 exec, -1
""")
a(f"""
s_mov_b32 s{SLG}, 0x{LOG2E:x}
s_mov_b32 s{SLG+1}, 0x{LOG2E:x}
s_mov_b32 s{SEP}, 0x{EPS:x}
s_mov_b32 s{SEP+1}, 0x{EPS:x}
v_and_b32 v20, 15, v1
v_lshrrev_b32 v21, 4, v1
v_lshrrev_b32 v22, 1, v20
v_xor_b32 v22, v21, v22
v_lshlrev_b32 v2, 7, v20
v_lshl_add_u32 v2, v22, 4, v2
v_xor_b32 v3, 64, v2
; W base v4
v_lshrrev_b32 v24, 5, v1
v_lshlrev_b32 v4, 12, v24
v_and_b32 v25, 1, v21
v_lshl_add_u32 v4, v25, 10, v4
v_lshrrev_b32 v26, 2, v20
v_lshl_add_u32 v4, v26, 7, v4
v_bfe_u32 v23, v1, 3, 2
v_xor_b32 v23, s{WL}, v23
v_lshl_add_u32 v4, v23, 5, v4
v_and_b32 v23, 3, v1
v_lshl_add_u32 v4, v23, 3, v4
v_add_u32 v4, 16384, v4
v_bfe_u32 v22, v1, 3, 1
v_lshl_add_u32 v10, v24, 3, v26
v_lshlrev_b32 v10, 7, v10
v_lshl_add_u32 v10, v25, 5, v10
v_lshl_add_u32 v10, v23, 3, v10
v_lshl_add_u32 v10, v22, 6, v10
v_xor_b32 v11, 64, v10
v_and_b32 v20, 31, v1
s_lshl_b32 s{T0}, s{WL}, 12
v_lshl_add_u32 v6, v20, 7, s{T0}
v_bfe_u32 v25, v1, 1, 3
v_xor_b32 v25, v24, v25
v_lshl_add_u32 v6, v25, 4, v6
v_xor_b32 v7, 32, v6
v_xor_b32 v8, 64, v6
v_xor_b32 v9, 96, v6
s_lshl_b32 s{T1}, s{RB}, 2
s_add_u32 s{T1}, s{T1}, s{WL}
s_lshl_b32 s68, s{T1}, 16
s_lshl_b32 s{T3}, s{CB}, 12
s_add_u32 s68, s68, s{T3}
s_add_u32 s68, s68, {OBUF}
s_lshl_b32 s69, s{T1}, 10
s_add_u32 s69, s69, {OCNT}
s_lshr_b32 s{T2}, s{WL}, 1
s_lshl_b32 s66, s{RT}, 1
s_add_u32 s66, s66, s{T2}
s_lshl_b32 s66, s66, 16
s_lshl_b32 s{T2}, s{T2}, 15
s_add_u32 s66, s66, s{T2}
s_add_u32 s66, s66, {OBUF}
s_lshl_b32 s67, s{WL}, 15
""")
if "tlb" in opts:
    a(f"""
{'s_sleep ' + opts['tlb'] if opts['tlb'] != '1' else ''}
v_lshlrev_b32 v255, 16, v1
s_mov_b64 exec, 0xff
s_cmp_eq_u32 s{WL}, 2
s_cbranch_scc1 Ltl2
s_cmp_eq_u32 s{WL}, 3
s_cbranch_scc1 Ltl3
s_cmp_eq_u32 s{WL}, 1
s_cselect_b32 s24, s14, s8
s_cselect_b32 s25, s15, s9
s_lshl_b32 s{T0}, s2, 7
v_add_u32 v255, s{T0}, v255
global_load_dword v253, v255, s[24:25]
s_branch Ltl_done
Ltl2:
s_mov_b32 s{T0}, 0x8000
buffer_load_dword v253, v255, s[{WS}:{WS+3}], s{T0} offen sc1
s_sub_u32 s{T0}, s68, 0x20000
s_mov_b64 exec, 0xf
buffer_load_dword v254, v255, s[{WS}:{WS+3}], s{T0} offen sc1
s_branch Ltl_done
Ltl3:
s_mov_b64 exec, 3
s_lshl_b32 s{T0}, s{RT}, 17
s_add_u32 s{T0}, s{T0}, {OBUF}
buffer_load_dword v253, v255, s[{WS}:{WS+3}], s{T0} offen sc1
s_mov_b64 exec, 1
s_lshl_b32 s{T0}, s{RT}, 16
v_mov_b32 v255, s{T0}
global_load_dword v254, v255, s[18:19]
Ltl_done:
s_mov_b64 exec, -1
""")
if "sp" in opts:
    a(f"""
s_cmp_ge_u32 s{CB}, 8
s_cselect_b32 s6, s12, s6
s_cselect_b32 s7, s13, s7
s_lshl_b32 s{T0}, s{RB}, 2
s_add_u32 s{T0}, s{T0}, s{WL}
s_mul_i32 s{T0}, s{T0}, {8*3072}
s_and_b32 s{T1}, s{CB}, 7
s_lshl_b32 s{T1}, s{T1}, 7
s_add_u32 s{T0}, s{T0}, s{T1}
s_add_u32 s6, s6, s{T0}
s_addc_u32 s7, s7, 0
s_cmp_ge_u32 s{WL}, 2
s_cselect_b32 s8, s14, s8
s_cselect_b32 s9, s15, s9
s_lshl_b32 s{T0}, s{RT}, 1
s_and_b32 s{T1}, s{WL}, 1
s_add_u32 s{T0}, s{T0}, s{T1}
s_lshl_b32 s{T0}, s{T0}, 13
s_lshl_b32 s{T1}, s{CBK}, 7
s_add_u32 s{T0}, s{T0}, s{T1}
s_add_u32 s8, s8, s{T0}
s_addc_u32 s9, s9, 0
""")
    if opts["sp"] in ("1", "2"):
        for i in range(8):
            a(f"s_load_dword s{24+i}, s[6:7], {i*3072}")
spq = []
if opts.get("sp") == "2": spq = [f"s_load_dword s{24+i}, s[8:9], {i*1024}" for i in range(8)]
if opts.get("sp") == "3": spq = [f"s_load_dword s{24+i}, s[6:7], {i*3072}" for i in range(8)] + [f"s_load_dword s{24+i}, s[8:9], {i*1024}" for i in range(8)]
RG, BF, AK, AV, XR = 16, 48, 64, 96, 128
stx()
lg = LG()
for i in range(8):
    so = (i & 1) * 32768
    a("s_barrier")
    if i in (0, 7): stx()
    for sidx in range(16):
        n = (sidx - LAGA) % 16
        ci = i if sidx >= LAGA else i - 1
        ks = n >> 3; rt = n & 7
        em = ci >= 0
        first = (ci == 0 and ks == 0)
        if em:
            tags = [f"X{ci}_{n}"] + ([f"B{ci}_{ks}0", f"B{ci}_{ks}1"] if rt == 0 else [])
            if sidx % 2 == 0 and rt != 7:
                tags.append(f"X{ci}_{n+1}")
            if sidx % 2 == 0 or rt == 0:
                lg.wait(*tags)
            mfma16(AK + 4 * rt, RG + 4 * (n % 8), BF + ks * 8, "1.0" if first else None)
        def rdB(k_, sec, u):
            tr(BF + k_ * 8 + sec * 4 + 2 * u, 4, so + k_ * 8192 + sec * 2048 + u * 512)
            lg.issue(f"B{i}_{k_}{sec}")
        if sidx < 2:
            rdB(0, sidx, 0); rdB(0, sidx, 1)
        elif 6 <= sidx < 10:
            rdB(1, (sidx - 6) >> 1, sidx & 1)
        elif sidx in (10, 11, 12, 13):
            t = sidx - 10
            xr = XR + (4 * i + t) * 4
            a(f"ds_read_b128 v[{xr}:{xr+3}], v{6+t} offset:{so}")
            lg.issue("XR")
        elif (i & 1) and i < 7 and sidx == 14:
            a("v_xor_b32 v2, 0x10000, v2\nv_xor_b32 v4, 0x10000, v4")
        elif i > 0 and (i & 1) == 0 and sidx in (2, 3):
            k = 6 + 2 * (sidx - 2)
            a(f"v_xor_b32 v{k}, 0x10000, v{k}\nv_xor_b32 v{k+1}, 0x10000, v{k+1}")
        elif "tb" in opts and i == int(opts["tb"]) and sidx == 5:
            a("s_branch Ltb\nLtb_done:")
            rare.append(f"""Ltb:
s_cmp_eq_u32 s{WL}, 1
s_cbranch_scc1 Ltb1
s_cmp_eq_u32 s{WL}, 3
s_cbranch_scc1 Ltb3
s_cmp_eq_u32 s{WL}, 0
s_cbranch_scc0 Ltb_done
v_lshlrev_b32 v255, 7, v1
s_mov_b64 exec, 0xff
global_load_dword v253, v255, s[16:17]
s_branch Ltb_fin
Ltb1:
s_cmp_ge_u32 s{CB}, 8
s_cselect_b32 s6, s12, s6
s_cselect_b32 s7, s13, s7
s_mul_i32 s{T0}, s{RB}, {32*3072}
s_and_b32 s{T1}, s{CB}, 7
s_lshl_b32 s{T1}, s{T1}, 7
s_add_u32 s{T0}, s{T0}, s{T1}
v_mul_u32_u24 v255, 3072, v1
v_add_u32 v255, s{T0}, v255
s_mov_b32 exec_hi, 0
global_load_dword v253, v255, s[6:7]
s_branch Ltb_fin
Ltb3:
s_lshl_b32 s{T0}, s{RT}, 14
s_lshl_b32 s{T1}, s{CBK}, 7
s_add_u32 s{T0}, s{T0}, s{T1}
v_lshl_add_u32 v255, v1, 10, s{T0}
s_mov_b64 exec, 0xffff
global_load_dword v253, v255, s[8:9]
global_load_dword v254, v255, s[14:15]
Ltb_fin:
s_mov_b64 exec, -1
s_branch Ltb_done""")
        elif i == 5 and sidx == 2:
            a("s_waitcnt vmcnt(0)")
        elif i == 1 and sidx == 2:
            a(f"s_cmp_eq_u32 s{RB}, s{CB}\ns_cbranch_scc1 Lflag\nLflag_done:")
            rare.append(f"Lflag:\ns_waitcnt vmcnt(0)\ns_atomic_add s{ONE}, s[20:21], 0\ns_branch Lflag_done")
        elif i > 0 and (i & 1) == 0 and sidx == 4:
            a("v_xor_b32 v3, 0x10000, v3")
        if spq and i < 6 and sidx in ((5, 15) if opts["sp"] == "2" else (5, 10, 15)) and (i >= 1 or opts["sp"] == "3"):
            a(spq.pop(0))
        if em:
            mfma16(AV + 4 * rt, RG + 4 * (n % 8), BF + ks * 8 + 4, "0" if first else None)
        r = RG + 4 * (sidx % 8)
        a(f"ds_read_b128 v[{r}:{r+3}], v{2 + (sidx >> 3)} offset:{so + (sidx & 7) * 2048}")
        lg.issue(f"X{i}_{sidx}")
for n in range(16 - LAGA, 16):
    lg.wait(f"X7_{n}")
    mfma16(AK + 4 * (n & 7), RG + 4 * (n % 8), BF + 8)
lds_add(12, 13, 12)
for n in range(16 - LAGA, 16):
    mfma16(AV + 4 * (n & 7), RG + 4 * (n % 8), BF + 12)
stx()
for op in phi_ops(AK, 32, RG, pk=("nopk" not in opts)):
    a(op)
a("ds_read_b32 v2, v12")
for r in range(60, 64):
    a(f"v_mov_b32 v{r}, 0x3f803f80")
for r in range(16):
    a(f"v_cvt_pk_bf16_f32 v{AV+r}, v{AV+2*r}, v{AV+2*r+1}")
    if r % 4 == 1:
        mfma16(56, 60, AK + (r // 4) * 4, "0" if r < 4 else None)
a("s_waitcnt lgkmcnt(0)")
for p in range(4):
    mfma16(52, AV + 4 * p, AK + 4 * p, "0" if p == 0 else None)
a("s_nop 7")
a("ds_write_b128 v5, v[52:55]\nds_write_b32 v15, v56 offset:1024")
lds_check("Lq0", 2, 12, 0, 4, T3)
NB = 8
seq = [(ct, s) for ct in range(2) for s in range(32)]
lgq = LG()
def qread(n):
    ct, s = seq[n]
    r = RG + (n % NB) * 4
    off = WQ + (s // 4) * 8192 + (s % 4) * 2048
    tr(r, 10 + ct, off); tr(r + 2, 10 + ct, off + 512)
    lgq.issue(f"q{n}"); lgq.issue(f"q{n}")
PF = int(opts.get('pf', 6))
for n in range(PF):
    qread(n)
stx()
ph0 = phi_ops(64, 16, 96)
for n, (ct, s) in enumerate(seq):
    if n + PF < 64:
        qread(n + PF)
    if "w1" not in opts:
        if n % 2 == 0: lgq.wait(f"q{n+1}")
    else:
        lgq.wait(f"q{n}")
    mfma(64 + 16 * ct, RG + (n % NB) * 4, XR + s * 4, "1.0" if s == 0 else None)
    if "bst" in opts and n in (15, 31, 47): stx()
    if n >= 34:
        k = 2 if n < 63 else len(ph0)
        for op in ph0[:k]:
            a(op)
        ph0 = ph0[k:]
assert not ph0
stx()
a(f"v_add_u32 v3, {KVF}, v14")
ph1 = phi_ops(80, 16, 96, pk=True)
for op in ph1[:-10]:
    a(op)
a("ds_read_b32 v2, v12 offset:4")
for op in ph1[-10:]:
    a(op)
stx()
a("s_waitcnt lgkmcnt(0)\nv_cmp_ne_u32 vcc, 4, v2\ns_cbranch_vccz Lkvw_done")
spin("Lkvw", "ds_read_b32 v2, v12 offset:4\ns_waitcnt lgkmcnt(0)\nv_cmp_ne_u32 vcc, 4, v2", T3, mult=8)
stx()
for h in range(4):
    a(f"ds_read_b128 v[{16+4*h}:{19+4*h}], v3 offset:{h*1024}")
PQ = [64, 68, 80, 84]
DN = [192, 208, 224, 240]
for h in range(4):
    a(f"s_waitcnt lgkmcnt({3-h})")
    mfma(DN[h], 16 + 4 * h, PQ[h], "0")
a("s_nop 5")
for h in range(4):
    d = DN[h]
    a(f"v_add_f32 v{d+8}, s{SEP}, v{d+8}")
    a(f"v_rcp_f32 v{d+8}, v{d+8}")
    a("s_nop 0")
    for r in range(0, 8, 2):
        a(f"v_pk_mul_f32 v[{d+r}:{d+r+1}], v[{d+r}:{d+r+1}], v[{d+8}:{d+9}] op_sel_hi:[1,0]")
    for r in range(4):
        a(f"v_cvt_pk_bf16_f32 v{d+r}, v{d+2*r}, v{d+2*r+1}")
    a(f"buffer_store_dwordx4 v[{d}:{d+3}], v14, s[{WS}:{WS+3}], s68 offen offset:{h*1024} sc1")
lds_add(12, 13, 8)
stx()
vm = VM()
def o_half(st, hf, setup_only=False, do_setup=True):
    g = 2 * (st & 1) + hf
    if do_setup:
        a(f"s_add_u32 s{T2}, s{RW}, {2*g}")
        a(f"s_and_b32 s{T2}, s{T2}, 7")
        a(f"s_lshl_b32 s{T2}, s{T2}, 12")
        a(f"s_add_u32 s{T2}, s{T2}, s66")
        a(f"s_add_u32 m0, s67, {st*8192+hf*4096}")
        if st < 2: a(f"s_xor_b32 s{T2}, s{T2}, 0x10000")
        else: a("s_nop 0")
    if setup_only: return
    for q in range(4):
        dma(14, WS, T2, q * 1024, f"o{st}{hf}", vm, "sc1 ")
o_half(0, 0, setup_only=True)
a(f"s_waitcnt vmcnt(0)\ns_atomic_add s{ONE}, s[22:23], s69")
stx()
a("s_barrier")
stx()
o_half(0, 0, do_setup=False); o_half(0, 1)
for st in range(3):
    o_half(st + 1, 0); o_half(st + 1, 1)
    vm.wait(f"o{st}1"); a("s_barrier")
vm.wait("o31"); a("s_barrier")
if STAMPS:
    while stx.n < STAMPS: stx()
    a("Lstamps:")
    a(f"v_subrev_u32 v40, {SWAVE*64}, v0")
    emit_stamp_store(a, 0, STAMPS, 70, 22, 2, 20, stmp=60, tid="v40")
a("Lend:")
a("s_endpgm")
for r in rare:
    a(r)
a("Lcode_end:")
open(sys.argv[1], "w").write(file_text([(NAME + "_kernel", 256, 512, 163840)], [(NAME + "_kernel", a.text(), 256, None)]))
```

```python
import sys, struct
from asmlib import *

opts = dict(o.split("=") if "=" in o else (o, "1") for o in sys.argv[2:])
STAMPS = int(opts.get("stamps", 0))
SWAVE = int(opts.get("swave", 0))
ROTMODE = opts.get("rot", "2")
LAGA = int(opts.get("lag", 6))
EARLY = int(opts.get("early", 4))
a = Asm()
XF = (opts.get("xf", "").replace("+", " ") + " ").lstrip()
WF = (opts.get("wf", "").replace("+", " ") + " ").lstrip()
QF = (opts.get("qf", "").replace("+", " ") + " ").lstrip()
OF = (opts.get("of", "").replace("+", " ") + " ").lstrip()
NTC = int(opts.get("ntc", 8))
OSF = opts.get("osf", "").replace("+", " ")

RSH = int(opts.get('rsh', 6))
RS = 1 << RSH
KVSTR = 1152 if RSH == 6 else 17 * RS
KVACC = 0x500000
KVCNT = 0x20000
OCNT = 0x30000
GBUF = 0x40000
OBUF = 0x100000
WS_BYTES = 0x700000
EPS = 0x358637bd
LOG2E = 0x3fb8aa3b
SPIN = int(opts.get("spin", 20000))
SL = [0, 32768, 65536, 98304, 131072]
WQ = SL[0]
STG = SL[2]
MISC = SL[4]
KVF = SL[4] + 4096
KVP = SL[4] + 8192

class Cnt:
    def __init__(self, name, mx): self.q = []; self.name = name; self.mx = mx
    def issue(self, tag): self.q.append(tag)
    def n_after(self, tag):
        idx = max(i for i, t in enumerate(self.q) if t == tag)
        return len(self.q) - 1 - idx
    def wait(self, *tags):
        n = min(self.mx, min(self.n_after(t) for t in tags))
        a(f"s_waitcnt {self.name}({n})")
def VM(): return Cnt("vmcnt", 63)
def LG(): return Cnt("lgkmcnt", 15)

class Stamper:
    def __init__(self, start=0): self.n = start
    def __call__(self):
        if STAMPS:
            assert self.n < STAMPS, self.n
            a(f"{'s_memtime' if 'cyc' in opts else 's_memrealtime'} s[{70+2*self.n}:{71+2*self.n}]")
            self.n += 1

X, W, WO, WS, OUT = 24, 28, 32, 40, 44
SLG, SEP = 36, 38
RT, CBK, RW, ONE = 48, 49, 50, 51
RB, CB, WV, ROT, XS, WSB, WL, T0, T1, T2, T3, WOS, ROT3, T4 = 52, 53, 54, 55, 56, 57, 58, 59, 60, 61, 62, 63, 64, 65

def mfma(d, sa, sb, c=None):
    cc = f"v[{d}:{d+15}]" if c is None else c
    a(f"v_mfma_f32_32x32x16_bf16 v[{d}:{d+15}], v[{sa}:{sa+3}], v[{sb}:{sb+3}], {cc}")
def mfma16(d, sa, sb, c=None):
    cc = f"v[{d}:{d+3}]" if c is None else c
    a(f"v_mfma_f32_16x16x32_bf16 v[{d}:{d+3}], v[{sa}:{sa+3}], v[{sb}:{sb+3}], {cc}")
def tr(r, addr, off):
    a(f"ds_read_b64_tr_b16 v[{r}:{r+1}], v{addr} offset:{off}")
def phi_ops(acc, n, tmp, pk=False):
    ops = []
    if pk:
        for r in range(0, n, 2):
            ops.append(f"v_pk_fma_f32 v[{tmp+r}:{tmp+r+1}], v[{acc+r}:{acc+r+1}], s[{SLG}:{SLG+1}], s[{SLG}:{SLG+1}] neg_lo:[0,0,1] neg_hi:[0,0,1]")
    else:
        for r in range(n):
            ops.append(f"v_fma_f32 v{tmp+r}, v{acc+r}, s{SLG}, -s{SLG}")
    for r in range(n):
        ops.append(f"v_exp_f32 v{tmp+r}, v{tmp+r} clamp")
        if r >= 2:
            ops.append(f"v_max_f32 v{acc+r-2}, v{acc+r-2}, v{tmp+r-2}")
    ops.append(f"v_max_f32 v{acc+n-2}, v{acc+n-2}, v{tmp+n-2}")
    ops.append(f"v_max_f32 v{acc+n-1}, v{acc+n-1}, v{tmp+n-1}")
    if pk:
        for r in range(0, n, 2):
            ops.append(f"v_pk_add_f32 v[{acc+r}:{acc+r+1}], v[{acc+r}:{acc+r+1}], s[{SEP}:{SEP+1}]")
    else:
        for r in range(n):
            ops.append(f"v_add_f32 v{acc+r}, s{SEP}, v{acc+r}")
    for r in range(n // 2):
        ops.append(f"v_cvt_pk_bf16_f32 v{acc+r}, v{acc+2*r}, v{acc+2*r+1}")
    return ops
def spin(label, body, cnt, sleep=None, mult=1):
    a(f"s_mov_b32 s{cnt}, 0\n{label}_top:")
    a(body)
    a(f"s_cbranch_vccz {label}_done")
    if sleep: a(f"s_sleep {sleep}")
    a(f"s_add_u32 s{cnt}, s{cnt}, 1\ns_cmp_lt_u32 s{cnt}, {SPIN*mult}\ns_cbranch_scc1 {label}_top")
    a(f"{label}_done:")
def sspin(label, body, cnt, sleep=None):
    a(f"s_mov_b32 s{cnt}, 0\n{label}_top:")
    a(body)
    a(f"s_cbranch_scc1 {label}_done")
    if sleep: a(f"s_sleep {sleep}")
    a(f"s_add_u32 s{cnt}, s{cnt}, 1\ns_cmp_lt_u32 s{cnt}, {SPIN}\ns_cbranch_scc1 {label}_top")
    a(f"{label}_done:")
rare = []
def lds_check(label, vtmp, vaddr, off, val, cnt):
    a(f"v_cmp_ne_u32 vcc, {val}, v{vtmp}\ns_cbranch_vccnz {label}\n{label}_done:")
    rare.append(f"""{label}:
s_mov_b32 s{cnt}, 0
{label}_top:
ds_read_b32 v{vtmp}, v{vaddr} offset:{off}
s_waitcnt lgkmcnt(0)
v_cmp_ne_u32 vcc, {val}, v{vtmp}
s_cbranch_vccz {label}_done
s_add_u32 s{cnt}, s{cnt}, 1
s_cmp_lt_u32 s{cnt}, {SPIN*8}
s_cbranch_scc1 {label}_top
s_branch {label}_done""")
def lds_add(vaddr, vone, off):
    a(f"s_mov_b64 exec, 1\nds_add_u32 v{vaddr}, v{vone} offset:{off}\ns_mov_b64 exec, -1")
def dma(voff, sr, soff, off, tag, vmq, extra=""):
    o = f"offset:{off} " if off else ""
    a(f"buffer_load_dwordx4 v{voff}, s[{sr}:{sr+3}], s{soff} offen {o}{extra}lds")
    vmq.issue(tag)

st = Stamper()
st()
a(f"""
s_load_dwordx16 s[4:19], s[0:1], 0
s_load_dwordx4 s[20:23], s[0:1], 64
s_cmp_ge_u32 s2, 256
s_cbranch_scc1 Lend
v_lshrrev_b32 v20, 6, v0
v_and_b32 v1, 63, v0
v_readfirstlane_b32 s{WV}, v20
s_and_b32 s{T0}, s2, 7
s_lshr_b32 s{T1}, s2, 3
s_and_b32 s{CBK}, s{T1}, 7
s_lshr_b32 s{T2}, s{T1}, 3
s_and_b32 s{RB}, s{T0}, 1
s_lshl_b32 s{RB}, s{RB}, 3
s_add_u32 s{RB}, s{RB}, s{CBK}
s_lshr_b32 s{CB}, s{T0}, 1
s_lshl_b32 s{CB}, s{CB}, 2
s_add_u32 s{CB}, s{CB}, s{T2}
s_lshl_b32 s{RT}, s{T0}, 2
s_add_u32 s{RT}, s{RT}, s{T2}
s_lshl_b32 s{ROT3}, s{T2}, 1
s_lshl_b32 s{T3}, s{CBK}, {opts.get("orot", 3)}
s_add_u32 s{ROT3}, s{ROT3}, s{T3}
""")
if "m84" in opts:
    a(f"""s_lshr_b32 s{RT}, s{T0}, 1
s_lshl_b32 s{RT}, s{RT}, 3
s_add_u32 s{RT}, s{RT}, s{CBK}
s_and_b32 s3, s{T0}, 1
s_lshl_b32 s3, s3, 2
s_add_u32 s3, s3, s{T2}
s_lshl_b32 s{ROT3}, s{T2}, {opts.get("m84r", 3)}
s_add_u32 s{ROT3}, s{ROT3}, s{CBK}""")
else:
    a(f"s_mov_b32 s3, s{CBK}")
a(f"""
s_and_b32 s{WL}, s{WV}, 3
s_and_b32 s{RW}, s{WL}, 1
s_add_u32 s{RW}, s{RW}, s{ROT3}
s_mov_b32 s{ONE}, 1
s_cmp_lt_u32 s{WV}, 4
s_cbranch_scc1 Lx
""")

vm = VM()
sty = Stamper(1)
if ROTMODE == "8":
    a(f"s_mov_b32 s{ROT}, s{ROT3}")
elif ROTMODE == "0":
    a(f"s_mov_b32 s{ROT}, 0")
elif ROTMODE == "2":
    a(f"s_add_u32 s{ROT}, s{CBK}, s{T2}\ns_lshl_b32 s{ROT}, s{ROT}, 2")
elif ROTMODE == "2d":
    a(f"s_add_u32 s{ROT}, s{CBK}, s{T2}\ns_lshl_b32 s{ROT}, s{ROT}, 1\ns_add_u32 s{ROT}, s{ROT}, s{T0}\ns_lshl_b32 s{ROT}, s{ROT}, 1\ns_and_b32 s{ROT}, s{ROT}, 6\ns_lshr_b32 s{T3}, s{T0}, 1\ns_add_u32 s{ROT}, s{ROT}, s{T3}")
elif ROTMODE == "2x":
    a(f"s_add_u32 s{ROT}, s{CBK}, s{T2}\ns_lshl_b32 s{ROT}, s{ROT}, 2\ns_lshr_b32 s{T3}, s{T0}, 1\ns_add_u32 s{ROT}, s{ROT}, s{T3}")
elif ROTMODE == "0d":
    a(f"s_lshr_b32 s{ROT}, s{T0}, 1\ns_lshl_b32 s{ROT}, s{ROT}, 1\ns_and_b32 s{T3}, s{T0}, 1\ns_lshl_b32 s{T3}, s{T3}, 2\ns_add_u32 s{ROT}, s{ROT}, s{T3}")
elif ROTMODE == "4d":
    a(f"s_add_u32 s{ROT}, s{CBK}, s{T2}\ns_lshl_b32 s{ROT}, s{ROT}, 1\ns_lshr_b32 s{T3}, s{T0}, 1\ns_add_u32 s{T3}, s{T3}, s{T0}\ns_and_b32 s{T3}, s{T3}, 1\ns_add_u32 s{ROT}, s{ROT}, s{T3}")
elif ROTMODE == "4":
    a(f"s_add_u32 s{ROT}, s{CBK}, s{T2}\ns_lshl_b32 s{ROT}, s{ROT}, 1")
a(f"""
v_lshrrev_b32 v20, 3, v1
v_and_b32 v21, 7, v1
v_lshrrev_b32 v22, 4, v1
v_xor_b32 v23, v21, v22
v_lshlrev_b32 v2, 10, v20
v_lshl_add_u32 v2, v23, 4, v2
v_xor_b32 v3, 64, v2
v_add_u32 v3, {8192-1024}, v3
v_add_u32 v4, {2*(8192-1024)}, v2
v_add_u32 v5, {2*(8192-1024)}, v3
v_and_b32 v23, 1, v22
v_lshlrev_b32 v24, 1, v23
v_xor_b32 v24, v21, v24
v_mul_u32_u24 v25, 3072, v20
v_lshl_add_u32 v6, v24, 4, v25
v_xor_b32 v7, 64, v6
v_add_u32 v7, {8*3072-1024}, v7
v_add_u32 v10, 1024, v6
v_add_u32 v11, 1024, v7
s_lshl_b32 s{XS}, s{RB}, 17
s_lshl_b32 s{T0}, s{WL}, 15
s_add_u32 s{XS}, s{XS}, s{T0}
s_and_b32 s{WSB}, s{CB}, 7
s_lshl_b32 s{WSB}, s{WSB}, 7
s_mul_i32 s66, s{WL}, {16*3072}
s_add_u32 s66, s66, s{WSB}
s_lshl_b32 s67, s{WL}, 12
s_mov_b32 s{X+2}, {2048*1024}
s_mov_b32 s{X+3}, 0x20000
s_mov_b32 s{W+2}, {512*3072}
s_mov_b32 s{W+3}, 0x20000
""")
def chunk_setup(c):
    slot = SL[c % 4]
    a(f"s_add_u32 s{T0}, s{ROT}, {c}")
    a(f"s_and_b32 s{T0}, s{T0}, 7")
    a(f"s_lshl_b32 s{T1}, s{T0}, 7")
    a(f"s_add_u32 m0, s67, {slot}")
    a(f"s_add_u32 s{T1}, s{T1}, s{XS}")
def issue_chunk(c, setup=True):
    slot = SL[c % 4]
    if setup: chunk_setup(c)
    for q in range(4):
        dma(2 + q, X, T1, q * 1024, f"c{c}", vm, XF if c < NTC else "")
        if q == 0:
            a(f"s_mul_i32 s{T2}, s{T0}, {64*3072}")
        if q == 1:
            a(f"s_add_u32 s{T2}, s{T2}, s66")
    a(f"s_add_u32 m0, s67, {slot+16384}")
    a("s_nop 0")
    dma(10, W, T2, 0, f"c{c}", vm, WF if c < NTC else "")
    dma(11, W, T2, 1024, f"c{c}", vm, WF if c < NTC else "")
    dma(6, W, T2, 2048, f"c{c}", vm, WF if c < NTC else "")
    dma(7, W, T2, 3072, f"c{c}", vm, WF if c < NTC else "")
def issue_wq(h):
    if "nowqr" not in opts:
        for i in range(4):
            a(f"s_lshr_b32 s{T0}, s{CBK}, 1")
            a(f"s_add_u32 s{T0}, s{T0}, {i}")
            a(f"s_and_b32 s{T0}, s{T0}, 3")
            a(f"s_add_u32 s{T2}, s{T0}, s{ROT}")
            a(f"s_add_u32 s{T2}, s{T2}, {4*h}")
            a(f"s_and_b32 s{T2}, s{T2}, 7")
            a(f"s_mul_i32 s{T2}, s{T2}, {64*3072}")
            a(f"s_lshl_b32 s{T0}, s{T0}, 13")
            a(f"s_lshr_b32 s{T1}, s67, 1")
            a(f"s_add_u32 s{T0}, s{T0}, s{T1}")
            a(f"s_add_u32 m0, s{T0}, {WQ+h*32768}")
            a(f"s_add_u32 s{T2}, s{T2}, s66")
            for q in range(2):
                dma(26 + q, W, T2, q * 1024, f"q{h}", vm, QF)
        return
    a(f"s_add_u32 s{T0}, s{ROT}, s{WL}")
    a(f"s_add_u32 s{T0}, s{T0}, {4*h}")
    a(f"s_and_b32 s{T0}, s{T0}, 7")
    a(f"s_mul_i32 s{T2}, s{T0}, {64*3072}")
    a(f"s_lshl_b32 s{T1}, s67, 1")
    a(f"s_add_u32 m0, s{T1}, {WQ+h*32768}")
    a(f"s_add_u32 s{T2}, s{T2}, s{WSB}")
    for q in range(4):
        dma(26 + q, W, T2, q * 1024, f"q{h}", vm, QF)
    a(f"s_add_u32 m0, s{T1}, {WQ+h*32768+4096}")
    a(f"s_add_u32 s{T2}, s{T2}, {32*3072}")
    for q in range(4):
        dma(26 + q, W, T2, q * 1024, f"q{h}", vm, QF)
chunk_setup(0)
a(f"""
s_cmp_ge_u32 s{CB}, 8
s_waitcnt lgkmcnt(0)
s_mov_b32 s{X}, s4
s_mov_b32 s{X+1}, s5
s_cselect_b32 s{W}, s12, s6
s_cselect_b32 s{W+1}, s13, s7
""")
issue_chunk(0, setup=False)
sty()
a(f"""
v_lshlrev_b32 v24, 2, v23
v_xor_b32 v24, v21, v24
v_lshl_add_u32 v26, v24, 4, v25
v_add_u32 v27, {8*3072-1024}, v26
v_add_u32 v28, {2*(8*3072-1024)}, v26
v_add_u32 v29, {3*(8*3072-1024)}, v26
; wo piece offsets v12..15 : 8 rows x 128 B, src chunk = p ^ (4*((L>>4)&1))
v_lshlrev_b32 v12, 10, v20
v_lshl_add_u32 v12, v24, 4, v12
v_add_u32 v13, {8192-1024}, v12
v_add_u32 v14, {2*(8192-1024)}, v12
v_add_u32 v15, {3*(8192-1024)}, v12
s_lshl_b32 s69, s3, 7
s_and_b32 s{T0}, s{WL}, 1
s_lshl_b32 s{T1}, s{T0}, 6
s_add_u32 s{WOS}, s69, s{T1}
s_lshl_b32 s68, s{WL}, 14
v_lshrrev_b32 v8, 5, v1
v_bfe_u32 v17, v1, 2, 2
v_lshl_add_u32 v16, v8, 2, v17
v_lshlrev_b32 v16, 7, v16
v_lshl_add_u32 v16, v23, 5, v16
v_and_b32 v24, 3, v1
v_lshl_add_u32 v16, v24, 3, v16
v_bfe_u32 v17, v1, 3, 1
v_xor_b32 v25, s{T0}, v17
v_lshl_add_u32 v16, v25, 6, v16
s_add_u32 s{T1}, s68, {STG}
v_add_u32 v16, s{T1}, v16
v_xor_b32 v18, 0x4000, v16
s_lshr_b32 s{T1}, s{WL}, 1
s_lshl_b32 s{T1}, s{T1}, 2
s_add_u32 s{T1}, s{T1}, {MISC+16}
v_mov_b32 v46, s{T1}
v_lshlrev_b32 v9, {RSH+2}, v22
v_lshl_add_u32 v9, v24, 2, v9
v_bfe_u32 v25, v1, 2, 1
v_lshl_add_u32 v9, v25, 5, v9
v_lshl_add_u32 v9, v17, 4, v9
v_lshlrev_b32 v19, 4, v1
v_mov_b32 v30, {MISC}
v_mov_b32 v31, 1
s_lshl_b32 s{T1}, s{WL}, 11
s_add_u32 s{T1}, s{T1}, {KVP}
v_add_u32 v20, s{T1}, v19
v_lshl_add_u32 v21, v1, 2, s{T1}
s_cmp_ge_u32 s{WL}, 2
s_cselect_b32 s8, s14, s8
s_cselect_b32 s9, s15, s9
""")
srd(a, WO, 8, 512 * 1024)
a(f"s_and_b32 s15, s{'2' if 'hx' in opts else WL}, 1\ns_lshl_b32 s14, s15, 15\ns_add_u32 s14, s14, s69\ns_lshl_b32 s15, s15, 12\ns_add_u32 s15, s15, s68")
srd(a, WS, 22, WS_BYTES)
srd(a, OUT, 18, 2048 * 1024)
def gate_loads():
    a(f"""
s_lshl_b32 s38, s{CB}, 11
s_add_u32 s38, s38, s{XS}
buffer_load_dwordx4 v[48:51], v19, s[{X}:{X+3}], s38 offen
buffer_load_dwordx4 v[52:55], v19, s[{X}:{X+3}], s38 offen offset:1024
""")
    for _ in range(2): vm.issue("gate")
issue_chunk(1)
a("global_load_dwordx4 v[40:43], v19, s[16:17]")
vm.issue("gw")
for i in range(8):
    vm.wait(f"c{i}")
    a("s_barrier")
    if i in (0, 3, 7): sty()
    if i == 6: a(f"s_load_dword s{T4}, s[20:21], 0")
    if i == 7 and "nogf" not in opts: gate_loads()
    if i + 2 < 8:
        issue_chunk(i + 2)
    else:
        issue_wq(i - 6)
if "nogf" in opts: gate_loads()
def issue_wo(sg, part=(0, 1)):
    a(f"s_add_u32 s{T2}, s{RW}, {2*sg}")
    a(f"s_and_b32 s{T2}, s{T2}, 7")
    a(f"s_lshl_b32 s{T2}, s{T2}, 16")
    a(f"s_add_u32 m0, s15, {STG + (sg % 2) * 8192}")
    a(f"s_add_u32 s{T2}, s{T2}, s14")
    if 0 in part:
        for q in range(4):
            dma(12 + q, WO, T2, q * 1024, f"wo{sg}", vm, OF)
    if 1 in part:
        a(f"s_xor_b32 m0, m0, 4096")
        a(f"s_xor_b32 s{T2}, s{T2}, 32768")
        for q in range(4):
            dma(12 + q, WO, T2, q * 1024, f"wo{sg}", vm, OF)
spin("Lad", "ds_read_b32 v17, v30 offset:12\ns_waitcnt lgkmcnt(0)\nv_cmp_gt_u32 vcc, 4, v17", T3, sleep=1, mult=8)
if EARLY in (1, 2, 4, 5): issue_wo(0, part=(0,))
if "nogf" in opts:
    vm.wait("q1")
    lds_add(30, 31, 0)
a(f"""
s_lshr_b32 s66, s38, 8
s_add_u32 s66, s66, {GBUF}
s_lshl_b32 s{T0}, s{CB}, 2
s_add_u32 s{T0}, s{T0}, s{WL}
s_mul_i32 s{XS}, s{T0}, {KVSTR}
s_add_u32 s{XS}, s{XS}, {KVACC}
s_add_u32 s39, s{XS}, {16*RS}
s_lshl_b32 s{WSB}, s{T0}, 10
s_add_u32 s{WSB}, s{WSB}, {KVCNT}
v_mov_b32 v44, 0
v_mov_b32 v45, 0
s_waitcnt lgkmcnt(0)
s_cmp_ge_u32 s{T4}, 64
s_cbranch_scc0 Lzc
Lzc_done:
""")
rare.append(f"""Lzc:
s_mov_b32 s{T3}, 0
Lzc_top:
s_load_dword s{T4}, s[20:21], 0 glc
s_waitcnt lgkmcnt(0)
s_cmp_ge_u32 s{T4}, 64
s_cbranch_scc1 Lzc_done
s_sleep 4
s_add_u32 s{T3}, s{T3}, 1
s_cmp_lt_u32 s{T3}, {SPIN}
s_cbranch_scc1 Lzc_top
s_branch Lzc_done""")
sty()
vm.wait("gate")
for k in range(4):
    a(f"v_dot2c_f32_bf16 v44, v{48+k}, v{40+k}")
    a(f"v_dot2c_f32_bf16 v45, v{52+k}, v{40+k}")
a(f"""
s_nop 2
v_permlane32_swap_b32 v44, v45
s_nop 1
v_add_f32 v44, v44, v45
s_nop 1
v_add_f32_dpp v44, v44, v44 row_ror:8 row_mask:0xf bank_mask:0xf
s_nop 1
v_add_f32_dpp v44, v44, v44 row_ror:4 row_mask:0xf bank_mask:0xf
s_nop 1
v_add_f32_dpp v44, v44, v44 row_ror:2 row_mask:0xf bank_mask:0xf
s_nop 1
v_add_f32_dpp v44, v44, v44 row_ror:1 row_mask:0xf bank_mask:0xf
v_mov_b32 v45, v44
s_nop 1
v_permlane16_swap_b32 v44, v45
s_nop 1
v_add_f32 v44, v44, v45
v_mul_f32 v44, 0xbfb8aa3b, v44
v_exp_f32 v44, v44
v_lshlrev_b32 v45, 2, v8
v_add_f32 v44, 1.0, v44
v_rcp_f32 v44, v44
""")
if "nogf" not in opts:
    vm.wait("q1")
    lds_add(30, 31, 0)
a("s_setprio 2")
spin("Lkp", "ds_read_b32 v36, v21 offset:1024\nds_read_b128 v[32:35], v20\ns_waitcnt lgkmcnt(0)\nv_cmp_eq_u32 vcc, 0, v36", T3, sleep=1, mult=8)
for r in range(4):
    a(f"buffer_atomic_add_f32 v{32+r}, v9, s[{WS}:{WS+3}], s{XS} offen offset:{r*RS}")
    vm.issue("atom")
a(f"""
s_mov_b64 exec, 0xffff
buffer_atomic_add_f32 v36, v9, s[{WS}:{WS+3}], s39 offen
s_mov_b64 exec, -1
""")
vm.issue("atom")
a(f"""
s_mov_b32 exec_lo, 1
s_mov_b32 exec_hi, 1
buffer_store_dword v44, v45, s[{WS}:{WS+3}], s66 offen sc1
s_mov_b64 exec, -1
""")
vm.issue("gst")
sty()
if EARLY == 0:
    lds_add(30, 31, 12)
    spin("Lai", "ds_read_b32 v17, v30 offset:12\ns_waitcnt lgkmcnt(0)\nv_cmp_gt_u32 vcc, 8, v17", T3, mult=8)
    issue_wo(0)
if EARLY in (4, 5): issue_wo(0, part=(1,))
if EARLY == 6: issue_wo(0, part=(0,))
if EARLY == 5: issue_wo(1, part=(0,))
a(f"""
s_mov_b32 s{T4}, 1
s_mov_b32 s38, 16
v_and_b32 v2, 31, v1
v_min_u32 v3, 16, v2
v_lshlrev_b32 v5, 5, v8
v_lshl_add_u32 v3, v3, {RSH}, v5
s_lshl_b32 s{T0}, s{WL}, 10
s_add_u32 s{T0}, s{T0}, {KVF}
v_add_u32 v7, s{T0}, v19
""")
vm.wait("atom")
a(f"s_atomic_add s{T4}, s[22:23], s{WSB} glc")
sty()
WR = 128
def wreg(sg, hl, c): return WR + ((sg * 4 + hl) * 2 + c) * 4
def wo_tr(sg):
    vm.wait(f"wo{sg}")
    for hl in range(4):
        for c in range(2):
            r = wreg(sg, hl, c)
            off = (sg % 2) * 8192 + hl * 2048
            tr(r, 16 + 2 * c, off); tr(r + 2, 16 + 2 * c, off + 1024)
fst = [sty.n + 1]
def fetch():
    a(f"""buffer_load_dwordx4 v[32:35], v3, s[{WS}:{WS+3}], s{XS} offen sc1
buffer_load_dwordx4 v[36:39], v3, s[{WS}:{WS+3}], s{XS} offen offset:16 sc1
s_mov_b32 s38, -1
s_waitcnt vmcnt(0)
v_cvt_pk_bf16_f32 v32, v32, v33
v_cvt_pk_bf16_f32 v33, v34, v35
v_cvt_pk_bf16_f32 v34, v36, v37
v_cvt_pk_bf16_f32 v35, v38, v39
ds_write_b128 v7, v[32:35]""")
    lds_add(30, 31, 4)
    a("s_setprio 0")
    if STAMPS: a(f"{'s_memtime' if 'cyc' in opts else 's_memrealtime'} s[{70+2*fst[0]}:{71+2*fst[0]}]")
def maybe_fetch(k, poll=True):
    a(f"s_cmp_eq_u32 s{T4}, s38\ns_cbranch_scc0 Lmf{k}")
    fetch()
    a(f"Lmf{k}:")
    if poll: a(f"s_load_dword s{T4}, s[22:23], s{WSB} glc")
def pair_sync(label, tag, val):
    vm.wait(tag)
    lds_add(46, 31, 0)
    spin(label, f"ds_read_b32 v17, v46\ns_waitcnt lgkmcnt(0)\nv_cmp_gt_u32 vcc, {val}, v17", T3, mult=8)
def wo_tr2(sg):
    for hl in range(4):
        for c in range(2):
            r = wreg(sg, hl, c)
            off = (sg % 2) * 8192 + hl * 2048
            tr(r, 16 + 2 * c, off); tr(r + 2, 16 + 2 * c, off + 1024)
if EARLY == 2 or EARLY == 6: issue_wo(0, part=(1,))
if EARLY == 3: issue_wo(0)
if EARLY not in (2, 3, 6): issue_wo(1, part=((1,) if EARLY == 5 else (0, 1)))
a(f"s_waitcnt lgkmcnt(0)\ns_add_u32 s{T4}, s{T4}, 1")
KO = opts.get("ko", "0")
if KO == "0":
    maybe_fetch(0, poll=False)
    if EARLY in (2, 3, 6): issue_wo(1)
    pair_sync("Lps0", "wo1", 2)
    a(f"s_load_dword s{T4}, s[22:23], s{WSB} glc")
elif KO == "1":
    maybe_fetch(0, poll=True)
    vm.wait("wo1")
    lds_add(46, 31, 0)
    a("s_waitcnt lgkmcnt(0)")
    maybe_fetch(1, poll=False)
    spin("Lps0", f"ds_read_b32 v17, v46\ns_waitcnt lgkmcnt(0)\nv_cmp_gt_u32 vcc, 2, v17", T3, mult=8)
    a(f"s_load_dword s{T4}, s[22:23], s{WSB} glc")
elif KO == "2":
    a(f"s_cmp_eq_u32 s{T4}, 16\ns_cbranch_scc1 Lpk2_done")
    sspin("Lpk2", f"s_load_dword s{T4}, s[22:23], s{WSB} glc\ns_waitcnt lgkmcnt(0)\ns_cmp_eq_u32 s{T4}, 16", T3, sleep=int(opts.get("ksleep", 1)))
    fetch()
    pair_sync("Lps0", "wo1", 2)
wo_tr2(0); wo_tr2(1)
a("s_waitcnt lgkmcnt(0)")
lds_add(46, 31, 0)
sty()
sty.n += 1
a(f"""
s_waitcnt lgkmcnt(0)
s_cmp_eq_u32 s38, -1
s_cbranch_scc1 Lkv_have
s_cmp_eq_u32 s{T4}, 16
s_cbranch_scc1 Lpollkv_done
""")
sspin("Lpollkv", f"s_load_dword s{T4}, s[22:23], s{WSB} glc\ns_waitcnt lgkmcnt(0)\ns_cmp_eq_u32 s{T4}, 16", T3, sleep=int(opts.get("ksleep", 1)))
LPS1 = "ds_read_b32 v17, v46\ns_waitcnt lgkmcnt(0)\nv_cmp_gt_u32 vcc, 4, v17"
LXO = "ds_read_b32 v17, v30 offset:8\ns_waitcnt lgkmcnt(0)\nv_cmp_gt_u32 vcc, 4, v17"
R2 = opts.get("r2", "1")
fetch()
a("Lkv_have:")
if R2 == "0":
    spin("Lxo", LXO, T3, sleep=1, mult=8)
    spin("Lps1", LPS1, T3, mult=8)
    issue_wo(2); issue_wo(3)
elif R2 == "1":
    spin("Lps1", LPS1, T3, mult=8)
    issue_wo(2)
    spin("Lxo", LXO, T3, sleep=1, mult=8)
    issue_wo(3)
elif R2 == "2":
    spin("Lps1", LPS1, T3, mult=8)
    issue_wo(2); issue_wo(3)
elif R2 == "3":
    spin("Lps1", LPS1, T3, mult=8)
    issue_wo(2, part=(0,))
    spin("Lxo", LXO, T3, sleep=1, mult=8)
    issue_wo(2, part=(1,)); issue_wo(3)
a(f"""
; P3 addressing
s_lshl_b32 s{T0}, s{WL}, 15
v_add_u32 v11, s{T0}, v19
v_xor_b32 v12, 0x8000, v11
s_lshl_b32 s{T0}, s{WL}, 12
s_add_u32 s{T0}, s{T0}, {SL[4]+16384}
v_add_u32 v13, s{T0}, v19
v_xor_b32 v14, 0x2000, v13
""")
TM = opts.get("tm", "0")
if TM == "0":
    a("v_lshlrev_b32 v10, 10, v2\nv_lshl_add_u32 v10, v8, 4, v10")
elif TM == "64":
    a(f"""s_lshl_b32 s{T0}, s{WL}, 11
s_add_u32 s{T0}, s{T0}, {KVP}
v_lshl_add_u32 v3, v2, 6, s{T0}
v_bfe_u32 v4, v1, 1, 2
v_xor_b32 v4, v4, v8
v_lshl_add_u32 v3, v4, 4, v3
v_xor_b32 v4, 32, v3
v_lshrrev_b32 v6, 2, v1
v_lshl_add_u32 v5, v6, 6, s{T0}
v_bfe_u32 v7, v1, 3, 2
v_and_b32 v9, 3, v1
v_xor_b32 v7, v7, v9
v_lshl_add_u32 v5, v7, 4, v5
v_lshlrev_b32 v10, 10, v6
v_lshl_add_u32 v10, v9, 4, v10""")
elif TM == "128":
    a(f"""s_lshr_b32 s{T0}, s{WL}, 1
s_lshl_b32 s{T0}, s{T0}, 12
s_add_u32 s{T0}, s{T0}, {KVP}
v_lshl_add_u32 v3, v2, 7, s{T0}
s_and_b32 s{T1}, s{WL}, 1
s_lshl_b32 s{T2}, s{T1}, 2
v_and_b32 v9, 7, v1
v_xor_b32 v4, v9, v8
v_xor_b32 v4, s{T2}, v4
v_lshl_add_u32 v3, v4, 4, v3
v_xor_b32 v4, 32, v3
s_lshl_b32 s{T2}, s{T1}, 11
s_add_u32 s{T0}, s{T0}, s{T2}
v_lshrrev_b32 v6, 3, v1
v_lshl_add_u32 v5, v6, 7, s{T0}
v_xor_b32 v7, v6, v9
v_lshl_add_u32 v5, v7, 4, v5
v_lshlrev_b32 v10, 10, v6
v_lshl_add_u32 v10, v9, 4, v10
s_lshl_b32 s{WOS}, s{T1}, 14
s_add_u32 s{WOS}, s{WOS}, s69""")
a(f"""
v_lshlrev_b32 v2, 2, v2
s_lshl_b32 s{T1}, s{RT}, 1
s_lshr_b32 s{T0}, s{WL}, 1
s_add_u32 s{T1}, s{T1}, s{T0}
s_lshl_b32 s66, s{T1}, 7
s_add_u32 s66, s66, {GBUF}
s_lshl_b32 s{T2}, s{T1}, 10
s_add_u32 s{T2}, s{T2}, {OCNT}
s_lshl_b32 s{T1}, s{T1}, 15
s_add_u32 s{T1}, s{T1}, s{WOS}
""")
pair_sync("Lps2", "wo3", 6)
wo_tr2(2); wo_tr2(3)
a(f"""
s_waitcnt lgkmcnt(0)
s_bitcmp1_b32 s{WL}, 0
s_cbranch_scc1 Lpollo_done
""")
if "ovec" in opts:
    a("v_mov_b32 v6, 0\ns_sleep %s\ns_mov_b64 exec, 1" % opts["ovec"])
    spin("Lpollo", f"buffer_load_dword v17, v6, s[{WS}:{WS+3}], s{T2} offen sc1\ns_waitcnt vmcnt(0)\nv_cmp_ne_u32 vcc, 16, v17", T3, sleep=int(opts.get("osleep", 1)))
    a("s_mov_b64 exec, -1")
else:
    sspin("Lpollo", f"s_load_dword s{T4}, s[22:23], s{T2} glc\ns_waitcnt lgkmcnt(0)\ns_cmp_eq_u32 s{T4}, 16", T3, sleep=int(opts.get("osleep", 1)))
if "p3st" in opts: sty.n = 1
sty()
a("s_barrier")
a(f"buffer_load_dword v15, v2, s[{WS}:{WS+3}], s66 offen sc1")
ACC = [32, 48]
OB = 64; NBUF = 16
lg = LG()
items = [(st, k, c) for st in range(4) for k in range(8) for c in range(2)]
def rdO(n):
    st, k, c = items[n]
    r = OB + 4 * (n % NBUF)
    a(f"ds_read_b128 v[{r}:{r+3}], v{11+c} offset:{st*8192 + k*1024}")
    lg.issue(f"O{n}")
def mfO(n):
    st, k, c = items[n]
    if n % 2 == 0: lg.wait(f"O{min(n+1, 63)}")
    mfma(ACC[1 if st < 2 else 0], wreg(2 * (st & 1) + (k >> 2), k & 3, c), OB + 4 * (n % NBUF), "0" if n in (0, 32) else None)
LAG = int(opts.get("plag", 4))
done = 0
wq = list(range(4))
fin = ["s_waitcnt vmcnt(0)", "v_sub_f32 v16, 1.0, v15", f"s_cmp_ge_u32 s{WL}, 2\ns_cselect_b64 vcc, -1, 0",
       "v_cndmask_b32 v18, v15, v16, vcc", "v_cndmask_b32 v16, v16, v15, vcc"]
for n in range(64):
    if n % 16 == 0:
        if "p3st" in opts and n > 0: sty()
        if n == 48: lg.wait("W")
        a("s_barrier")
        if n == 0 or "p3st" in opts: sty()
        rdO(n); rdO(n + 1)
    if n % 16 < 14: rdO(n + 2)
    if n >= LAG:
        mfO(done); done += 1
        if done in (37, 38, 40, 42):
            k = wq.pop(0)
            a(f"ds_write_b128 v13, v[{48+4*k}:{51+4*k}] offset:{k*1024}"); lg.issue("W")
        if done >= 50 and done < 54:
            k = done - 50
            a(f"ds_read_b128 v[{48+4*k}:{51+4*k}], v14 offset:{k*1024}"); lg.issue("P")
        if done >= 54 and fin: a(fin.pop(0))
assert not wq and not fin
lg.wait("P")
vq = [f"v_mul_f32 v{48+r}, v{48+r}, v16" for r in range(16)]
while done < 64:
    mfO(done); done += 1
    for _ in range(16 // LAG if done < 64 else 16):
        if vq: a(vq.pop(0))
sty()
a("s_nop 7")
for r in range(0, 16, 2):
    a(f"v_pk_fma_f32 v[{32+r}:{33+r}], v[{32+r}:{33+r}], v[18:19], v[{48+r}:{49+r}] op_sel_hi:[1,0,1]")
for r in range(8):
    a(f"v_cvt_pk_bf16_f32 v{32+r}, v{32+2*r}, v{33+2*r}")
a(f"""
s_nop 1
v_permlane32_swap_b32 v32, v34
v_permlane32_swap_b32 v33, v35
v_permlane32_swap_b32 v36, v38
v_permlane32_swap_b32 v37, v39
""")
if TM == "0":
    a(f"""buffer_store_dwordx4 v[32:35], v10, s[{OUT}:{OUT+3}], s{T1} offen {OSF}
buffer_store_dwordx4 v[36:39], v10, s[{OUT}:{OUT+3}], s{T1} offen offset:32 {OSF}""")
else:
    a(f"""ds_write_b128 v3, v[32:35]
ds_write_b128 v4, v[36:39]
s_add_u32 s{T0}, s{T1}, {16384 if TM == "64" else 8192}""")
    if TM == "128": a("s_waitcnt lgkmcnt(0)\ns_barrier")
    a(f"""ds_read_b128 v[40:43], v5
ds_read_b128 v[44:47], v5 offset:1024
s_waitcnt lgkmcnt(1)
buffer_store_dwordx4 v[40:43], v10, s[{OUT}:{OUT+3}], s{T1} offen {OSF}
s_waitcnt lgkmcnt(0)
buffer_store_dwordx4 v[44:47], v10, s[{OUT}:{OUT+3}], s{T0} offen {OSF}""")
if STAMPS:
    sty()
    a("s_waitcnt vmcnt(0)")
    while sty.n < STAMPS: sty()
    a("s_branch Lstamps")
else:
    a("s_endpgm")

vm = VM()
stx = Stamper(1)
a("Lx:")
a(f"""
s_getpc_b64 s[66:67]
Lpc0:
s_sub_u32 s66, s66, Lpc0-{NAME}_kernel
s_subb_u32 s67, s67, 0
s_and_b32 s{T0}, s{CBK}, 3
s_lshl_b32 s{T0}, s{T0}, 2
s_add_u32 s{T0}, s{T0}, s{WL}
s_lshl_b32 s{T0}, s{T0}, 10
v_lshl_add_u32 v140, v1, 7, s{T0}
v_min_u32 v140, Lcode_end-{NAME}_kernel-4, v140
s_mov_b64 exec, 0xff
global_load_dword v252, v140, s[66:67]
s_mov_b64 exec, -1
v_lshlrev_b32 v14, 4, v1
v_mov_b32 v160, 0
v_mov_b32 v161, 0
v_mov_b32 v162, 0
v_mov_b32 v163, 0
v_mov_b32 v12, {MISC}
v_mov_b32 v13, 1
s_lshl_b32 s{T1}, s{WL}, 11
s_add_u32 s{T1}, s{T1}, {KVP}
v_add_u32 v5, s{T1}, v14
v_lshl_add_u32 v15, v1, 2, s{T1}
ds_write_b128 v12, v[160:163]
ds_write_b128 v12, v[160:163] offset:16
ds_write_b32 v15, v160 offset:1024
s_mov_b32 s{WS+2}, {WS_BYTES}
s_mov_b32 s{WS+3}, 0x20000
s_cmp_eq_u32 s{RB}, s{CB}
s_waitcnt lgkmcnt(0)
s_mov_b32 s{WS}, s22
s_mov_b32 s{WS+1}, s23
s_cbranch_scc0 Lnozero
s_lshl_b32 s{T0}, s{CB}, 2
s_add_u32 s{T0}, s{T0}, s{WL}
s_mul_i32 s{T1}, s{T0}, {KVSTR}
s_add_u32 s{T1}, s{T1}, {KVACC}
v_lshrrev_b32 v164, 2, v1
v_lshlrev_b32 v164, {RSH}, v164
v_and_b32 v165, 3, v1
v_lshl_add_u32 v164, v165, 4, v164
buffer_store_dwordx4 v[160:163], v164, s[{WS}:{WS+3}], s{T1} offen sc1
s_add_u32 s{T1}, s{T1}, {16*RS}
s_lshl_b32 s{T2}, s{T0}, 10
s_add_u32 s{T3}, s{T2}, {OCNT}
s_add_u32 s{T2}, s{T2}, {KVCNT}
s_mov_b64 exec, 0xf
buffer_store_dwordx4 v[160:163], v14, s[{WS}:{WS+3}], s{T2} offen sc1
buffer_store_dwordx4 v[160:163], v14, s[{WS}:{WS+3}], s{T3} offen sc1
buffer_store_dwordx4 v[160:163], v14, s[{WS}:{WS+3}], s{T1} offen sc1
s_mov_b64 exec, -1
Lnozero:
""")
if "ta" in opts:
    d = int(opts["ta"])
    a(f"""
{'s_sleep %d' % d if d > 1 else ''}
s_cmp_ge_u32 s{CB}, 8
s_cselect_b32 s6, s12, s6
s_cselect_b32 s7, s13, s7
s_cmp_eq_u32 s{WL}, 0
s_cbranch_scc0 Lta1
s_lshl_b32 s{T0}, s{RB}, 17
s_lshl_b32 s{T1}, s{CB}, 13
s_add_u32 s{T0}, s{T0}, s{T1}
v_lshl_add_u32 v142, v1, 7, s{T0}
global_load_dword v253, v142, s[4:5]
s_branch Lta_done
Lta1:
s_cmp_eq_u32 s{WL}, 3
s_cbranch_scc1 Lta3
s_mul_i32 s{T0}, s{RB}, {32*3072}
s_and_b32 s{T1}, s{CB}, 7
s_lshl_b32 s{T1}, s{T1}, 7
s_add_u32 s{T0}, s{T0}, s{T1}
s_sub_u32 s{T1}, s{WL}, 1
s_lshl_b32 s{T1}, s{T1}, 11
s_add_u32 s{T0}, s{T0}, s{T1}
v_and_b32 v142, 31, v1
v_mul_u32_u24 v142, 3072, v142
v_lshrrev_b32 v143, 5, v1
v_lshl_add_u32 v142, v143, 10, v142
v_add_u32 v142, s{T0}, v142
s_cmp_eq_u32 s{WL}, 2
s_cselect_b32 exec_hi, 0, -1
global_load_dword v253, v142, s[6:7]
s_branch Lta_done
Lta3:
s_lshl_b32 s{T0}, s{RT}, 14
s_lshl_b32 s{T1}, s{CBK}, 7
s_add_u32 s{T0}, s{T0}, s{T1}
v_lshl_add_u32 v142, v1, 10, s{T0}
s_mov_b64 exec, 0xffff
global_load_dword v253, v142, s[8:9]
global_load_dword v254, v142, s[14:15]
Lta_done:
s_mov_b64 exec, -1
""")
a(f"""
s_mov_b32 s{SLG}, 0x{LOG2E:x}
s_mov_b32 s{SLG+1}, 0x{LOG2E:x}
s_mov_b32 s{SEP}, 0x{EPS:x}
s_mov_b32 s{SEP+1}, 0x{EPS:x}
v_and_b32 v20, 15, v1
v_lshrrev_b32 v21, 4, v1
v_lshrrev_b32 v22, 1, v20
v_xor_b32 v22, v21, v22
v_lshlrev_b32 v2, 7, v20
v_lshl_add_u32 v2, v22, 4, v2
v_xor_b32 v3, 64, v2
; W base v4
v_lshrrev_b32 v24, 5, v1
v_lshlrev_b32 v4, 12, v24
v_and_b32 v25, 1, v21
v_lshl_add_u32 v4, v25, 10, v4
v_lshrrev_b32 v26, 2, v20
v_lshl_add_u32 v4, v26, 7, v4
v_bfe_u32 v23, v1, 3, 2
v_xor_b32 v23, s{WL}, v23
v_lshl_add_u32 v4, v23, 5, v4
v_and_b32 v23, 3, v1
v_lshl_add_u32 v4, v23, 3, v4
v_add_u32 v4, 16384, v4
v_bfe_u32 v22, v1, 3, 1
v_lshl_add_u32 v10, v24, 3, v26
v_lshlrev_b32 v10, 7, v10
v_lshl_add_u32 v10, v25, 5, v10
v_lshl_add_u32 v10, v23, 3, v10
v_lshl_add_u32 v10, v22, 6, v10
v_xor_b32 v11, 64, v10
v_and_b32 v20, 31, v1
s_lshl_b32 s{T0}, s{WL}, 12
v_lshl_add_u32 v6, v20, 7, s{T0}
v_bfe_u32 v25, v1, 1, 3
v_xor_b32 v25, v24, v25
v_lshl_add_u32 v6, v25, 4, v6
v_xor_b32 v7, 32, v6
v_xor_b32 v8, 64, v6
v_xor_b32 v9, 96, v6
s_lshl_b32 s{T1}, s{RB}, 2
s_add_u32 s{T1}, s{T1}, s{WL}
s_lshl_b32 s68, s{T1}, 16
s_lshl_b32 s{T3}, s{CB}, 12
s_add_u32 s68, s68, s{T3}
s_add_u32 s68, s68, {OBUF}
s_lshl_b32 s69, s{T1}, 10
s_add_u32 s69, s69, {OCNT}
s_lshr_b32 s{T2}, s{WL}, 1
s_lshl_b32 s66, s{RT}, 1
s_add_u32 s66, s66, s{T2}
s_lshl_b32 s66, s66, 16
s_lshl_b32 s{T2}, s{T2}, 15
s_add_u32 s66, s66, s{T2}
s_add_u32 s66, s66, {OBUF}
s_lshl_b32 s67, s{WL}, 15
""")
if "tlb" in opts:
    a(f"""
{'s_sleep ' + opts['tlb'] if opts['tlb'] != '1' else ''}
v_lshlrev_b32 v255, 16, v1
s_mov_b64 exec, 0xff
s_cmp_eq_u32 s{WL}, 2
s_cbranch_scc1 Ltl2
s_cmp_eq_u32 s{WL}, 3
s_cbranch_scc1 Ltl3
s_cmp_eq_u32 s{WL}, 1
s_cselect_b32 s24, s14, s8
s_cselect_b32 s25, s15, s9
s_lshl_b32 s{T0}, s2, 7
v_add_u32 v255, s{T0}, v255
global_load_dword v253, v255, s[24:25]
s_branch Ltl_done
Ltl2:
s_mov_b32 s{T0}, 0x8000
buffer_load_dword v253, v255, s[{WS}:{WS+3}], s{T0} offen sc1
s_sub_u32 s{T0}, s68, 0x20000
s_mov_b64 exec, 0xf
buffer_load_dword v254, v255, s[{WS}:{WS+3}], s{T0} offen sc1
s_branch Ltl_done
Ltl3:
s_mov_b64 exec, 3
s_lshl_b32 s{T0}, s{RT}, 17
s_add_u32 s{T0}, s{T0}, {OBUF}
buffer_load_dword v253, v255, s[{WS}:{WS+3}], s{T0} offen sc1
s_mov_b64 exec, 1
s_lshl_b32 s{T0}, s{RT}, 16
v_mov_b32 v255, s{T0}
global_load_dword v254, v255, s[18:19]
Ltl_done:
s_mov_b64 exec, -1
""")
if "sp" in opts:
    a(f"""
s_cmp_ge_u32 s{CB}, 8
s_cselect_b32 s6, s12, s6
s_cselect_b32 s7, s13, s7
s_lshl_b32 s{T0}, s{RB}, 2
s_add_u32 s{T0}, s{T0}, s{WL}
s_mul_i32 s{T0}, s{T0}, {8*3072}
s_and_b32 s{T1}, s{CB}, 7
s_lshl_b32 s{T1}, s{T1}, 7
s_add_u32 s{T0}, s{T0}, s{T1}
s_add_u32 s6, s6, s{T0}
s_addc_u32 s7, s7, 0
s_cmp_ge_u32 s{WL}, 2
s_cselect_b32 s8, s14, s8
s_cselect_b32 s9, s15, s9
s_lshl_b32 s{T0}, s{RT}, 1
s_and_b32 s{T1}, s{WL}, 1
s_add_u32 s{T0}, s{T0}, s{T1}
s_lshl_b32 s{T0}, s{T0}, 13
s_lshl_b32 s{T1}, s{CBK}, 7
s_add_u32 s{T0}, s{T0}, s{T1}
s_add_u32 s8, s8, s{T0}
s_addc_u32 s9, s9, 0
""")
    if opts["sp"] in ("1", "2"):
        for i in range(8):
            a(f"s_load_dword s{24+i}, s[6:7], {i*3072}")
    if opts["sp"] == "4":
        for i in range(8):
            a(f"s_load_dword s{24+i}, s[8:9], {i*1024}")
spq = []
if opts.get("sp") == "2": spq = [f"s_load_dword s{24+i}, s[8:9], {i*1024}" for i in range(8)]
if opts.get("sp") == "5": spq = [f"s_load_dword s{24+i}, s[8:9], {i*1024}" for i in range(8)]
if opts.get("sp") == "3": spq = [f"s_load_dword s{24+i}, s[6:7], {i*3072}" for i in range(8)] + [f"s_load_dword s{24+i}, s[8:9], {i*1024}" for i in range(8)]
RG, BF, AK, AV, XR = 16, 48, 64, 96, 128
stx()
lg = LG()
for i in range(8):
    so = (i & 1) * 32768
    a("s_barrier")
    if i in (0, 7): stx()
    for sidx in range(16):
        n = (sidx - LAGA) % 16
        ci = i if sidx >= LAGA else i - 1
        ks = n >> 3; rt = n & 7
        em = ci >= 0
        first = (ci == 0 and ks == 0)
        if em:
            tags = [f"X{ci}_{n}"] + ([f"B{ci}_{ks}0", f"B{ci}_{ks}1"] if rt == 0 else [])
            if sidx % 2 == 0 and rt != 7:
                tags.append(f"X{ci}_{n+1}")
            if sidx % 2 == 0 or rt == 0:
                lg.wait(*tags)
            mfma16(AK + 4 * rt, RG + 4 * (n % 8), BF + ks * 8, "1.0" if first else None)
        def rdB(k_, sec, u):
            tr(BF + k_ * 8 + sec * 4 + 2 * u, 4, so + k_ * 8192 + sec * 2048 + u * 512)
            lg.issue(f"B{i}_{k_}{sec}")
        if sidx < 2:
            rdB(0, sidx, 0); rdB(0, sidx, 1)
        elif 6 <= sidx < 10:
            rdB(1, (sidx - 6) >> 1, sidx & 1)
        elif sidx in (10, 11, 12, 13):
            t = sidx - 10
            xr = XR + (4 * i + t) * 4
            a(f"ds_read_b128 v[{xr}:{xr+3}], v{6+t} offset:{so}")
            lg.issue("XR")
        elif (i & 1) and i < 7 and sidx == 14:
            a("v_xor_b32 v2, 0x10000, v2\nv_xor_b32 v4, 0x10000, v4")
        elif i > 0 and (i & 1) == 0 and sidx in (2, 3):
            k = 6 + 2 * (sidx - 2)
            a(f"v_xor_b32 v{k}, 0x10000, v{k}\nv_xor_b32 v{k+1}, 0x10000, v{k+1}")
        elif "tb" in opts and i == int(opts["tb"]) and sidx == 5:
            a("s_branch Ltb\nLtb_done:")
            rare.append(f"""Ltb:
s_cmp_eq_u32 s{WL}, 1
s_cbranch_scc1 Ltb1
s_cmp_eq_u32 s{WL}, 3
s_cbranch_scc1 Ltb3
s_cmp_eq_u32 s{WL}, 0
s_cbranch_scc0 Ltb_done
v_lshlrev_b32 v255, 7, v1
s_mov_b64 exec, 0xff
global_load_dword v253, v255, s[16:17]
s_branch Ltb_fin
Ltb1:
s_cmp_ge_u32 s{CB}, 8
s_cselect_b32 s6, s12, s6
s_cselect_b32 s7, s13, s7
s_mul_i32 s{T0}, s{RB}, {32*3072}
s_and_b32 s{T1}, s{CB}, 7
s_lshl_b32 s{T1}, s{T1}, 7
s_add_u32 s{T0}, s{T0}, s{T1}
v_mul_u32_u24 v255, 3072, v1
v_add_u32 v255, s{T0}, v255
s_mov_b32 exec_hi, 0
global_load_dword v253, v255, s[6:7]
s_branch Ltb_fin
Ltb3:
s_lshl_b32 s{T0}, s{RT}, 14
s_lshl_b32 s{T1}, s{CBK}, 7
s_add_u32 s{T0}, s{T0}, s{T1}
v_lshl_add_u32 v255, v1, 10, s{T0}
s_mov_b64 exec, 0xffff
global_load_dword v253, v255, s[8:9]
global_load_dword v254, v255, s[14:15]
Ltb_fin:
s_mov_b64 exec, -1
s_branch Ltb_done""")
        elif i == 5 and sidx == 2:
            a("s_waitcnt vmcnt(0)")
        elif i == 1 and sidx == 2:
            a(f"s_cmp_eq_u32 s{RB}, s{CB}\ns_cbranch_scc1 Lflag\nLflag_done:")
            rare.append(f"Lflag:\ns_waitcnt vmcnt(0)\ns_atomic_add s{ONE}, s[20:21], 0\ns_branch Lflag_done")
        elif i > 0 and (i & 1) == 0 and sidx == 4:
            a("v_xor_b32 v3, 0x10000, v3")
        if spq and i < 6 and sidx in ((5, 15) if opts["sp"] == "2" else (5, 10, 15)) and (i >= (3 if opts["sp"] == "5" else 1) or opts["sp"] == "3"):
            a(spq.pop(0))
        if em:
            mfma16(AV + 4 * rt, RG + 4 * (n % 8), BF + ks * 8 + 4, "0" if first else None)
        r = RG + 4 * (sidx % 8)
        a(f"ds_read_b128 v[{r}:{r+3}], v{2 + (sidx >> 3)} offset:{so + (sidx & 7) * 2048}")
        lg.issue(f"X{i}_{sidx}")
for n in range(16 - LAGA, 16):
    lg.wait(f"X7_{n}")
    mfma16(AK + 4 * (n & 7), RG + 4 * (n % 8), BF + 8)
lds_add(12, 13, 12)
for n in range(16 - LAGA, 16):
    mfma16(AV + 4 * (n & 7), RG + 4 * (n % 8), BF + 12)
stx()
for op in phi_ops(AK, 32, RG, pk=("nopk" not in opts)):
    a(op)
a("ds_read_b32 v2, v12")
for r in range(60, 64):
    a(f"v_mov_b32 v{r}, 0x3f803f80")
for r in range(16):
    a(f"v_cvt_pk_bf16_f32 v{AV+r}, v{AV+2*r}, v{AV+2*r+1}")
    if r % 4 == 1:
        mfma16(56, 60, AK + (r // 4) * 4, "0" if r < 4 else None)
a("s_waitcnt lgkmcnt(0)")
for p in range(4):
    mfma16(52, AV + 4 * p, AK + 4 * p, "0" if p == 0 else None)
a("s_nop 7")
a("ds_write_b128 v5, v[52:55]\nds_write_b32 v15, v56 offset:1024")
lds_check("Lq0", 2, 12, 0, 4, T3)
NB = 8
seq = [(ct, s) for ct in range(2) for s in range(32)]
lgq = LG()
def qread(n):
    ct, s = seq[n]
    r = RG + (n % NB) * 4
    off = WQ + (s // 4) * 8192 + (s % 4) * 2048
    tr(r, 10 + ct, off); tr(r + 2, 10 + ct, off + 512)
    lgq.issue(f"q{n}"); lgq.issue(f"q{n}")
PF = int(opts.get('pf', 6))
for n in range(PF):
    qread(n)
stx()
ph0 = phi_ops(64, 16, 96)
for n, (ct, s) in enumerate(seq):
    if n + PF < 64:
        qread(n + PF)
    if "w1" not in opts:
        if n % 2 == 0: lgq.wait(f"q{n+1}")
    else:
        lgq.wait(f"q{n}")
    mfma(64 + 16 * ct, RG + (n % NB) * 4, XR + s * 4, "1.0" if s == 0 else None)
    if "bst" in opts and n in (15, 31, 47): stx()
    if n >= 34:
        k = 2 if n < 63 else len(ph0)
        for op in ph0[:k]:
            a(op)
        ph0 = ph0[k:]
assert not ph0
stx()
a(f"v_add_u32 v3, {KVF}, v14")
ph1 = phi_ops(80, 16, 96, pk=True)
for op in ph1[:-10]:
    a(op)
a("ds_read_b32 v2, v12 offset:4")
for op in ph1[-10:]:
    a(op)
stx()
a("s_waitcnt lgkmcnt(0)\nv_cmp_ne_u32 vcc, 4, v2\ns_cbranch_vccz Lkvw_done")
spin("Lkvw", "ds_read_b32 v2, v12 offset:4\ns_waitcnt lgkmcnt(0)\nv_cmp_ne_u32 vcc, 4, v2", T3, mult=8)
stx()
for h in range(4):
    a(f"ds_read_b128 v[{16+4*h}:{19+4*h}], v3 offset:{h*1024}")
PQ = [64, 68, 80, 84]
DN = [192, 208, 224, 240]
for h in range(4):
    a(f"s_waitcnt lgkmcnt({3-h})")
    mfma(DN[h], 16 + 4 * h, PQ[h], "0")
a("s_nop 5")
for h in range(4):
    d = DN[h]
    a(f"v_add_f32 v{d+8}, s{SEP}, v{d+8}")
    a(f"v_rcp_f32 v{d+8}, v{d+8}")
    a("s_nop 0")
    for r in range(0, 8, 2):
        a(f"v_pk_mul_f32 v[{d+r}:{d+r+1}], v[{d+r}:{d+r+1}], v[{d+8}:{d+9}] op_sel_hi:[1,0]")
    for r in range(4):
        a(f"v_cvt_pk_bf16_f32 v{d+r}, v{d+2*r}, v{d+2*r+1}")
    a(f"buffer_store_dwordx4 v[{d}:{d+3}], v14, s[{WS}:{WS+3}], s68 offen offset:{h*1024} sc1")
lds_add(12, 13, 8)
stx()
vm = VM()
def o_half(st, hf, setup_only=False, do_setup=True):
    g = 2 * (st & 1) + hf
    if do_setup:
        a(f"s_add_u32 s{T2}, s{RW}, {2*g}")
        a(f"s_and_b32 s{T2}, s{T2}, 7")
        a(f"s_lshl_b32 s{T2}, s{T2}, 12")
        a(f"s_add_u32 s{T2}, s{T2}, s66")
        a(f"s_add_u32 m0, s67, {st*8192+hf*4096}")
        if st < 2: a(f"s_xor_b32 s{T2}, s{T2}, 0x10000")
        else: a("s_nop 0")
    if setup_only: return
    for q in range(4):
        dma(14, WS, T2, q * 1024, f"o{st}{hf}", vm, "sc1 ")
o_half(0, 0, setup_only=True)
a(f"s_waitcnt vmcnt(0)\ns_atomic_add s{ONE}, s[22:23], s69")
stx()
a("s_barrier")
stx()
o_half(0, 0, do_setup=False); o_half(0, 1)
for st in range(3):
    o_half(st + 1, 0); o_half(st + 1, 1)
    vm.wait(f"o{st}1"); a("s_barrier")
vm.wait("o31"); a("s_barrier")
if STAMPS:
    if TM == "128": a("s_barrier")
    while stx.n < STAMPS: stx()
    a("Lstamps:")
    a(f"v_subrev_u32 v40, {SWAVE*64}, v0")
    emit_stamp_store(a, 0, STAMPS, 70, 22, 2, 20, stmp=60, tid="v40")
a("Lend:")
a("s_endpgm")
for r in rare:
    a(r)
a("Lcode_end:")
open(sys.argv[1], "w").write(file_text([(NAME + "_kernel", 256, 512, 163840)], [(NAME + "_kernel", a.text(), 256, None)]))
```

```python
import sys, struct
from asmlib import *

opts = dict(o.split("=") if "=" in o else (o, "1") for o in sys.argv[2:])
STAMPS = int(opts.get("stamps", 0))
SWAVE = int(opts.get("swave", 0))
LAGA = 6
a = Asm()

KVSTR = 1152
KVCNT = 0x20000
OCNT = 0x30000
GBUF = 0x40000
OBUF = 0x100000
WS_BYTES = 0x500000
EPS = 0x358637bd
LOG2E = 0x3fb8aa3b
SPIN = int(opts.get("spin", 20000))
SL = [0, 32768, 65536, 98304, 131072]
WQ = SL[0]
STG = SL[2]
MISC = SL[4]
KVF = SL[4] + 4096
KVP = SL[4] + 8192
XCH = SL[4] + 16384

class Cnt:
    def __init__(self, name, mx): self.q = []; self.name = name; self.mx = mx
    def issue(self, tag): self.q.append(tag)
    def n_after(self, tag):
        idx = max(i for i, t in enumerate(self.q) if t == tag)
        return len(self.q) - 1 - idx
    def wait(self, *tags):
        n = min(self.mx, min(self.n_after(t) for t in tags))
        a(f"s_waitcnt {self.name}({n})")
def VM(): return Cnt("vmcnt", 63)
def LG(): return Cnt("lgkmcnt", 15)
TS = 's_memtime' if 'cyc' in opts else 's_memrealtime'
class Stamper:
    def __init__(self, start=0): self.n = start
    def __call__(self):
        if STAMPS:
            assert self.n < STAMPS, self.n
            a(f"{TS} s[{70+2*self.n}:{71+2*self.n}]")
            self.n += 1

X, W, WO, WS, OUT = 24, 28, 32, 40, 44
SLG, SEP = 36, 38
RT, CBK, RW, ONE = 48, 49, 50, 51
RB, CB, WV, ROT, XS, WSB, WL, T0, T1, T2, T3, WOS, T5, T4 = 52, 53, 54, 55, 56, 57, 58, 59, 60, 61, 62, 63, 64, 65

def mfma(d, sa, sb, c=None):
    cc = f"v[{d}:{d+15}]" if c is None else c
    a(f"v_mfma_f32_32x32x16_bf16 v[{d}:{d+15}], v[{sa}:{sa+3}], v[{sb}:{sb+3}], {cc}")
def mfma16(d, sa, sb, c=None):
    cc = f"v[{d}:{d+3}]" if c is None else c
    a(f"v_mfma_f32_16x16x32_bf16 v[{d}:{d+3}], v[{sa}:{sa+3}], v[{sb}:{sb+3}], {cc}")
def tr(r, addr, off):
    a(f"ds_read_b64_tr_b16 v[{r}:{r+1}], v{addr} offset:{off}")
def phi_ops(acc, n, tmp, pk=False):
    ops = []
    if pk:
        for r in range(0, n, 2):
            ops.append(f"v_pk_fma_f32 v[{tmp+r}:{tmp+r+1}], v[{acc+r}:{acc+r+1}], s[{SLG}:{SLG+1}], s[{SLG}:{SLG+1}] neg_lo:[0,0,1] neg_hi:[0,0,1]")
    else:
        for r in range(n):
            ops.append(f"v_fma_f32 v{tmp+r}, v{acc+r}, s{SLG}, -s{SLG}")
    for r in range(n):
        ops.append(f"v_exp_f32 v{tmp+r}, v{tmp+r} clamp")
        if r >= 2:
            ops.append(f"v_max_f32 v{acc+r-2}, v{acc+r-2}, v{tmp+r-2}")
    ops.append(f"v_max_f32 v{acc+n-2}, v{acc+n-2}, v{tmp+n-2}")
    ops.append(f"v_max_f32 v{acc+n-1}, v{acc+n-1}, v{tmp+n-1}")
    if pk:
        for r in range(0, n, 2):
            ops.append(f"v_pk_add_f32 v[{acc+r}:{acc+r+1}], v[{acc+r}:{acc+r+1}], s[{SEP}:{SEP+1}]")
    else:
        for r in range(n):
            ops.append(f"v_add_f32 v{acc+r}, s{SEP}, v{acc+r}")
    for r in range(n // 2):
        ops.append(f"v_cvt_pk_bf16_f32 v{acc+r}, v{acc+2*r}, v{acc+2*r+1}")
    return ops
def spin(label, body, cnt, sleep=None, mult=1):
    a(f"s_mov_b32 s{cnt}, 0\n{label}_top:")
    a(body)
    a(f"s_cbranch_vccz {label}_done")
    if sleep: a(f"s_sleep {sleep}")
    a(f"s_add_u32 s{cnt}, s{cnt}, 1\ns_cmp_lt_u32 s{cnt}, {SPIN*mult}\ns_cbranch_scc1 {label}_top")
    a(f"{label}_done:")
def sspin(label, body, cnt, sleep=None):
    a(f"s_mov_b32 s{cnt}, 0\n{label}_top:")
    a(body)
    a(f"s_cbranch_scc1 {label}_done")
    if sleep: a(f"s_sleep {sleep}")
    a(f"s_add_u32 s{cnt}, s{cnt}, 1\ns_cmp_lt_u32 s{cnt}, {SPIN}\ns_cbranch_scc1 {label}_top")
    a(f"{label}_done:")
rare = []
def lds_add(vaddr, vone, off):
    a(f"s_mov_b64 exec, 1\nds_add_u32 v{vaddr}, v{vone} offset:{off}\ns_mov_b64 exec, -1")
def dma(voff, sr, soff, off, tag, vmq, extra=""):
    o = f"offset:{off} " if off else ""
    a(f"buffer_load_dwordx4 v{voff}, s[{sr}:{sr+3}], s{soff} offen {o}{extra}lds")
    vmq.issue(tag)

st = Stamper()
st()
a(f"""
s_load_dwordx16 s[4:19], s[0:1], 0
s_load_dwordx4 s[20:23], s[0:1], 64
s_cmp_ge_u32 s2, 256
s_cbranch_scc1 Lend
v_lshrrev_b32 v20, 6, v0
v_and_b32 v1, 63, v0
v_readfirstlane_b32 s{WV}, v20
s_and_b32 s{T0}, s2, 7
s_lshr_b32 s{T1}, s2, 3
s_and_b32 s{CBK}, s{T1}, 7
s_lshr_b32 s{T2}, s{T1}, 3
s_and_b32 s{RB}, s{T0}, 1
s_lshl_b32 s{RB}, s{RB}, 3
s_add_u32 s{RB}, s{RB}, s{CBK}
s_lshr_b32 s{CB}, s{T0}, 1
s_lshl_b32 s{CB}, s{CB}, 2
s_add_u32 s{CB}, s{CB}, s{T2}
s_lshl_b32 s{RT}, s{T0}, 2
s_add_u32 s{RT}, s{RT}, s{T2}
s_and_b32 s{WL}, s{WV}, 3
s_and_b32 s{RW}, s{WL}, 1
s_lshl_b32 s{T3}, s{T2}, 1
s_add_u32 s{RW}, s{RW}, s{T3}
s_lshl_b32 s{T3}, s{CBK}, {opts.get("orot", 3)}
s_add_u32 s{RW}, s{RW}, s{T3}
s_mov_b32 s{ONE}, 1
s_cmp_lt_u32 s{WV}, 4
s_cbranch_scc1 Lx
""")

vm = VM()
sty = Stamper(1)
a(f"""
s_add_u32 s{ROT}, s{CBK}, s{T2}
s_lshl_b32 s{ROT}, s{ROT}, 2
v_lshrrev_b32 v20, 3, v1
v_and_b32 v21, 7, v1
v_lshrrev_b32 v22, 4, v1
v_xor_b32 v23, v21, v22
v_lshlrev_b32 v2, 10, v20
v_lshl_add_u32 v2, v23, 4, v2
v_xor_b32 v3, 64, v2
v_add_u32 v3, {8192-1024}, v3
v_add_u32 v4, {2*(8192-1024)}, v2
v_add_u32 v5, {2*(8192-1024)}, v3
v_and_b32 v23, 1, v22
v_lshlrev_b32 v24, 1, v23
v_xor_b32 v24, v21, v24
v_mul_u32_u24 v25, 3072, v20
v_lshl_add_u32 v6, v24, 4, v25
v_xor_b32 v7, 64, v6
v_add_u32 v7, {8*3072-1024}, v7
v_add_u32 v10, 1024, v6
v_add_u32 v11, 1024, v7
s_lshl_b32 s{XS}, s{RB}, 17
s_lshl_b32 s{T0}, s{WL}, 15
s_add_u32 s{XS}, s{XS}, s{T0}
s_and_b32 s{WSB}, s{CB}, 7
s_lshl_b32 s{WSB}, s{WSB}, 7
s_mul_i32 s66, s{WL}, {16*3072}
s_add_u32 s66, s66, s{WSB}
s_lshl_b32 s67, s{WL}, 12
s_mov_b32 s{X+2}, {2048*1024}
s_mov_b32 s{X+3}, 0x20000
s_mov_b32 s{W+2}, {512*3072}
s_mov_b32 s{W+3}, 0x20000
""")
def chunk_setup(c):
    slot = SL[c % 4]
    a(f"s_add_u32 s{T0}, s{ROT}, {c}")
    a(f"s_and_b32 s{T0}, s{T0}, 7")
    a(f"s_lshl_b32 s{T1}, s{T0}, 7")
    a(f"s_add_u32 m0, s67, {slot}")
    a(f"s_add_u32 s{T1}, s{T1}, s{XS}")
def issue_chunk(c, setup=True):
    slot = SL[c % 4]
    if setup: chunk_setup(c)
    for q in range(4):
        dma(2 + q, X, T1, q * 1024, f"c{c}", vm)
        if q == 0: a(f"s_mul_i32 s{T2}, s{T0}, {64*3072}")
        if q == 1: a(f"s_add_u32 s{T2}, s{T2}, s66")
    a(f"s_add_u32 m0, s67, {slot+16384}")
    a("s_nop 0")
    dma(10, W, T2, 0, f"c{c}", vm)
    dma(11, W, T2, 1024, f"c{c}", vm)
    dma(6, W, T2, 2048, f"c{c}", vm)
    dma(7, W, T2, 3072, f"c{c}", vm)
def issue_wq(h):
    for i in range(4):
        a(f"s_add_u32 s{T0}, s68, {i}")
        a(f"s_and_b32 s{T0}, s{T0}, 3")
        a(f"s_add_u32 s{T2}, s{T0}, s{ROT}")
        if h: a(f"s_add_u32 s{T2}, s{T2}, 4")
        a(f"s_and_b32 s{T2}, s{T2}, 7")
        a(f"s_mul_i32 s{T2}, s{T2}, {64*3072}")
        a(f"s_lshl_b32 s{T0}, s{T0}, 13")
        a(f"s_add_u32 s{T0}, s{T0}, s69")
        a(f"s_add_u32 m0, s{T0}, {WQ+h*32768}")
        a(f"s_add_u32 s{T2}, s{T2}, s66")
        for q in range(2):
            dma(26 + q, W, T2, q * 1024, f"q{h}", vm)
chunk_setup(0)
a(f"""
s_cmp_ge_u32 s{CB}, 8
s_waitcnt lgkmcnt(0)
s_mov_b32 s{X}, s4
s_mov_b32 s{X+1}, s5
s_cselect_b32 s{W}, s12, s6
s_cselect_b32 s{W+1}, s13, s7
""")
issue_chunk(0, setup=False)
sty()
a(f"""
v_lshlrev_b32 v24, 2, v23
v_xor_b32 v24, v21, v24
v_lshl_add_u32 v26, v24, 4, v25
v_add_u32 v27, {8*3072-1024}, v26
v_lshlrev_b32 v56, 10, v20
v_lshl_add_u32 v56, v24, 4, v56
v_add_u32 v57, {8192-1024}, v56
v_add_u32 v58, {2*(8192-1024)}, v56
v_add_u32 v59, {3*(8192-1024)}, v56
s_lshr_b32 s68, s{CBK}, 1
s_lshl_b32 s69, s{WL}, 11
v_lshrrev_b32 v8, 5, v1
v_and_b32 v24, 3, v1
v_bfe_u32 v25, v1, 2, 2
v_lshl_add_u32 v60, v8, 2, v25
v_lshlrev_b32 v60, 7, v60
v_lshl_add_u32 v60, v23, 5, v60
v_lshl_add_u32 v60, v24, 3, v60
v_bfe_u32 v25, v1, 3, 1
s_and_b32 s{T0}, s{WL}, 1
v_xor_b32 v25, s{T0}, v25
v_lshl_add_u32 v60, v25, 6, v60
v_lshlrev_b32 v19, 4, v1
v_mov_b32 v30, {MISC}
v_mov_b32 v31, 1
v_lshlrev_b32 v9, 8, v22
v_lshl_add_u32 v9, v24, 2, v9
v_bfe_u32 v25, v1, 2, 1
v_lshl_add_u32 v9, v25, 5, v9
v_bfe_u32 v25, v1, 3, 1
v_lshl_add_u32 v9, v25, 4, v9
s_add_u32 s{T1}, s69, {KVP}
v_add_u32 v20, s{T1}, v19
v_lshl_add_u32 v21, v1, 2, s{T1}
v_and_b32 v28, 31, v1
v_lshl_add_u32 v12, v28, 6, s{T1}
v_bfe_u32 v25, v1, 1, 2
{"v_lshl_add_u32 v12, v8, 3, v12" if "nof64" not in opts else "v_xor_b32 v25, v25, v8"}
v_lshl_add_u32 v12, v25, 4, v12
v_xor_b32 v13, 32, v12
v_xor_b32 v16, 16, v12
v_xor_b32 v18, 48, v12
v_lshrrev_b32 v29, 2, v1
v_lshl_add_u32 v14, v29, 6, s{T1}
v_bfe_u32 v25, v1, 3, 2
v_xor_b32 v25, v25, v24
v_lshl_add_u32 v14, v25, 4, v14
v_lshlrev_b32 v15, 10, v29
v_lshl_add_u32 v15, v24, 4, v15
v_min_u32 v22, 16, v28
v_lshlrev_b32 v22, 6, v22
v_lshl_add_u32 v22, v8, 5, v22
s_lshl_b32 s{T1}, s{WL}, 10
s_add_u32 s{T1}, s{T1}, {KVF}
v_add_u32 v23, s{T1}, v19
v_lshlrev_b32 v28, 2, v28
s_lshl_b32 s{T1}, s{WL}, 15
v_add_u32 v24, s{T1}, v19
v_xor_b32 v25, 0x8000, v24
s_add_u32 s{T1}, s67, {XCH}
v_lshl_add_u32 v29, v1, {3 if "nox64" not in opts else 4}, s{T1}
v_xor_b32 v17, 0x2000, v29
s_cmp_ge_u32 s{WL}, 2
s_cselect_b32 s{WO}, s14, s8
s_cselect_b32 s{WO+1}, s15, s9
s_mov_b32 s{WO+2}, {512*1024}
s_mov_b32 s{WO+3}, 0x20000
s_lshl_b32 s14, s{CBK}, 7
s_lshl_b32 s15, s{WL}, 14
s_add_u32 s15, s15, {STG}
v_add_u32 v60, s15, v60
v_xor_b32 v61, 0x4000, v60
s_lshr_b32 s{T1}, s{WL}, 1
s_lshl_b32 s{T1}, s{T1}, 2
s_add_u32 s{T1}, s{T1}, {MISC+16}
v_mov_b32 v62, s{T1}
s_lshl_b32 s{T0}, s{CB}, 2
s_add_u32 s{T0}, s{T0}, s{WL}
s_mul_i32 s12, s{T0}, {KVSTR}
s_lshl_b32 s13, s{T0}, 10
s_add_u32 s13, s13, {KVCNT}
s_lshl_b32 s6, s{CB}, 11
s_add_u32 s6, s6, s{XS}
s_lshr_b32 s7, s6, 8
s_add_u32 s7, s7, {GBUF}
s_lshl_b32 s{T1}, s{RT}, 1
s_lshr_b32 s{T0}, s{WL}, 1
s_add_u32 s{T1}, s{T1}, s{T0}
s_lshl_b32 s8, s{T1}, 7
s_add_u32 s8, s8, {GBUF}
s_lshl_b32 s9, s{T1}, 10
s_add_u32 s9, s9, {OCNT}
s_lshl_b32 s10, s{T1}, 15
s_lshl_b32 s{T0}, s{CBK}, 7
s_add_u32 s10, s10, s{T0}
s_and_b32 s{T0}, s{WL}, 1
s_lshl_b32 s{T0}, s{T0}, 6
s_add_u32 s10, s10, s{T0}
s_add_u32 s11, s10, 16384
v_mov_b32 v44, 0
v_mov_b32 v45, 0
""")
srd(a, WS, 22, WS_BYTES)
srd(a, OUT, 18, 2048 * 1024)
issue_chunk(1)
a("global_load_dwordx4 v[40:43], v19, s[16:17]")
vm.issue("gw")
for i in range(8):
    vm.wait(f"c{i}")
    a("s_barrier")
    if i in (0, 3, 7): sty()
    if i == 6: a(f"s_load_dword s{T4}, s[20:21], 0")
    if i == 7:
        a(f"""buffer_load_dwordx4 v[48:51], v19, s[{X}:{X+3}], s6 offen
buffer_load_dwordx4 v[52:55], v19, s[{X}:{X+3}], s6 offen offset:1024""")
        vm.issue("gate"); vm.issue("gate")
    if i + 2 < 8:
        issue_chunk(i + 2)
    else:
        issue_wq(i - 6)
WR = 128
def wreg(sg, hl, c): return WR + ((sg * 4 + hl) * 2 + c) * 4
def issue_wo(sg, part=(0, 1)):
    a(f"s_add_u32 s{T2}, s{RW}, {2*sg}")
    a(f"s_and_b32 s{T2}, s{T2}, 7")
    a(f"s_lshl_b32 s{T2}, s{T2}, 16")
    for p in part:
        a(f"s_add_u32 m0, s15, {(sg % 2) * 8192 + p * 4096}")
        if p == part[0]: a(f"s_add_u32 s{T2}, s{T2}, s14")
        if p == 1: a(f"s_add_u32 s{T2}, s{T2}, 32768")
        for q in range(4):
            dma(56 + q, WO, T2, q * 1024, f"wo{sg}{p}", vm)
def wo_tr(sg, hls=range(4)):
    for hl in hls:
        for c in range(2):
            r = wreg(sg, hl, c)
            off = (sg % 2) * 8192 + hl * 2048
            tr(r, 60 + c, off); tr(r + 2, 60 + c, off + 1024)
pc = [0]
def pair_add():
    lds_add(62, 31, 0); pc[0] += 2
def pair_wait(label):
    spin(label, f"ds_read_b32 v63, v62\ns_waitcnt lgkmcnt(0)\nv_cmp_gt_u32 vcc, {pc[0]}, v63", T3, mult=8)
def cnt_wait(label, off):
    spin(label, f"ds_read_b32 v63, v30 offset:{off}\ns_waitcnt lgkmcnt(0)\nv_cmp_gt_u32 vcc, 4, v63", T3, sleep=1, mult=8)
cnt_wait("Lad", 12)
issue_wo(0, part=(0,))
a(f"""
s_cmp_ge_u32 s{T4}, 64
s_cbranch_scc0 Lzc
Lzc_done:
""")
rare.append(f"""Lzc:
s_mov_b32 s{T3}, 0
Lzc_top:
s_load_dword s{T4}, s[20:21], 0 glc
s_waitcnt lgkmcnt(0)
s_cmp_ge_u32 s{T4}, 64
s_cbranch_scc1 Lzc_done
s_sleep 4
s_add_u32 s{T3}, s{T3}, 1
s_cmp_lt_u32 s{T3}, {SPIN}
s_cbranch_scc1 Lzc_top
s_branch Lzc_done""")
sty()
vm.wait("gate")
for k in range(4):
    a(f"v_dot2c_f32_bf16 v44, v{48+k}, v{40+k}")
    a(f"v_dot2c_f32_bf16 v45, v{52+k}, v{40+k}")
a(f"""
s_nop 2
v_permlane32_swap_b32 v44, v45
s_nop 1
v_add_f32 v44, v44, v45
s_nop 1
v_add_f32_dpp v44, v44, v44 row_ror:8 row_mask:0xf bank_mask:0xf
s_nop 1
v_add_f32_dpp v44, v44, v44 row_ror:4 row_mask:0xf bank_mask:0xf
s_nop 1
v_add_f32_dpp v44, v44, v44 row_ror:2 row_mask:0xf bank_mask:0xf
s_nop 1
v_add_f32_dpp v44, v44, v44 row_ror:1 row_mask:0xf bank_mask:0xf
v_mov_b32 v45, v44
s_nop 1
v_permlane16_swap_b32 v44, v45
s_nop 1
v_add_f32 v44, v44, v45
v_mul_f32 v44, 0xbfb8aa3b, v44
v_exp_f32 v44, v44
v_lshlrev_b32 v45, 2, v8
v_add_f32 v44, 1.0, v44
v_rcp_f32 v44, v44
""")
vm.wait("q1")
lds_add(30, 31, 0)
a("s_setprio 2")
spin("Lkp", "ds_read_b32 v36, v21 offset:1024\nds_read_b128 v[32:35], v20\ns_waitcnt lgkmcnt(0)\nv_cmp_eq_u32 vcc, 0, v36", T3, sleep=int(opts.get("psl", 1)), mult=8)
for r in range(4):
    a(f"buffer_atomic_add_f32 v{32+r}, v9, s[{WS}:{WS+3}], s12 offen offset:{r*64}")
    vm.issue("atom")
a(f"""
s_mov_b64 exec, 0xffff
buffer_atomic_add_f32 v36, v9, s[{WS}:{WS+3}], s12 offen offset:1024
s_mov_b32 exec_lo, 1
s_mov_b32 exec_hi, 1
buffer_store_dword v44, v45, s[{WS}:{WS+3}], s7 offen sc1
s_mov_b64 exec, -1
s_mov_b32 s{T4}, 1
s_mov_b32 s{T5}, 16
""")
vm.issue("atom"); vm.issue("gst")
sty()
MODE = opts.get("mode", "0")
issue_wo(0, part=(1,))
if MODE in ("1", "3"): issue_wo(1, part=(0,))
vm.wait("atom")
a(f"s_atomic_add s{T4}, s[22:23], s13 glc")
sty()
fst = sty.n + 1
def fetch():
    a(f"""buffer_load_dwordx4 v[32:35], v22, s[{WS}:{WS+3}], s12 offen sc1
buffer_load_dwordx4 v[36:39], v22, s[{WS}:{WS+3}], s12 offen offset:16 sc1
s_mov_b32 s{T5}, -1
s_waitcnt vmcnt(0)
v_cvt_pk_bf16_f32 v32, v32, v33
v_cvt_pk_bf16_f32 v33, v34, v35
v_cvt_pk_bf16_f32 v34, v36, v37
v_cvt_pk_bf16_f32 v35, v38, v39
ds_write_b128 v23, v[32:35]""")
    lds_add(30, 31, 4)
    a("s_setprio 0")
    if STAMPS: a(f"{TS} s[{70+2*fst}:{71+2*fst}]")
POLL = f"s_load_dword s{T4}, s[22:23], s13 glc"
def maybe_fetch(k):
    a(f"s_cmp_eq_u32 s{T4}, s{T5}\ns_cbranch_scc0 Lmf{k}")
    fetch()
    a(f"Lmf{k}:")
def must_fetch():
    a(f"s_cmp_eq_u32 s{T5}, -1\ns_cbranch_scc1 Lkv_have\ns_cmp_eq_u32 s{T4}, 16\ns_cbranch_scc1 Lpollkv_done")
    sspin("Lpollkv", POLL + f"\ns_waitcnt lgkmcnt(0)\ns_cmp_eq_u32 s{T4}, 16", T3, sleep=int(opts.get("ksleep", 1)))
    fetch()
    a("Lkv_have:")
issue_wo(1, part=((1,) if MODE in ("1", "3") else (0, 1)))
if MODE in ("0", "1"):
    a(f"s_waitcnt lgkmcnt(0)\ns_add_u32 s{T4}, s{T4}, 1")
    maybe_fetch(0)
    vm.wait("wo11"); pair_add(); pair_wait("Lps0")
    a(POLL)
    wo_tr(0); wo_tr(1)
    a("s_waitcnt lgkmcnt(0)")
    pair_add()
    sty(); sty.n += 1
    must_fetch()
    pair_wait("Lps1")
    issue_wo(2)
    cnt_wait("Lxo", 8)
    issue_wo(3)
    vm.wait("wo31"); pair_add(); pair_wait("Lps2")
    wo_tr(2); wo_tr(3)
else:
    vm.wait("wo01"); pair_add()
    a(f"s_waitcnt lgkmcnt(0)\ns_add_u32 s{T4}, s{T4}, 1")
    maybe_fetch(0)
    pair_wait("Lps0")
    a(POLL)
    wo_tr(0)
    vm.wait("wo11")
    a("s_waitcnt lgkmcnt(0)")
    pair_add()
    sty(); sty.n += 1
    must_fetch()
    pair_wait("Lps1")
    wo_tr(1)
    issue_wo(2)
    a("s_waitcnt lgkmcnt(0)")
    pair_add()
    cnt_wait("Lxo", 8)
    pair_wait("Lps2")
    issue_wo(3)
    vm.wait("wo31"); pair_add(); pair_wait("Lps3")
    wo_tr(2); wo_tr(3)
a(f"""
s_waitcnt lgkmcnt(0)
s_bitcmp1_b32 s{WL}, 0
s_cbranch_scc1 Lpollo_done
""")
OV = opts.get("ov", "")
if OV == "":
    sspin("Lpollo", f"s_load_dword s{T4}, s[22:23], s9 glc\ns_waitcnt lgkmcnt(0)\ns_cmp_eq_u32 s{T4}, 16", T3, sleep=int(opts.get("osleep", 2)))
else:
    fl = {"1": "sc0 sc1", "2": "sc0 sc1 nt", "3": "sc1 nt", "4": "sc0 sc1"}[OV]
    a("v_mov_b32 v3, 0\ns_mov_b64 exec, 1")
    if OV != "4":
        spin("Lpo", f"buffer_load_dword v63, v3, s[{WS}:{WS+3}], s9 offen {fl}\ns_waitcnt vmcnt(0)\nv_cmp_ne_u32 vcc, 16, v63", T3)
    else:
        ld = lambda r: f"buffer_load_dword v{r}, v3, s[{WS}:{WS+3}], s9 offen {fl}"
        a(ld(62) + "\ns_sleep 4")
        a(f"s_mov_b32 s{T3}, 0\nLpo_top:\n" + ld(63) + f"\ns_waitcnt vmcnt(1)\nv_cmp_ne_u32 vcc, 16, v62\ns_cbranch_vccz Lpo_done\n"
          + ld(62) + f"\ns_waitcnt vmcnt(1)\nv_cmp_ne_u32 vcc, 16, v63\ns_cbranch_vccz Lpo_done\ns_add_u32 s{T3}, s{T3}, 1\ns_cmp_lt_u32 s{T3}, {SPIN}\ns_cbranch_scc1 Lpo_top\nLpo_done:")
    a("s_mov_b64 exec, -1\nLpollo_done:")
sty()
a("s_barrier")
a(f"buffer_load_dword v2, v28, s[{WS}:{WS+3}], s8 offen sc1")
ACC = [32, 48]
OB = 64; NBUF = 16
lg = LG()
items = [(st_, k, c) for st_ in range(4) for k in range(8) for c in range(2)]
def rdO(n):
    st_, k, c = items[n]
    r = OB + 4 * (n % NBUF)
    a(f"ds_read_b128 v[{r}:{r+3}], v{24+c} offset:{st_*8192 + k*1024}")
    lg.issue(f"O{n}")
def mfO(n):
    st_, k, c = items[n]
    if n % 2 == 0: lg.wait(f"O{n+1}")
    mfma(ACC[1 if st_ < 2 else 0], wreg(2 * (st_ & 1) + (k >> 2), k & 3, c), OB + 4 * (n % NBUF), "0" if n in (0, 32) else None)
LAG = 4
done = 0
wq = list(range(4))
fin = ["s_waitcnt vmcnt(0)", "v_sub_f32 v4, 1.0, v2", f"s_cmp_ge_u32 s{WL}, 2\ns_cselect_b64 vcc, -1, 0",
       "v_cndmask_b32 v6, v2, v4, vcc", "v_cndmask_b32 v4, v4, v2, vcc"]
for n in range(64):
    if n == 56 and "sl" in opts:
        a("s_barrier")
        rdO(n); rdO(n + 1)
    if n % 16 == 0:
        if n == 48: lg.wait("W")
        if n == 0 and OV == "4": a("s_waitcnt vmcnt(1)")
        a("s_barrier")
        if n == 0: sty()
        rdO(n); rdO(n + 1)
    if n % 16 < 14 and not ("sl" in opts and n in (54, 55)): rdO(n + 2)
    if n >= LAG:
        mfO(done); done += 1
        if "nox64" not in opts:
            wq = []
            if 36 <= done < 44:
                k = done - 36
                if k == 0: a("s_nop 1")
                a(f"ds_write_b64 v29, v[{48+2*k}:{49+2*k}] offset:{k*512}"); lg.issue("W")
            if 46 <= done < 54:
                k = done - 46
                a(f"ds_read_b64 v[{48+2*k}:{49+2*k}], v17 offset:{k*512}"); lg.issue("P")
        else:
            if done in (37, 38, 40, 42):
                k = wq.pop(0)
                a(f"ds_write_b128 v29, v[{48+4*k}:{51+4*k}] offset:{k*1024}"); lg.issue("W")
            if done >= 50 and done < 54:
                k = done - 50
                a(f"ds_read_b128 v[{48+4*k}:{51+4*k}], v17 offset:{k*1024}"); lg.issue("P")
        if done >= 54 and fin: a(fin.pop(0))
assert not wq and not fin
vq = [f"v_mul_f32 v{48+r}, v{48+r}, v4" for r in range(16)]
while done < 64:
    mfO(done); done += 1
    for _ in range(4):
        a(vq.pop(0))
sty()
a("s_nop 7")
if "nof64" not in opts:
    for p in range(4):
        for r in (4 * p, 4 * p + 2):
            a(f"v_pk_fma_f32 v[{32+r}:{33+r}], v[{32+r}:{33+r}], v[6:7], v[{48+r}:{49+r}] op_sel_hi:[1,0,1]")
        a(f"v_cvt_pk_bf16_f32 v{32+4*p}, v{32+4*p}, v{33+4*p}")
        a(f"v_cvt_pk_bf16_f32 v{33+4*p}, v{34+4*p}, v{35+4*p}")
        a(f"ds_write_b64 v{[12, 16, 13, 18][p]}, v[{32+4*p}:{33+4*p}]")
else:
    for r in range(0, 16, 2):
        a(f"v_pk_fma_f32 v[{32+r}:{33+r}], v[{32+r}:{33+r}], v[6:7], v[{48+r}:{49+r}] op_sel_hi:[1,0,1]")
    for r in range(8):
        a(f"v_cvt_pk_bf16_f32 v{32+r}, v{32+2*r}, v{33+2*r}")
if "nof64" in opts:
    a("""v_permlane32_swap_b32 v32, v34
v_permlane32_swap_b32 v33, v35
v_permlane32_swap_b32 v36, v38
v_permlane32_swap_b32 v37, v39
ds_write_b128 v12, v[32:35]
ds_write_b128 v13, v[36:39]""")
a(f"""
ds_read_b128 v[64:67], v14
ds_read_b128 v[68:71], v14 offset:1024
s_waitcnt lgkmcnt(1)
buffer_store_dwordx4 v[64:67], v15, s[{OUT}:{OUT+3}], s10 offen sc1
s_waitcnt lgkmcnt(0)
buffer_store_dwordx4 v[68:71], v15, s[{OUT}:{OUT+3}], s11 offen sc1
""")
if STAMPS:
    sty()
    a("s_waitcnt vmcnt(0)")
    while sty.n < STAMPS: sty()
    a("s_branch Lstamps")
else:
    a("s_endpgm")

vm = VM()
stx = Stamper(1)
a("Lx:")
a(f"""
s_getpc_b64 s[66:67]
Lpc0:
s_sub_u32 s66, s66, Lpc0-{NAME}_kernel
s_subb_u32 s67, s67, 0
s_and_b32 s{T0}, s{CBK}, 3
s_lshl_b32 s{T0}, s{T0}, 2
s_add_u32 s{T0}, s{T0}, s{WL}
s_lshl_b32 s{T0}, s{T0}, 10
v_lshl_add_u32 v140, v1, 7, s{T0}
v_min_u32 v140, Lcode_end-{NAME}_kernel-4, v140
s_mov_b64 exec, 0xff
global_load_dword v252, v140, s[66:67]
s_mov_b64 exec, -1
v_lshlrev_b32 v14, 4, v1
v_mov_b32 v240, 0
v_mov_b32 v241, 0
v_mov_b32 v242, 0
v_mov_b32 v243, 0
v_mov_b32 v12, {MISC}
v_mov_b32 v13, 1
s_lshl_b32 s{T1}, s{WL}, 11
s_add_u32 s{T1}, s{T1}, {KVP}
v_add_u32 v5, s{T1}, v14
v_lshl_add_u32 v15, v1, 2, s{T1}
ds_write_b128 v12, v[240:243]
ds_write_b32 v15, v240 offset:1024
ds_write_b128 v12, v[240:243] offset:16
v_and_b32 v23, 3, v1
s_mov_b32 s{WS+2}, {WS_BYTES}
s_mov_b32 s{WS+3}, 0x20000
s_cmp_eq_u32 s{RB}, s{CB}
s_waitcnt lgkmcnt(0)
s_mov_b32 s{WS}, s22
s_mov_b32 s{WS+1}, s23
s_cbranch_scc0 Lnozero
s_lshl_b32 s{T0}, s{CB}, 2
s_add_u32 s{T0}, s{T0}, s{WL}
s_mul_i32 s{T1}, s{T0}, {KVSTR}
buffer_store_dwordx4 v[240:243], v14, s[{WS}:{WS+3}], s{T1} offen sc1
s_lshl_b32 s{T2}, s{T0}, 10
s_add_u32 s{T3}, s{T2}, {OCNT}
s_add_u32 s{T2}, s{T2}, {KVCNT}
s_mov_b64 exec, 0xf
buffer_store_dwordx4 v[240:243], v14, s[{WS}:{WS+3}], s{T2} offen sc1
buffer_store_dwordx4 v[240:243], v14, s[{WS}:{WS+3}], s{T3} offen sc1
buffer_store_dwordx4 v[240:243], v14, s[{WS}:{WS+3}], s{T1} offen offset:1024 sc1
s_mov_b64 exec, -1
Lnozero:
s_mov_b32 s{SLG}, 0x{LOG2E:x}
s_mov_b32 s{SLG+1}, 0x{LOG2E:x}
s_mov_b32 s{SEP}, 0x{EPS:x}
s_mov_b32 s{SEP+1}, 0x{EPS:x}
v_and_b32 v20, 15, v1
v_lshrrev_b32 v21, 4, v1
v_lshrrev_b32 v22, 1, v20
v_xor_b32 v22, v21, v22
v_lshlrev_b32 v2, 7, v20
v_lshl_add_u32 v2, v22, 4, v2
v_xor_b32 v3, 64, v2
; W base v4
v_lshrrev_b32 v24, 5, v1
v_lshlrev_b32 v4, 12, v24
v_and_b32 v25, 1, v21
v_lshl_add_u32 v4, v25, 10, v4
v_lshrrev_b32 v26, 2, v20
v_lshl_add_u32 v4, v26, 7, v4
v_bfe_u32 v22, v1, 3, 2
v_xor_b32 v22, s{WL}, v22
v_lshl_add_u32 v4, v22, 5, v4
v_lshl_add_u32 v4, v23, 3, v4
v_add_u32 v4, 16384, v4
v_bfe_u32 v22, v1, 3, 1
v_lshl_add_u32 v10, v24, 3, v26
v_lshlrev_b32 v10, 7, v10
v_lshl_add_u32 v10, v25, 5, v10
v_lshl_add_u32 v10, v23, 3, v10
v_lshl_add_u32 v10, v22, 6, v10
v_xor_b32 v11, 64, v10
v_and_b32 v20, 31, v1
s_lshl_b32 s{T0}, s{WL}, 12
v_lshl_add_u32 v6, v20, 7, s{T0}
v_bfe_u32 v25, v1, 1, 3
v_xor_b32 v25, v24, v25
v_lshl_add_u32 v6, v25, 4, v6
v_xor_b32 v7, 32, v6
v_xor_b32 v8, 64, v6
v_xor_b32 v9, 96, v6
s_lshl_b32 s{T1}, s{RB}, 2
s_add_u32 s{T1}, s{T1}, s{WL}
s_lshl_b32 s68, s{T1}, 16
s_lshl_b32 s{T3}, s{CB}, 12
s_add_u32 s68, s68, s{T3}
s_add_u32 s68, s68, {OBUF}
s_lshl_b32 s69, s{T1}, 10
s_add_u32 s69, s69, {OCNT}
s_lshr_b32 s{T2}, s{WL}, 1
s_lshl_b32 s66, s{RT}, 1
s_add_u32 s66, s66, s{T2}
s_lshl_b32 s66, s66, 16
s_lshl_b32 s{T2}, s{T2}, 15
s_add_u32 s66, s66, s{T2}
s_add_u32 s66, s66, {OBUF}
s_lshl_b32 s67, s{WL}, 15
""")
RG, BF, AK, AV, XR = 16, 48, 64, 96, 128
FLI = int(opts.get("fli", 2))
stx()
lg = LG()
for i in range(8):
    so = (i & 1) * 32768
    a("s_barrier")
    if i in (0, 7): stx()
    for sidx in range(16):
        n = (sidx - LAGA) % 16
        ci = i if sidx >= LAGA else i - 1
        ks = n >> 3; rt = n & 7
        em = ci >= 0
        first = (ci == 0 and ks == 0)
        if em:
            tags = [f"X{ci}_{n}"] + ([f"B{ci}_{ks}0", f"B{ci}_{ks}1"] if rt == 0 else [])
            if sidx % 2 == 0 and rt != 7:
                tags.append(f"X{ci}_{n+1}")
            if sidx % 2 == 0 or rt == 0:
                lg.wait(*tags)
            mfma16(AK + 4 * rt, RG + 4 * (n % 8), BF + ks * 8, "1.0" if first else None)
        def rdB(k_, sec, u):
            tr(BF + k_ * 8 + sec * 4 + 2 * u, 4, so + k_ * 8192 + sec * 2048 + u * 512)
            lg.issue(f"B{i}_{k_}{sec}")
        if sidx < 2:
            rdB(0, sidx, 0); rdB(0, sidx, 1)
        elif 6 <= sidx < 10:
            rdB(1, (sidx - 6) >> 1, sidx & 1)
        elif sidx in (10, 11, 12, 13):
            t = sidx - 10
            xr = XR + (4 * i + t) * 4
            a(f"ds_read_b128 v[{xr}:{xr+3}], v{6+t} offset:{so}")
            lg.issue("XR")
        elif (i & 1) and i < 7 and sidx == 14:
            a("v_xor_b32 v2, 0x10000, v2\nv_xor_b32 v4, 0x10000, v4")
        elif i > 0 and (i & 1) == 0 and sidx in (2, 3):
            k = 6 + 2 * (sidx - 2)
            a(f"v_xor_b32 v{k}, 0x10000, v{k}\nv_xor_b32 v{k+1}, 0x10000, v{k+1}")
        elif i > 0 and (i & 1) == 0 and sidx == 4:
            a("v_xor_b32 v3, 0x10000, v3")
        elif i == 1 and sidx == 2:
            a(f"s_cmp_eq_u32 s{RB}, s{CB}\ns_cbranch_scc1 Lflag\nLflag_done:")
            rare.append(f"Lflag:\ns_waitcnt vmcnt(0)\ns_atomic_add s{ONE}, s[20:21], 0\ns_branch Lflag_done")
        elif i == 5 and sidx == 2:
            a("s_waitcnt vmcnt(0)")
        if em:
            mfma16(AV + 4 * rt, RG + 4 * (n % 8), BF + ks * 8 + 4, "0" if first else None)
        r = RG + 4 * (sidx % 8)
        a(f"ds_read_b128 v[{r}:{r+3}], v{2 + (sidx >> 3)} offset:{so + (sidx & 7) * 2048}")
        lg.issue(f"X{i}_{sidx}")
for n in range(16 - LAGA, 16):
    lg.wait(f"X7_{n}")
    mfma16(AK + 4 * (n & 7), RG + 4 * (n % 8), BF + 8)
lds_add(12, 13, 12)
for n in range(16 - LAGA, 16):
    mfma16(AV + 4 * (n & 7), RG + 4 * (n % 8), BF + 12)
stx()
for op in phi_ops(AK, 32, RG, pk=True):
    a(op)
a("ds_read_b32 v2, v12")
for r in range(60, 64):
    a(f"v_mov_b32 v{r}, 0x3f803f80")
for r in range(16):
    a(f"v_cvt_pk_bf16_f32 v{AV+r}, v{AV+2*r}, v{AV+2*r+1}")
    if r % 4 == 1:
        mfma16(56, 60, AK + (r // 4) * 4, "0" if r < 4 else None)
a("s_waitcnt lgkmcnt(0)")
for p in range(4):
    mfma16(52, AV + 4 * p, AK + 4 * p, "0" if p == 0 else None)
a(f"v_add_u32 v3, {KVF}, v14\nv_cmp_ne_u32 vcc, 4, v2\ns_nop 5")
a("ds_write_b128 v5, v[52:55]\nds_write_b32 v15, v56 offset:1024\ns_cbranch_vccz Lq0_done")
spin("Lq0", "ds_read_b32 v2, v12\ns_waitcnt lgkmcnt(0)\nv_cmp_ne_u32 vcc, 4, v2", T3, mult=8)
NB = 8
seq = [(ct, s) for ct in range(2) for s in range(32)]
lgq = LG()
def qread(n):
    ct, s = seq[n]
    r = RG + (n % NB) * 4
    off = WQ + (s // 4) * 8192 + (s % 4) * 2048
    tr(r, 10 + ct, off); tr(r + 2, 10 + ct, off + 512)
    lgq.issue(f"q{n}"); lgq.issue(f"q{n}")
PF = 6
for n in range(PF):
    qread(n)
stx()
ph0 = phi_ops(64, 16, 96)
for n, (ct, s) in enumerate(seq):
    if n + PF < 64:
        qread(n + PF)
    if n % 2 == 0: lgq.wait(f"q{n+1}")
    mfma(64 + 16 * ct, RG + (n % NB) * 4, XR + s * 4, "1.0" if s == 0 else None)
    if n >= 35:
        k = (2 if n < 58 else 2) if n < 63 else len(ph0)
        for op in ph0[:k]:
            a(op)
        ph0 = ph0[k:]
assert not ph0
stx()
ph1 = phi_ops(80, 16, 96, pk=True)
for op in ph1[:-10]:
    a(op)
a("ds_read_b32 v2, v12 offset:4")
for op in ph1[-10:]:
    a(op)
stx()
a("s_waitcnt lgkmcnt(0)\nv_cmp_ne_u32 vcc, 4, v2\ns_cbranch_vccz Lkvw_done")
spin("Lkvw", "ds_read_b32 v2, v12 offset:4\ns_waitcnt lgkmcnt(0)\nv_cmp_ne_u32 vcc, 4, v2", T3, mult=8)
stx()
for h in range(4):
    a(f"ds_read_b128 v[{16+4*h}:{19+4*h}], v3 offset:{h*1024}")
PQ = [64, 68, 80, 84]
DN = [192, 208, 224, 240]
for h in range(4):
    a(f"s_waitcnt lgkmcnt({3-h})")
    mfma(DN[h], 16 + 4 * h, PQ[h], "0")
vm = VM()
def o_half(st_, hf, setup_only=False, do_setup=True):
    g = 2 * (st_ & 1) + hf
    if do_setup:
        a(f"s_add_u32 s{T2}, s{RW}, {2*g}")
        a(f"s_and_b32 s{T2}, s{T2}, 7")
        a(f"s_lshl_b32 s{T2}, s{T2}, 12")
        a(f"s_add_u32 s{T2}, s{T2}, s66")
        a(f"s_add_u32 m0, s67, {st_*8192+hf*4096}")
        if st_ < 2: a(f"s_xor_b32 s{T2}, s{T2}, 0x10000")
        else: a("s_nop 0")
    if setup_only: return
    for q in range(4):
        dma(14, WS, T2, q * 1024, f"o{st_}{hf}", vm, "sc1 ")
o_half(0, 0, setup_only=True)
for h in range(4):
    d = DN[h]
    a(f"v_add_f32 v{d+8}, s{SEP}, v{d+8}")
    a(f"v_rcp_f32 v{d+8}, v{d+8}")
    a("s_nop 0")
    for r in range(0, 8, 2):
        a(f"v_pk_mul_f32 v[{d+r}:{d+r+1}], v[{d+r}:{d+r+1}], v[{d+8}:{d+9}] op_sel_hi:[1,0]")
    for r in range(4):
        a(f"v_cvt_pk_bf16_f32 v{d+r}, v{d+2*r}, v{d+2*r+1}")
    a(f"buffer_store_dwordx4 v[{d}:{d+3}], v14, s[{WS}:{WS+3}], s68 offen offset:{h*1024} sc1")
lds_add(12, 13, 8)
stx()
a(f"s_waitcnt vmcnt(0)\ns_atomic_add s{ONE}, s[22:23], s69")
stx()
a("s_barrier")
stx()
o_half(0, 0, do_setup=False); o_half(0, 1)
if "xl" in opts:
    o_half(1, 0)
    vm.wait("o01"); a("s_barrier")
    o_half(1, 1); o_half(2, 0); o_half(2, 1)
    vm.wait("o11"); a("s_barrier")
    o_half(3, 0); o_half(3, 1)
    vm.wait("o21"); a("s_barrier")
else:
    for st_ in range(3):
        o_half(st_ + 1, 0); o_half(st_ + 1, 1)
        vm.wait(f"o{st_}1"); a("s_barrier")
if "sl" in opts: vm.wait("o30"); a("s_barrier")
vm.wait("o31"); a("s_barrier")
if STAMPS:
    while stx.n < STAMPS: stx()
    a("Lstamps:")
    a(f"v_subrev_u32 v40, {SWAVE*64}, v0")
    emit_stamp_store(a, 0, STAMPS, 70, 22, 2, 20, stmp=60, tid="v40")
a("Lend:")
a("s_endpgm")
for r in rare:
    a(r)
a("Lcode_end:")
open(sys.argv[1], "w").write(file_text([(NAME + "_kernel", 256, 512, 163840)], [(NAME + "_kernel", a.text(), 256, None)]))
```

```python
import sys, struct
from asmlib import *

opts = dict(o.split("=") if "=" in o else (o, "1") for o in sys.argv[2:])
STAMPS = int(opts.get("stamps", 0))
SWAVE = int(opts.get("swave", 0))
LAGA = 6
a = Asm()
KA = int(opts.get("ka", 1)); KAS = 0x14000
KR = int(opts.get("kr", 4)); OR = int(opts.get("or", 4)); RST = int(opts.get("rst", 256))

KVSTR = 1152
KVCNT = 0x20000
OCNT = 0x30000
GBUF = 0x40000
OBUF = 0x100000
KVACC = 0x500000
WS_BYTES = 0x600000
EPS = 0x358637bd
LOG2E = 0x3fb8aa3b
SPIN = int(opts.get("spin", 20000))
SL = [0, 32768, 65536, 98304, 131072]
WQ = SL[0]
STG = SL[2]
MISC = SL[4]
KVF = SL[4] + 4096
KVP = SL[4] + 8192
XCH = SL[4] + 16384

class Cnt:
    def __init__(self, name, mx): self.q = []; self.name = name; self.mx = mx
    def issue(self, tag): self.q.append(tag)
    def n_after(self, tag):
        idx = max(i for i, t in enumerate(self.q) if t == tag)
        return len(self.q) - 1 - idx
    def wait(self, *tags):
        n = min(self.mx, min(self.n_after(t) for t in tags))
        a(f"s_waitcnt {self.name}({n})")
def VM(): return Cnt("vmcnt", 63)
def LG(): return Cnt("lgkmcnt", 15)
TS = 's_memtime' if 'cyc' in opts else 's_memrealtime'
class Stamper:
    def __init__(self, start=0): self.n = start
    def __call__(self):
        if STAMPS:
            assert self.n < STAMPS, self.n
            a(f"{TS} s[{70+2*self.n}:{71+2*self.n}]")
            self.n += 1

X, W, WO, WS, OUT = 24, 28, 32, 40, 44
SLG, SEP = 36, 38
RT, CBK, RW, ONE = 48, 49, 50, 51
RB, CB, WV, ROT, XS, WSB, WL, T0, T1, T2, T3, WOS, T5, T4 = 52, 53, 54, 55, 56, 57, 58, 59, 60, 61, 62, 63, 64, 65

def mfma(d, sa, sb, c=None):
    cc = f"v[{d}:{d+15}]" if c is None else c
    a(f"v_mfma_f32_32x32x16_bf16 v[{d}:{d+15}], v[{sa}:{sa+3}], v[{sb}:{sb+3}], {cc}")
def mfma16(d, sa, sb, c=None):
    cc = f"v[{d}:{d+3}]" if c is None else c
    a(f"v_mfma_f32_16x16x32_bf16 v[{d}:{d+3}], v[{sa}:{sa+3}], v[{sb}:{sb+3}], {cc}")
def tr(r, addr, off):
    a(f"ds_read_b64_tr_b16 v[{r}:{r+1}], v{addr} offset:{off}")
def phi_ops(acc, n, tmp, pk=False):
    ops = []
    if pk:
        for r in range(0, n, 2):
            ops.append(f"v_pk_fma_f32 v[{tmp+r}:{tmp+r+1}], v[{acc+r}:{acc+r+1}], s[{SLG}:{SLG+1}], s[{SLG}:{SLG+1}] neg_lo:[0,0,1] neg_hi:[0,0,1]")
    else:
        for r in range(n):
            ops.append(f"v_fma_f32 v{tmp+r}, v{acc+r}, s{SLG}, -s{SLG}")
    for r in range(n):
        ops.append(f"v_exp_f32 v{tmp+r}, v{tmp+r} clamp")
        if r >= 2:
            ops.append(f"v_max_f32 v{acc+r-2}, v{acc+r-2}, v{tmp+r-2}")
    ops.append(f"v_max_f32 v{acc+n-2}, v{acc+n-2}, v{tmp+n-2}")
    ops.append(f"v_max_f32 v{acc+n-1}, v{acc+n-1}, v{tmp+n-1}")
    if pk:
        for r in range(0, n, 2):
            ops.append(f"v_pk_add_f32 v[{acc+r}:{acc+r+1}], v[{acc+r}:{acc+r+1}], s[{SEP}:{SEP+1}]")
    else:
        for r in range(n):
            ops.append(f"v_add_f32 v{acc+r}, s{SEP}, v{acc+r}")
    for r in range(n // 2):
        ops.append(f"v_cvt_pk_bf16_f32 v{acc+r}, v{acc+2*r}, v{acc+2*r+1}")
    return ops
def spin(label, body, cnt, sleep=None, mult=1):
    a(f"s_mov_b32 s{cnt}, 0\n{label}_top:")
    a(body)
    a(f"s_cbranch_vccz {label}_done")
    if sleep: a(f"s_sleep {sleep}")
    a(f"s_add_u32 s{cnt}, s{cnt}, 1\ns_cmp_lt_u32 s{cnt}, {SPIN*mult}\ns_cbranch_scc1 {label}_top")
    a(f"{label}_done:")
def sspin(label, body, cnt, sleep=None):
    a(f"s_mov_b32 s{cnt}, 0\n{label}_top:")
    a(body)
    a(f"s_cbranch_scc1 {label}_done")
    if sleep: a(f"s_sleep {sleep}")
    a(f"s_add_u32 s{cnt}, s{cnt}, 1\ns_cmp_lt_u32 s{cnt}, {SPIN}\ns_cbranch_scc1 {label}_top")
    a(f"{label}_done:")
def pspin(label, off, depth, gap, cnt, base=36):
    regs = [base + i for i in range(depth)]
    for r in regs: a(f"s_mov_b32 s{r}, 0")
    for r in regs[:-1]:
        a(f"s_load_dword s{r}, s[22:23], s{off} glc\ns_sleep {gap}")
    a(f"s_mov_b32 s{cnt}, 0\n{label}_top:")
    for i in range(depth):
        r = regs[(i - 1) % depth]
        a(f"s_load_dword s{r}, s[22:23], s{off} glc\ns_waitcnt lgkmcnt({depth-1})")
        a(f"s_max_u32 s{T4}, s{regs[0]}, s{regs[1]}")
        for q in regs[2:]: a(f"s_max_u32 s{T4}, s{T4}, s{q}")
        a(f"s_cmp_eq_u32 s{T4}, 16\ns_cbranch_scc1 {label}_done")
    a(f"s_add_u32 s{cnt}, s{cnt}, 1\ns_cmp_lt_u32 s{cnt}, {SPIN}\ns_cbranch_scc1 {label}_top\n{label}_done:")
rare = []
def lds_add(vaddr, vone, off):
    a(f"s_mov_b64 exec, 1\nds_add_u32 v{vaddr}, v{vone} offset:{off}\ns_mov_b64 exec, -1")
def dma(voff, sr, soff, off, tag, vmq, extra=""):
    o = f"offset:{off} " if off else ""
    a(f"buffer_load_dwordx4 v{voff}, s[{sr}:{sr+3}], s{soff} offen {o}{extra}lds")
    vmq.issue(tag)

st = Stamper()
st()
a(f"""
s_load_dwordx16 s[4:19], s[0:1], 0
s_load_dwordx4 s[20:23], s[0:1], 64
s_cmp_ge_u32 s2, 256
s_cbranch_scc1 Lend
v_lshrrev_b32 v20, 6, v0
v_and_b32 v1, 63, v0
v_readfirstlane_b32 s{WV}, v20
s_and_b32 s{T0}, s2, 7
s_lshr_b32 s{T1}, s2, 3
s_and_b32 s{CBK}, s{T1}, 7
s_lshr_b32 s{T2}, s{T1}, 3
s_and_b32 s{RB}, s{T0}, 1
s_lshl_b32 s{RB}, s{RB}, 3
s_add_u32 s{RB}, s{RB}, s{CBK}
s_lshr_b32 s{CB}, s{T0}, 1
s_lshl_b32 s{CB}, s{CB}, 2
s_add_u32 s{CB}, s{CB}, s{T2}
s_lshl_b32 s{RT}, s{T0}, 2
s_add_u32 s{RT}, s{RT}, s{T2}
s_and_b32 s{WL}, s{WV}, 3
s_and_b32 s{RW}, s{WL}, 1
s_lshl_b32 s{T3}, s{T2}, 1
s_add_u32 s{RW}, s{RW}, s{T3}
s_lshl_b32 s{T3}, s{CBK}, {opts.get("orot", 3)}
s_add_u32 s{RW}, s{RW}, s{T3}
s_mov_b32 s{ONE}, 1
s_cmp_lt_u32 s{WV}, 4
s_cbranch_scc1 Lx
""")

vm = VM()
sty = Stamper(1)
a(f"""
s_add_u32 s{ROT}, s{CBK}, s{T2}
s_lshl_b32 s{ROT}, s{ROT}, 2
v_lshrrev_b32 v20, 3, v1
v_and_b32 v21, 7, v1
v_lshrrev_b32 v22, 4, v1
v_xor_b32 v23, v21, v22
v_lshlrev_b32 v2, 10, v20
v_lshl_add_u32 v2, v23, 4, v2
v_xor_b32 v3, 64, v2
v_add_u32 v3, {8192-1024}, v3
v_add_u32 v4, {2*(8192-1024)}, v2
v_add_u32 v5, {2*(8192-1024)}, v3
v_and_b32 v23, 1, v22
v_lshlrev_b32 v24, 1, v23
v_xor_b32 v24, v21, v24
v_mul_u32_u24 v25, 3072, v20
v_lshl_add_u32 v6, v24, 4, v25
v_xor_b32 v7, 64, v6
v_add_u32 v7, {8*3072-1024}, v7
v_add_u32 v10, 1024, v6
v_add_u32 v11, 1024, v7
s_lshl_b32 s{XS}, s{RB}, 17
s_lshl_b32 s{T0}, s{WL}, 15
s_add_u32 s{XS}, s{XS}, s{T0}
s_and_b32 s{WSB}, s{CB}, 7
s_lshl_b32 s{WSB}, s{WSB}, 7
s_mul_i32 s66, s{WL}, {16*3072}
s_add_u32 s66, s66, s{WSB}
s_lshl_b32 s67, s{WL}, 12
s_mov_b32 s{X+2}, {2048*1024}
s_mov_b32 s{X+3}, 0x20000
s_mov_b32 s{W+2}, {512*3072}
s_mov_b32 s{W+3}, 0x20000
""")
def chunk_setup(c):
    slot = SL[c % 4]
    a(f"s_add_u32 s{T0}, s{ROT}, {c}")
    a(f"s_and_b32 s{T0}, s{T0}, 7")
    a(f"s_lshl_b32 s{T1}, s{T0}, 7")
    a(f"s_add_u32 m0, s67, {slot}")
    a(f"s_add_u32 s{T1}, s{T1}, s{XS}")
def issue_chunk(c, setup=True):
    slot = SL[c % 4]
    if setup: chunk_setup(c)
    for q in range(4):
        dma(2 + q, X, T1, q * 1024, f"c{c}", vm)
        if q == 0: a(f"s_mul_i32 s{T2}, s{T0}, {64*3072}")
        if q == 1: a(f"s_add_u32 s{T2}, s{T2}, s66")
    a(f"s_add_u32 m0, s67, {slot+16384}")
    a("s_nop 0")
    dma(10, W, T2, 0, f"c{c}", vm)
    dma(11, W, T2, 1024, f"c{c}", vm)
    dma(6, W, T2, 2048, f"c{c}", vm)
    dma(7, W, T2, 3072, f"c{c}", vm)
def issue_wq(h):
    for i in range(4):
        a(f"s_add_u32 s{T0}, s68, {i}")
        a(f"s_and_b32 s{T0}, s{T0}, 3")
        a(f"s_add_u32 s{T2}, s{T0}, s{ROT}")
        if h: a(f"s_add_u32 s{T2}, s{T2}, 4")
        a(f"s_and_b32 s{T2}, s{T2}, 7")
        a(f"s_mul_i32 s{T2}, s{T2}, {64*3072}")
        a(f"s_lshl_b32 s{T0}, s{T0}, 13")
        a(f"s_add_u32 s{T0}, s{T0}, s69")
        a(f"s_add_u32 m0, s{T0}, {WQ+h*32768}")
        a(f"s_add_u32 s{T2}, s{T2}, s66")
        for q in range(2):
            dma(26 + q, W, T2, q * 1024, f"q{h}", vm)
chunk_setup(0)
a(f"""
s_cmp_ge_u32 s{CB}, 8
s_waitcnt lgkmcnt(0)
s_mov_b32 s{X}, s4
s_mov_b32 s{X+1}, s5
s_cselect_b32 s{W}, s12, s6
s_cselect_b32 s{W+1}, s13, s7
""")
issue_chunk(0, setup=False)
sty()
a(f"""
; Wq piece offsets v26,v27
v_lshlrev_b32 v24, 2, v23
v_xor_b32 v24, v21, v24
v_lshl_add_u32 v26, v24, 4, v25
v_add_u32 v27, {8*3072-1024}, v26
v_lshlrev_b32 v56, 10, v20
v_lshl_add_u32 v56, v24, 4, v56
v_add_u32 v57, {8192-1024}, v56
v_add_u32 v58, {2*(8192-1024)}, v56
v_add_u32 v59, {3*(8192-1024)}, v56
s_lshr_b32 s68, s{CBK}, 1
s_lshl_b32 s69, s{WL}, 11
v_lshrrev_b32 v8, 5, v1
v_and_b32 v24, 3, v1
v_bfe_u32 v25, v1, 2, 2
v_lshl_add_u32 v60, v8, 2, v25
v_lshlrev_b32 v60, 7, v60
v_lshl_add_u32 v60, v23, 5, v60
v_lshl_add_u32 v60, v24, 3, v60
v_bfe_u32 v25, v1, 3, 1
s_and_b32 s{T0}, s{WL}, 1
v_xor_b32 v25, s{T0}, v25
v_lshl_add_u32 v60, v25, 6, v60
v_lshlrev_b32 v19, 4, v1
v_mov_b32 v30, {MISC}
v_mov_b32 v31, 1
; atomic voffset v9 : g*256 + pos(d)*4
v_lshlrev_b32 v9, 8, v22
v_lshl_add_u32 v9, v24, 2, v9
v_bfe_u32 v25, v1, 2, 1
v_lshl_add_u32 v9, v25, 5, v9
v_bfe_u32 v25, v1, 3, 1
v_lshl_add_u32 v9, v25, 4, v9
; partial read addresses v20,v21 ; out transposition v12 (write), v13 (write2), v14 (read), v15 (global)
s_add_u32 s{T1}, s69, {KVP}
v_add_u32 v20, s{T1}, v19
v_lshl_add_u32 v21, v1, 2, s{T1}
v_and_b32 v28, 31, v1
v_lshl_add_u32 v12, v28, 6, s{T1}
v_bfe_u32 v25, v1, 1, 2
{"v_lshl_add_u32 v12, v8, 3, v12" if "nof64" not in opts else "v_xor_b32 v25, v25, v8"}
v_lshl_add_u32 v12, v25, 4, v12
v_xor_b32 v13, 32, v12
v_xor_b32 v16, 16, v12
v_xor_b32 v18, 48, v12
v_lshrrev_b32 v29, 2, v1
v_lshl_add_u32 v14, v29, 6, s{T1}
v_bfe_u32 v25, v1, 3, 2
v_xor_b32 v25, v25, v24
v_lshl_add_u32 v14, v25, 4, v14
v_lshlrev_b32 v15, 10, v29
v_lshl_add_u32 v15, v24, 4, v15
; kv fetch voffset v22, frag write v23 ; g voffset v28
v_min_u32 v22, 16, v28
v_lshlrev_b32 v22, 6, v22
v_lshl_add_u32 v22, v8, 5, v22
s_lshl_b32 s{T1}, s{WL}, 10
s_add_u32 s{T1}, s{T1}, {KVF}
v_add_u32 v23, s{T1}, v19
v_lshlrev_b32 v28, 2, v28
; P3: o images v24 (own), v25 (partner) ; exchange v29 (write), v17 (read)
s_lshl_b32 s{T1}, s{WL}, {13 if "nosm" not in opts else 15}
v_add_u32 v24, s{T1}, v19
v_xor_b32 v25, {"0x2000" if "nosm" not in opts else "0x8000"}, v24
s_add_u32 s{T1}, s67, {XCH}
v_lshl_add_u32 v29, v1, {3 if "nox64" not in opts else 4}, s{T1}
v_xor_b32 v17, 0x2000, v29
s_cmp_ge_u32 s{WL}, 2
s_cselect_b32 s{WO}, s14, s8
s_cselect_b32 s{WO+1}, s15, s9
s_mov_b32 s{WO+2}, {512*1024}
s_mov_b32 s{WO+3}, 0x20000
; wo col offset s14 ; staging s15 ; kv acc s12 ; kv counter s13 ; gate row s6
s_lshl_b32 s14, s{CBK}, 7
s_lshl_b32 s15, s{WL}, 14
s_add_u32 s15, s15, {STG}
v_add_u32 v60, s15, v60
v_xor_b32 v61, 0x4000, v60
s_lshr_b32 s{T1}, s{WL}, 1
s_lshl_b32 s{T1}, s{T1}, 2
s_add_u32 s{T1}, s{T1}, {MISC+16}
v_mov_b32 v62, s{T1}
s_lshl_b32 s{T0}, s{CB}, 2
s_add_u32 s{T0}, s{T0}, s{WL}
s_mul_i32 s12, s{T0}, {KVSTR}
s_add_u32 s12, s12, {KVACC}
s_and_b32 s3, s{RB}, {KA-1}
s_mul_i32 s3, s3, {KAS}
s_add_u32 s3, s3, s12
s_lshl_b32 s13, s{T0}, 10
s_add_u32 s13, s13, {KVCNT}
s_and_b32 s{T1}, s{RB}, {KR-1}
s_mul_i32 s{T1}, s{T1}, {RST}
s_add_u32 s13, s13, s{T1}
s_lshl_b32 s6, s{CB}, 11
s_add_u32 s6, s6, s{XS}
s_lshr_b32 s7, s6, 8
s_add_u32 s7, s7, {GBUF}
s_lshl_b32 s{T1}, s{RT}, 1
s_lshr_b32 s{T0}, s{WL}, 1
s_add_u32 s{T1}, s{T1}, s{T0}
s_lshl_b32 s8, s{T1}, 7
s_add_u32 s8, s8, {GBUF}
s_lshl_b32 s9, s{T1}, 10
s_add_u32 s9, s9, {OCNT}
s_and_b32 s{T0}, s{CBK}, {OR-1}
s_mul_i32 s{T0}, s{T0}, {RST}
s_add_u32 s9, s9, s{T0}
s_lshl_b32 s10, s{T1}, 15
s_lshl_b32 s{T0}, s{CBK}, 7
s_add_u32 s10, s10, s{T0}
s_and_b32 s{T0}, s{WL}, 1
s_lshl_b32 s{T0}, s{T0}, 6
s_add_u32 s10, s10, s{T0}
s_add_u32 s11, s10, 16384
v_mov_b32 v44, 0
v_mov_b32 v45, 0
""")
srd(a, WS, 22, WS_BYTES)
srd(a, OUT, 18, 2048 * 1024)
issue_chunk(1)
a("global_load_dwordx4 v[40:43], v19, s[16:17]")
vm.issue("gw")
for i in range(8):
    vm.wait(f"c{i}")
    a("s_barrier")
    if i in (0, 3, 7): sty()
    if i == 6: a(f"s_load_dword s{T4}, s[20:21], 0")
    if i == 7:
        a(f"""buffer_load_dwordx4 v[48:51], v19, s[{X}:{X+3}], s6 offen
buffer_load_dwordx4 v[52:55], v19, s[{X}:{X+3}], s6 offen offset:1024""")
        vm.issue("gate"); vm.issue("gate")
    if i + 2 < 8:
        issue_chunk(i + 2)
    else:
        issue_wq(i - 6)
WR = 128
def wreg(sg, hl, c): return WR + ((sg * 4 + hl) * 2 + c) * 4
def issue_wo(sg, part=(0, 1)):
    a(f"s_add_u32 s{T2}, s{RW}, {2*sg}")
    a(f"s_and_b32 s{T2}, s{T2}, 7")
    a(f"s_lshl_b32 s{T2}, s{T2}, 16")
    for p in part:
        a(f"s_add_u32 m0, s15, {(sg % 2) * 8192 + p * 4096}")
        if p == part[0]: a(f"s_add_u32 s{T2}, s{T2}, s14")
        if p == 1: a(f"s_add_u32 s{T2}, s{T2}, 32768")
        for q in range(4):
            dma(56 + q, WO, T2, q * 1024, f"wo{sg}{p}", vm)
def wo_tr(sg, hls=range(4)):
    for hl in hls:
        for c in range(2):
            r = wreg(sg, hl, c)
            off = (sg % 2) * 8192 + hl * 2048
            tr(r, 60 + c, off); tr(r + 2, 60 + c, off + 1024)
pc = [0]
def pair_add():
    lds_add(62, 31, 0); pc[0] += 2
def pair_wait(label):
    spin(label, f"ds_read_b32 v63, v62\ns_waitcnt lgkmcnt(0)\nv_cmp_gt_u32 vcc, {pc[0]}, v63", T3, mult=8)
def cnt_wait(label, off):
    spin(label, f"ds_read_b32 v63, v30 offset:{off}\ns_waitcnt lgkmcnt(0)\nv_cmp_gt_u32 vcc, 4, v63", T3, sleep=1, mult=8)
cnt_wait("Lad", 12)
issue_wo(0, part=(0,))
a(f"""
s_cmp_ge_u32 s{T4}, 64
s_cbranch_scc0 Lzc
Lzc_done:
""")
rare.append(f"""Lzc:
s_mov_b32 s{T3}, 0
Lzc_top:
s_load_dword s{T4}, s[20:21], 0 glc
s_waitcnt lgkmcnt(0)
s_cmp_ge_u32 s{T4}, 64
s_cbranch_scc1 Lzc_done
s_sleep 4
s_add_u32 s{T3}, s{T3}, 1
s_cmp_lt_u32 s{T3}, {SPIN}
s_cbranch_scc1 Lzc_top
s_branch Lzc_done""")
sty()
vm.wait("gate")
for k in range(4):
    a(f"v_dot2c_f32_bf16 v44, v{48+k}, v{40+k}")
    a(f"v_dot2c_f32_bf16 v45, v{52+k}, v{40+k}")
a(f"""
s_nop 2
v_permlane32_swap_b32 v44, v45
s_nop 1
v_add_f32 v44, v44, v45
s_nop 1
v_add_f32_dpp v44, v44, v44 row_ror:8 row_mask:0xf bank_mask:0xf
s_nop 1
v_add_f32_dpp v44, v44, v44 row_ror:4 row_mask:0xf bank_mask:0xf
s_nop 1
v_add_f32_dpp v44, v44, v44 row_ror:2 row_mask:0xf bank_mask:0xf
s_nop 1
v_add_f32_dpp v44, v44, v44 row_ror:1 row_mask:0xf bank_mask:0xf
v_mov_b32 v45, v44
s_nop 1
v_permlane16_swap_b32 v44, v45
s_nop 1
v_add_f32 v44, v44, v45
v_mul_f32 v44, 0xbfb8aa3b, v44
v_exp_f32 v44, v44
v_lshlrev_b32 v45, 2, v8
v_add_f32 v44, 1.0, v44
v_rcp_f32 v44, v44
""")
vm.wait("q1")
lds_add(30, 31, 0)
a("s_setprio 2")
spin("Lkp", "ds_read_b32 v36, v21 offset:1024\nds_read_b128 v[32:35], v20\ns_waitcnt lgkmcnt(0)\nv_cmp_eq_u32 vcc, 0, v36", T3, sleep=int(opts.get("psl", 1)), mult=8)
for r in range(4):
    a(f"buffer_atomic_add_f32 v{32+r}, v9, s[{WS}:{WS+3}], s3 offen offset:{r*64}")
    vm.issue("atom")
a(f"""
s_mov_b64 exec, 0xffff
buffer_atomic_add_f32 v36, v9, s[{WS}:{WS+3}], s3 offen offset:1024
s_mov_b32 exec_lo, 1
s_mov_b32 exec_hi, 1
buffer_store_dword v44, v45, s[{WS}:{WS+3}], s7 offen sc1
s_mov_b64 exec, -1
s_mov_b32 s{T4}, 1
s_mov_b32 s{T5}, 16
""")
vm.issue("atom"); vm.issue("gst")
sty()
MODE = opts.get("mode", "4")
issue_wo(0, part=(1,))
if MODE in ("1", "3"): issue_wo(1, part=(0,))
vm.wait("atom")
for r in range(1, KR):
    a(f"s_xor_b32 s{T0}, s13, {r*RST}\ns_atomic_add s{ONE}, s[22:23], s{T0}")
a(f"s_atomic_add s{T4}, s[22:23], s13 glc")
sty()
fst = sty.n + 1
def fetch():
    for r in range(KA):
        if r: a(f"s_add_u32 s{T0}, s12, {r*KAS}")
        so_ = T0 if r else 12
        b = 32 if r == 0 else 64 + 8 * r
        a(f"buffer_load_dwordx4 v[{b}:{b+3}], v22, s[{WS}:{WS+3}], s{so_} offen sc1")
        a(f"buffer_load_dwordx4 v[{b+4}:{b+7}], v22, s[{WS}:{WS+3}], s{so_} offen offset:16 sc1")
    a(f"s_mov_b32 s{T5}, -1\ns_waitcnt vmcnt(0)")
    for r in range(1, KA):
        for q in range(8): a(f"v_add_f32 v{32+q}, v{32+q}, v{64+8*r+q}")
    a(f"""v_cvt_pk_bf16_f32 v32, v32, v33
v_cvt_pk_bf16_f32 v33, v34, v35
v_cvt_pk_bf16_f32 v34, v36, v37
v_cvt_pk_bf16_f32 v35, v38, v39
ds_write_b128 v23, v[32:35]""")
    lds_add(30, 31, 4)
    a("s_setprio 0")
    if STAMPS: a(f"{TS} s[{70+2*fst}:{71+2*fst}]")
POLL = f"s_load_dword s{T4}, s[22:23], s13 glc"
def maybe_fetch(k):
    a(f"s_cmp_eq_u32 s{T4}, s{T5}\ns_cbranch_scc0 Lmf{k}")
    fetch()
    a(f"Lmf{k}:")
def must_fetch():
    a(f"s_cmp_eq_u32 s{T5}, -1\ns_cbranch_scc1 Lkv_have\ns_cmp_eq_u32 s{T4}, 16\ns_cbranch_scc1 Lpollkv_done")
    if "kd" in opts:
        a("s_waitcnt lgkmcnt(0)")
        pspin("Lpollkv", 13, int(opts["kd"]), int(opts.get("kg", 5)), T3)
    else:
        sspin("Lpollkv", POLL + f"\ns_waitcnt lgkmcnt(0)\ns_cmp_eq_u32 s{T4}, 16", T3, sleep=int(opts.get("ksleep", 1)))
    fetch()
    a("Lkv_have:")
issue_wo(1, part=((1,) if MODE in ("1", "3") else (0, 1)))
if MODE in ("0", "1"):
    a(f"s_waitcnt lgkmcnt(0)\ns_add_u32 s{T4}, s{T4}, 1")
    maybe_fetch(0)
    vm.wait("wo11"); pair_add(); pair_wait("Lps0")
    a(POLL)
    wo_tr(0); wo_tr(1)
    a("s_waitcnt lgkmcnt(0)")
    pair_add()
    sty(); sty.n += 1
    must_fetch()
    pair_wait("Lps1")
    issue_wo(2)
    cnt_wait("Lxo", 8)
    issue_wo(3)
    vm.wait("wo31"); pair_add(); pair_wait("Lps2")
    wo_tr(2); wo_tr(3)
elif MODE == "4":
    if "pa" in opts:
        vm.wait("wo11"); pair_add()
    a(f"s_waitcnt lgkmcnt(0)\ns_add_u32 s{T4}, s{T4}, 1")
    sty(); sty.n += 1
    must_fetch()
    if "pa" not in opts: pair_add()
    pair_wait("Lps0")
    if "fs" in opts:
        wo_tr(0)
        a("s_waitcnt lgkmcnt(0)")
        pair_add()
        wo_tr(1)
        pair_wait("Lps1")
        pair_add()
        issue_wo(2)
        pair_wait("Lps1b")
        issue_wo(3)
    else:
        wo_tr(0); wo_tr(1)
        a("s_waitcnt lgkmcnt(0)")
        pair_add(); pair_wait("Lps1")
        R2 = opts.get("r2", "0")
        if R2 == "0": cnt_wait("Lxo", 8)
        if R2 == "3":
            issue_wo(2, part=(0,)); cnt_wait("Lxo", 8); issue_wo(2, part=(1,))
        else:
            issue_wo(2)
        if R2 == "1": cnt_wait("Lxo", 8)
        issue_wo(3)
    if "nw" not in opts: vm.wait("wo31")
    if "nosm" in opts:
        pair_add(); pair_wait("Lps2")
        wo_tr(2); wo_tr(3)
else:
    vm.wait("wo01"); pair_add()
    a(f"s_waitcnt lgkmcnt(0)\ns_add_u32 s{T4}, s{T4}, 1")
    maybe_fetch(0)
    pair_wait("Lps0")
    a(POLL)
    wo_tr(0)
    vm.wait("wo11")
    a("s_waitcnt lgkmcnt(0)")
    pair_add()
    sty(); sty.n += 1
    must_fetch()
    pair_wait("Lps1")
    wo_tr(1)
    issue_wo(2)
    a("s_waitcnt lgkmcnt(0)")
    pair_add()
    cnt_wait("Lxo", 8)
    pair_wait("Lps2")
    issue_wo(3)
    vm.wait("wo31"); pair_add(); pair_wait("Lps3")
    wo_tr(2); wo_tr(3)
OV = ""
def o_poll(preg=36):
    a(f"s_bitcmp1_b32 s{WL}, 0\ns_cbranch_scc1 Lpollo_done")
    if "odel" in opts: a(f"s_sleep {opts['odel']}")
    if "od" in opts:
        pspin("Lpollo", 9, int(opts["od"]), int(opts.get("og", 4)), T3, preg)
    else:
        sspin("Lpollo", f"s_load_dword s{T4}, s[22:23], s9 glc\ns_waitcnt lgkmcnt(0)\ns_cmp_eq_u32 s{T4}, 16", T3, sleep=int(opts.get("osleep", 2)))
a("s_waitcnt lgkmcnt(0)")
if "yp" in opts: o_poll()
sty()
a("s_barrier")
if "nosm" not in opts:
    if "nw" in opts:
        vm.wait("wo31"); pair_add(); pair_wait("Lps2")
    wo_tr(2); wo_tr(3)
a(f"buffer_load_dword v2, v28, s[{WS}:{WS+3}], s8 offen sc1")
if "nosm" not in opts:
    a("v_add_u32 v10, 0x10000, v24\nv_add_u32 v11, 0x10000, v25\ns_waitcnt lgkmcnt(0)")
ACC = [32, 48]
OB = 64; NBUF = 16
lg = LG()
items = [(st_, k, c) for st_ in range(4) for k in range(8) for c in range(2)]
def rdO(n):
    st_, k, c = items[n]
    r = OB + 4 * (n % NBUF)
    if "nosm" not in opts:
        a(f"ds_read_b128 v[{r}:{r+3}], v{(24 if st_ < 2 else 10)+c} offset:{(st_&1)*32768 + k*1024}")
    else:
        a(f"ds_read_b128 v[{r}:{r+3}], v{24+c} offset:{st_*8192 + k*1024}")
    lg.issue(f"O{n}")
def mfO(n):
    st_, k, c = items[n]
    if n % 2 == 0: lg.wait(f"O{n+1}")
    mfma(ACC[1 if st_ < 2 else 0], wreg(2 * (st_ & 1) + (k >> 2), k & 3, c), OB + 4 * (n % NBUF), "0" if n in (0, 32) else None)
LAG = 4
done = 0
wq = list(range(4))
fin = ["s_waitcnt vmcnt(0)", "v_sub_f32 v4, 1.0, v2", f"s_cmp_ge_u32 s{WL}, 2\ns_cselect_b64 vcc, -1, 0",
       "v_cndmask_b32 v6, v2, v4, vcc", "v_cndmask_b32 v4, v4, v2, vcc"]
for n in range(64):
    if n == 56 and "sl" in opts:
        a("s_barrier")
        rdO(n); rdO(n + 1)
    if n % 16 == 0:
        if n == 48: lg.wait("W")
        if n == 0 and OV == "4": a("s_waitcnt vmcnt(1)")
        a("s_barrier")
        if n == 0: sty()
        rdO(n); rdO(n + 1)
    if n % 16 < 14 and not ("sl" in opts and n in (54, 55)): rdO(n + 2)
    if n >= LAG:
        mfO(done); done += 1
        if "nox64" not in opts:
            wq = []
            if 36 <= done < 44:
                k = done - 36
                if k == 0: a("s_nop 1")
                a(f"ds_write_b64 v29, v[{48+2*k}:{49+2*k}] offset:{k*512}"); lg.issue("W")
            if 46 <= done < 54:
                k = done - 46
                a(f"ds_read_b64 v[{48+2*k}:{49+2*k}], v17 offset:{k*512}"); lg.issue("P")
        else:
            if done in (37, 38, 40, 42):
                k = wq.pop(0)
                a(f"ds_write_b128 v29, v[{48+4*k}:{51+4*k}] offset:{k*1024}"); lg.issue("W")
            if done >= 50 and done < 54:
                k = done - 50
                a(f"ds_read_b128 v[{48+4*k}:{51+4*k}], v17 offset:{k*1024}"); lg.issue("P")
        if done >= 54 and fin: a(fin.pop(0))
assert not wq and not fin
vq = [f"v_mul_f32 v{48+r}, v{48+r}, v4" for r in range(16)]
while done < 64:
    mfO(done); done += 1
    for _ in range(4):
        a(vq.pop(0))
sty()
a("s_nop 7")
if "nof64" not in opts:
    for p in range(4):
        for r in (4 * p, 4 * p + 2):
            a(f"v_pk_fma_f32 v[{32+r}:{33+r}], v[{32+r}:{33+r}], v[6:7], v[{48+r}:{49+r}] op_sel_hi:[1,0,1]")
        a(f"v_cvt_pk_bf16_f32 v{32+4*p}, v{32+4*p}, v{33+4*p}")
        a(f"v_cvt_pk_bf16_f32 v{33+4*p}, v{34+4*p}, v{35+4*p}")
        a(f"ds_write_b64 v{[12, 16, 13, 18][p]}, v[{32+4*p}:{33+4*p}]")
else:
    for r in range(0, 16, 2):
        a(f"v_pk_fma_f32 v[{32+r}:{33+r}], v[{32+r}:{33+r}], v[6:7], v[{48+r}:{49+r}] op_sel_hi:[1,0,1]")
    for r in range(8):
        a(f"v_cvt_pk_bf16_f32 v{32+r}, v{32+2*r}, v{33+2*r}")
if "nof64" in opts:
    a("""v_permlane32_swap_b32 v32, v34
v_permlane32_swap_b32 v33, v35
v_permlane32_swap_b32 v36, v38
v_permlane32_swap_b32 v37, v39
ds_write_b128 v12, v[32:35]
ds_write_b128 v13, v[36:39]""")
a(f"""
ds_read_b128 v[64:67], v14
ds_read_b128 v[68:71], v14 offset:1024
s_waitcnt lgkmcnt(1)
buffer_store_dwordx4 v[64:67], v15, s[{OUT}:{OUT+3}], s10 offen sc1
s_waitcnt lgkmcnt(0)
buffer_store_dwordx4 v[68:71], v15, s[{OUT}:{OUT+3}], s11 offen sc1
""")
if STAMPS:
    sty()
    a("s_waitcnt vmcnt(0)")
    while sty.n < STAMPS: sty()
    a("s_branch Lstamps")
else:
    a("s_endpgm")

vm = VM()
stx = Stamper(1)
a("Lx:")
a(f"""
s_getpc_b64 s[66:67]
Lpc0:
s_sub_u32 s66, s66, Lpc0-{NAME}_kernel
s_subb_u32 s67, s67, 0
s_and_b32 s{T0}, s{CBK}, 3
s_lshl_b32 s{T0}, s{T0}, 2
s_add_u32 s{T0}, s{T0}, s{WL}
s_lshl_b32 s{T0}, s{T0}, 10
v_lshl_add_u32 v140, v1, 7, s{T0}
v_min_u32 v140, Lcode_end-{NAME}_kernel-4, v140
s_mov_b64 exec, 0xff
global_load_dword v252, v140, s[66:67]
s_mov_b64 exec, -1
v_lshlrev_b32 v14, 4, v1
v_mov_b32 v240, 0
v_mov_b32 v241, 0
v_mov_b32 v242, 0
v_mov_b32 v243, 0
v_mov_b32 v12, {MISC}
v_mov_b32 v13, 1
s_lshl_b32 s{T1}, s{WL}, 11
s_add_u32 s{T1}, s{T1}, {KVP}
v_add_u32 v5, s{T1}, v14
v_lshl_add_u32 v15, v1, 2, s{T1}
ds_write_b128 v12, v[240:243]
ds_write_b32 v15, v240 offset:1024
ds_write_b128 v12, v[240:243] offset:16
v_and_b32 v23, 3, v1
s_mov_b32 s{WS+2}, {WS_BYTES}
s_mov_b32 s{WS+3}, 0x20000
s_cmp_eq_u32 s{RB}, s{CB}
s_waitcnt lgkmcnt(0)
s_mov_b32 s{WS}, s22
s_mov_b32 s{WS+1}, s23
s_cbranch_scc0 Lnozero
s_lshl_b32 s{T0}, s{CB}, 2
s_add_u32 s{T0}, s{T0}, s{WL}
s_mul_i32 s{T1}, s{T0}, {KVSTR}
s_add_u32 s{T1}, s{T1}, {KVACC}
""")
for r in range(1, KA):
    a(f"""s_add_u32 s{T2}, s{T1}, {r*KAS}
buffer_store_dwordx4 v[240:243], v14, s[{WS}:{WS+3}], s{T2} offen sc1
s_mov_b64 exec, 0xf
buffer_store_dwordx4 v[240:243], v14, s[{WS}:{WS+3}], s{T2} offen offset:1024 sc1
s_mov_b64 exec, -1""")
a(f"""
buffer_store_dwordx4 v[240:243], v14, s[{WS}:{WS+3}], s{T1} offen sc1
s_lshl_b32 s{T2}, s{T0}, 10
s_add_u32 s{T3}, s{T2}, {OCNT}
s_add_u32 s{T2}, s{T2}, {KVCNT}
buffer_store_dwordx4 v[240:243], v14, s[{WS}:{WS+3}], s{T2} offen sc1
buffer_store_dwordx4 v[240:243], v14, s[{WS}:{WS+3}], s{T3} offen sc1
s_mov_b64 exec, 0xf
buffer_store_dwordx4 v[240:243], v14, s[{WS}:{WS+3}], s{T1} offen offset:1024 sc1
s_mov_b64 exec, -1
Lnozero:
s_mov_b32 s{SLG}, 0x{LOG2E:x}
s_mov_b32 s{SLG+1}, 0x{LOG2E:x}
s_mov_b32 s{SEP}, 0x{EPS:x}
s_mov_b32 s{SEP+1}, 0x{EPS:x}
v_and_b32 v20, 15, v1
v_lshrrev_b32 v21, 4, v1
v_lshrrev_b32 v22, 1, v20
v_xor_b32 v22, v21, v22
v_lshlrev_b32 v2, 7, v20
v_lshl_add_u32 v2, v22, 4, v2
v_xor_b32 v3, 64, v2
; W base v4
v_lshrrev_b32 v24, 5, v1
v_lshlrev_b32 v4, 12, v24
v_and_b32 v25, 1, v21
v_lshl_add_u32 v4, v25, 10, v4
v_lshrrev_b32 v26, 2, v20
v_lshl_add_u32 v4, v26, 7, v4
v_bfe_u32 v22, v1, 3, 2
v_xor_b32 v22, s{WL}, v22
v_lshl_add_u32 v4, v22, 5, v4
v_lshl_add_u32 v4, v23, 3, v4
v_add_u32 v4, 16384, v4
v_bfe_u32 v22, v1, 3, 1
v_lshl_add_u32 v10, v24, 3, v26
v_lshlrev_b32 v10, 7, v10
v_lshl_add_u32 v10, v25, 5, v10
v_lshl_add_u32 v10, v23, 3, v10
v_lshl_add_u32 v10, v22, 6, v10
v_xor_b32 v11, 64, v10
v_and_b32 v20, 31, v1
s_lshl_b32 s{T0}, s{WL}, 12
v_lshl_add_u32 v6, v20, 7, s{T0}
v_bfe_u32 v25, v1, 1, 3
v_xor_b32 v25, v24, v25
v_lshl_add_u32 v6, v25, 4, v6
v_xor_b32 v7, 32, v6
v_xor_b32 v8, 64, v6
v_xor_b32 v9, 96, v6
; o store s68 / counter s69 / o-load s66,s67 ; wo^T store T0 ; flag offset s24
s_lshl_b32 s{T1}, s{RB}, 2
s_add_u32 s{T1}, s{T1}, s{WL}
s_lshl_b32 s68, s{T1}, 16
s_lshl_b32 s{T3}, s{CB}, 12
s_add_u32 s68, s68, s{T3}
s_add_u32 s68, s68, {OBUF}
s_lshl_b32 s69, s{T1}, 10
s_add_u32 s69, s69, {OCNT}
s_lshr_b32 s{T2}, s{WL}, 1
s_lshl_b32 s66, s{RT}, 1
s_add_u32 s66, s66, s{T2}
s_lshl_b32 s66, s66, 16
s_lshl_b32 s{T2}, s{T2}, 15
s_add_u32 s66, s66, s{T2}
s_add_u32 s66, s66, {OBUF}
s_lshl_b32 s67, s{WL}, {13 if "nosm" not in opts else 15}
s_lshl_b32 s9, s{RT}, 1
s_lshr_b32 s{T0}, s{WL}, 1
s_add_u32 s9, s9, s{T0}
s_lshl_b32 s9, s9, 10
s_add_u32 s9, s9, {OCNT}
s_and_b32 s{T0}, s{CBK}, {OR-1}
s_mul_i32 s{T0}, s{T0}, {RST}
s_add_u32 s9, s9, s{T0}
""")
RG, BF, AK, AV, XR = 16, 48, 64, 96, 128
FLI = int(opts.get("fli", 2))
stx()
lg = LG()
for i in range(8):
    so = (i & 1) * 32768
    a("s_barrier")
    if i in (0, 7): stx()
    for sidx in range(16):
        n = (sidx - LAGA) % 16
        ci = i if sidx >= LAGA else i - 1
        ks = n >> 3; rt = n & 7
        em = ci >= 0
        first = (ci == 0 and ks == 0)
        if em:
            tags = [f"X{ci}_{n}"] + ([f"B{ci}_{ks}0", f"B{ci}_{ks}1"] if rt == 0 else [])
            if sidx % 2 == 0 and rt != 7:
                tags.append(f"X{ci}_{n+1}")
            if sidx % 2 == 0 or rt == 0:
                lg.wait(*tags)
            mfma16(AK + 4 * rt, RG + 4 * (n % 8), BF + ks * 8, "1.0" if first else None)
        def rdB(k_, sec, u):
            tr(BF + k_ * 8 + sec * 4 + 2 * u, 4, so + k_ * 8192 + sec * 2048 + u * 512)
            lg.issue(f"B{i}_{k_}{sec}")
        if sidx < 2:
            rdB(0, sidx, 0); rdB(0, sidx, 1)
        elif 6 <= sidx < 10:
            rdB(1, (sidx - 6) >> 1, sidx & 1)
        elif sidx in (10, 11, 12, 13):
            t = sidx - 10
            xr = XR + (4 * i + t) * 4
            a(f"ds_read_b128 v[{xr}:{xr+3}], v{6+t} offset:{so}")
            lg.issue("XR")
        elif (i & 1) and i < 7 and sidx == 14:
            a("v_xor_b32 v2, 0x10000, v2\nv_xor_b32 v4, 0x10000, v4")
        elif i > 0 and (i & 1) == 0 and sidx in (2, 3):
            k = 6 + 2 * (sidx - 2)
            a(f"v_xor_b32 v{k}, 0x10000, v{k}\nv_xor_b32 v{k+1}, 0x10000, v{k+1}")
        elif i > 0 and (i & 1) == 0 and sidx == 4:
            a("v_xor_b32 v3, 0x10000, v3")
        elif i == 1 and sidx == 2:
            a(f"s_cmp_eq_u32 s{RB}, s{CB}\ns_cbranch_scc1 Lflag\nLflag_done:")
            rare.append(f"Lflag:\ns_waitcnt vmcnt(0)\ns_atomic_add s{ONE}, s[20:21], 0\ns_branch Lflag_done")
        elif i == 5 and sidx == 2:
            a("s_waitcnt vmcnt(0)")
        if em:
            mfma16(AV + 4 * rt, RG + 4 * (n % 8), BF + ks * 8 + 4, "0" if first else None)
        r = RG + 4 * (sidx % 8)
        a(f"ds_read_b128 v[{r}:{r+3}], v{2 + (sidx >> 3)} offset:{so + (sidx & 7) * 2048}")
        lg.issue(f"X{i}_{sidx}")
for n in range(16 - LAGA, 16):
    lg.wait(f"X7_{n}")
    mfma16(AK + 4 * (n & 7), RG + 4 * (n % 8), BF + 8)
lds_add(12, 13, 12)
for n in range(16 - LAGA, 16):
    mfma16(AV + 4 * (n & 7), RG + 4 * (n % 8), BF + 12)
stx()
for op in phi_ops(AK, 32, RG, pk=True):
    a(op)
a("ds_read_b32 v2, v12")
for r in range(60, 64):
    a(f"v_mov_b32 v{r}, 0x3f803f80")
for r in range(16):
    a(f"v_cvt_pk_bf16_f32 v{AV+r}, v{AV+2*r}, v{AV+2*r+1}")
    if r % 4 == 1:
        mfma16(56, 60, AK + (r // 4) * 4, "0" if r < 4 else None)
a("s_waitcnt lgkmcnt(0)")
for p in range(4):
    mfma16(52, AV + 4 * p, AK + 4 * p, "0" if p == 0 else None)
a(f"v_add_u32 v3, {KVF}, v14\nv_cmp_ne_u32 vcc, 4, v2\ns_nop 5")
a("ds_write_b128 v5, v[52:55]\nds_write_b32 v15, v56 offset:1024\ns_cbranch_vccz Lq0_done")
spin("Lq0", "ds_read_b32 v2, v12\ns_waitcnt lgkmcnt(0)\nv_cmp_ne_u32 vcc, 4, v2", T3, mult=8)
NB = 8
seq = [(ct, s) for ct in range(2) for s in range(32)]
lgq = LG()
def qread(n):
    ct, s = seq[n]
    r = RG + (n % NB) * 4
    off = WQ + (s // 4) * 8192 + (s % 4) * 2048
    tr(r, 10 + ct, off); tr(r + 2, 10 + ct, off + 512)
    lgq.issue(f"q{n}"); lgq.issue(f"q{n}")
PF = 6
for n in range(PF):
    qread(n)
stx()
ph0 = phi_ops(64, 16, 96)
for n, (ct, s) in enumerate(seq):
    if n + PF < 64:
        qread(n + PF)
    if n % 2 == 0: lgq.wait(f"q{n+1}")
    mfma(64 + 16 * ct, RG + (n % NB) * 4, XR + s * 4, "1.0" if s == 0 else None)
    if n >= 35:
        k = (2 if n < 58 else 2) if n < 63 else len(ph0)
        for op in ph0[:k]:
            a(op)
        ph0 = ph0[k:]
assert not ph0
stx()
ph1 = phi_ops(80, 16, 96, pk=True)
for op in ph1[:-10]:
    a(op)
a("ds_read_b32 v2, v12 offset:4")
for op in ph1[-10:]:
    a(op)
stx()
a("s_waitcnt lgkmcnt(0)\nv_cmp_ne_u32 vcc, 4, v2\ns_cbranch_vccz Lkvw_done")
spin("Lkvw", "ds_read_b32 v2, v12 offset:4\ns_waitcnt lgkmcnt(0)\nv_cmp_ne_u32 vcc, 4, v2", T3, mult=8)
stx()
for h in range(4):
    a(f"ds_read_b128 v[{16+4*h}:{19+4*h}], v3 offset:{h*1024}")
PQ = [64, 68, 80, 84]
DN = [192, 208, 224, 240]
for h in range(4):
    a(f"s_waitcnt lgkmcnt({3-h})")
    mfma(DN[h], 16 + 4 * h, PQ[h], "0")
vm = VM()
def o_half(st_, hf, setup_only=False, do_setup=True):
    g = 2 * (st_ & 1) + hf
    if do_setup:
        a(f"s_add_u32 s{T2}, s{RW}, {2*g}")
        a(f"s_and_b32 s{T2}, s{T2}, 7")
        a(f"s_lshl_b32 s{T2}, s{T2}, 12")
        a(f"s_add_u32 s{T2}, s{T2}, s66")
        a(f"s_add_u32 m0, s67, {st_*(32768 if 'nosm' not in opts else 8192)+hf*4096}")
        if st_ < 2: a(f"s_xor_b32 s{T2}, s{T2}, 0x10000")
        else: a("s_nop 0")
    if setup_only: return
    for q in range(4):
        dma(14, WS, T2, q * 1024, f"o{st_}{hf}", vm, "sc1 ")
o_half(0, 0, setup_only=True)
for h in range(4):
    d = DN[h]
    a(f"v_add_f32 v{d+8}, s{SEP}, v{d+8}")
    a(f"v_rcp_f32 v{d+8}, v{d+8}")
    a("s_nop 0")
    for r in range(0, 8, 2):
        a(f"v_pk_mul_f32 v[{d+r}:{d+r+1}], v[{d+r}:{d+r+1}], v[{d+8}:{d+9}] op_sel_hi:[1,0]")
    for r in range(4):
        a(f"v_cvt_pk_bf16_f32 v{d+r}, v{d+2*r}, v{d+2*r+1}")
    a(f"buffer_store_dwordx4 v[{d}:{d+3}], v14, s[{WS}:{WS+3}], s68 offen offset:{h*1024} sc1")
lds_add(12, 13, 8)
stx()
a(f"s_waitcnt vmcnt(0)\ns_atomic_add s{ONE}, s[22:23], s69")
for r in range(1, OR):
    a(f"s_atomic_add s{ONE}, s[22:23], s69 offset:{r*RST}")
stx()
if "yp" not in opts:
    a("s_waitcnt lgkmcnt(0)" if "od" in opts else "")
    o_poll(24)
a("s_barrier")
stx()
o_half(0, 0, do_setup=False); o_half(0, 1)
if "xl" in opts:
    o_half(1, 0)
    vm.wait("o01"); a("s_barrier")
    o_half(1, 1); o_half(2, 0); o_half(2, 1)
    vm.wait("o11"); a("s_barrier")
    o_half(3, 0); o_half(3, 1)
    vm.wait("o21"); a("s_barrier")
else:
    for st_ in range(3):
        o_half(st_ + 1, 0); o_half(st_ + 1, 1)
        vm.wait(f"o{st_}1"); a("s_barrier")
if "sl" in opts: vm.wait("o30"); a("s_barrier")
vm.wait("o31"); a("s_barrier")
if STAMPS:
    while stx.n < STAMPS: stx()
    a("Lstamps:")
    a(f"v_subrev_u32 v40, {SWAVE*64}, v0")
    emit_stamp_store(a, 0, STAMPS, 70, 22, 2, 20, stmp=60, tid="v40")
a("Lend:")
a("s_endpgm")
for r in rare:
    a(r)
a("Lcode_end:")
open(sys.argv[1], "w").write(file_text([(NAME + "_kernel", 256, 512, 163840)], [(NAME + "_kernel", a.text(), 256, None)]))
```

```python
import sys, struct
from asmlib import *

opts = dict(o.split("=") if "=" in o else (o, "1") for o in sys.argv[2:])
STAMPS = int(opts.get("stamps", 0))
SWAVE = int(opts.get("swave", 0))
LAGA = 6
a = Asm()
KA = int(opts.get("ka", 1)); KAS = 0x14000
KR = int(opts.get("kr", 4)); OR = int(opts.get("or", 4)); RST = int(opts.get("rst", 256))

RSH = int(opts.get('rsh', 6)); RS = 1 << RSH
KVSTR = 1152 if RSH == 6 else 17 * RS
PB = int(opts.get('pb', 2))
ZO = 2048 if PB == 4 else 16 * RS
if PB == 4: KVSTR = 2176
WB = int(opts.get('wb', '0'), 0)
KVCNT = WB + 0x20000
OCNT = WB + 0x30000
GBUF = WB + 0x40000
OBUF = WB + 0x100000
KVACC = WB + 0x500000
WS_BYTES = WB + 0x600000
EPS = 0x358637bd
LOG2E = 0x3fb8aa3b
SPIN = int(opts.get("spin", 20000))
SL = [0, 32768, 65536, 98304, 131072]
WQ = SL[0]
STG = SL[2]
MISC = SL[4]
KVF = SL[4] + 4096
KVP = SL[4] + 8192
XCH = SL[4] + 16384

class Cnt:
    def __init__(self, name, mx): self.q = []; self.name = name; self.mx = mx
    def issue(self, tag): self.q.append(tag)
    def n_after(self, tag):
        idx = max(i for i, t in enumerate(self.q) if t == tag)
        return len(self.q) - 1 - idx
    def wait(self, *tags):
        n = min(self.mx, min(self.n_after(t) for t in tags))
        a(f"s_waitcnt {self.name}({n})")
def VM(): return Cnt("vmcnt", 63)
def LG(): return Cnt("lgkmcnt", 15)
TS = 's_memtime' if 'cyc' in opts else 's_memrealtime'
class Stamper:
    def __init__(self, start=0): self.n = start
    def __call__(self):
        if STAMPS:
            assert self.n < STAMPS, self.n
            a(f"{TS} s[{70+2*self.n}:{71+2*self.n}]")
            self.n += 1

X, W, WO, WS, OUT = 24, 28, 32, 40, 44
SLG, SEP = 36, 38
RT, CBK, RW, ONE = 48, 49, 50, 51
RB, CB, WV, ROT, XS, WSB, WL, T0, T1, T2, T3, WOS, T5, T4 = 52, 53, 54, 55, 56, 57, 58, 59, 60, 61, 62, 63, 64, 65

def mfma(d, sa, sb, c=None):
    cc = f"v[{d}:{d+15}]" if c is None else c
    a(f"v_mfma_f32_32x32x16_bf16 v[{d}:{d+15}], v[{sa}:{sa+3}], v[{sb}:{sb+3}], {cc}")
def mfma16(d, sa, sb, c=None):
    cc = f"v[{d}:{d+3}]" if c is None else c
    a(f"v_mfma_f32_16x16x32_bf16 v[{d}:{d+3}], v[{sa}:{sa+3}], v[{sb}:{sb+3}], {cc}")
def tr(r, addr, off):
    a(f"ds_read_b64_tr_b16 v[{r}:{r+1}], v{addr} offset:{off}")
def phi_ops(acc, n, tmp, pk=False):
    ops = []
    if pk:
        for r in range(0, n, 2):
            ops.append(f"v_pk_fma_f32 v[{tmp+r}:{tmp+r+1}], v[{acc+r}:{acc+r+1}], s[{SLG}:{SLG+1}], s[{SLG}:{SLG+1}] neg_lo:[0,0,1] neg_hi:[0,0,1]")
    else:
        for r in range(n):
            ops.append(f"v_fma_f32 v{tmp+r}, v{acc+r}, s{SLG}, -s{SLG}")
    for r in range(n):
        ops.append(f"v_exp_f32 v{tmp+r}, v{tmp+r} clamp")
        if r >= 2:
            ops.append(f"v_max_f32 v{acc+r-2}, v{acc+r-2}, v{tmp+r-2}")
    ops.append(f"v_max_f32 v{acc+n-2}, v{acc+n-2}, v{tmp+n-2}")
    ops.append(f"v_max_f32 v{acc+n-1}, v{acc+n-1}, v{tmp+n-1}")
    if pk:
        for r in range(0, n, 2):
            ops.append(f"v_pk_add_f32 v[{acc+r}:{acc+r+1}], v[{acc+r}:{acc+r+1}], s[{SEP}:{SEP+1}]")
    else:
        for r in range(n):
            ops.append(f"v_add_f32 v{acc+r}, s{SEP}, v{acc+r}")
    for r in range(n // 2):
        ops.append(f"v_cvt_pk_bf16_f32 v{acc+r}, v{acc+2*r}, v{acc+2*r+1}")
    return ops
def spin(label, body, cnt, sleep=None, mult=1):
    a(f"s_mov_b32 s{cnt}, 0\n{label}_top:")
    a(body)
    a(f"s_cbranch_vccz {label}_done")
    if sleep: a(f"s_sleep {sleep}")
    a(f"s_add_u32 s{cnt}, s{cnt}, 1\ns_cmp_lt_u32 s{cnt}, {SPIN*mult}\ns_cbranch_scc1 {label}_top")
    a(f"{label}_done:")
def sspin(label, body, cnt, sleep=None):
    a(f"s_mov_b32 s{cnt}, 0\n{label}_top:")
    a(body)
    a(f"s_cbranch_scc1 {label}_done")
    if sleep: a(f"s_sleep {sleep}")
    a(f"s_add_u32 s{cnt}, s{cnt}, 1\ns_cmp_lt_u32 s{cnt}, {SPIN}\ns_cbranch_scc1 {label}_top")
    a(f"{label}_done:")
def pspin(label, off, depth, gap, cnt, base=36):
    regs = [base + i for i in range(depth)]
    for r in regs: a(f"s_mov_b32 s{r}, 0")
    for r in regs[:-1]:
        a(f"s_load_dword s{r}, s[22:23], s{off} glc\ns_sleep {gap}")
    a(f"s_mov_b32 s{cnt}, 0\n{label}_top:")
    for i in range(depth):
        r = regs[(i - 1) % depth]
        a(f"s_load_dword s{r}, s[22:23], s{off} glc\ns_waitcnt lgkmcnt({depth-1})")
        a(f"s_max_u32 s{T4}, s{regs[0]}, s{regs[1]}")
        for q in regs[2:]: a(f"s_max_u32 s{T4}, s{T4}, s{q}")
        a(f"s_cmp_eq_u32 s{T4}, 16\ns_cbranch_scc1 {label}_done")
    a(f"s_add_u32 s{cnt}, s{cnt}, 1\ns_cmp_lt_u32 s{cnt}, {SPIN}\ns_cbranch_scc1 {label}_top\n{label}_done:")
rare = []
def lds_add(vaddr, vone, off):
    a(f"s_mov_b64 exec, 1\nds_add_u32 v{vaddr}, v{vone} offset:{off}\ns_mov_b64 exec, -1")
def dma(voff, sr, soff, off, tag, vmq, extra=""):
    o = f"offset:{off} " if off else ""
    a(f"buffer_load_dwordx4 v{voff}, s[{sr}:{sr+3}], s{soff} offen {o}{extra}lds")
    vmq.issue(tag)

st = Stamper()
st()
COMMON = f"""
s_load_dwordx16 s[4:19], s[0:1], 0
s_load_dwordx4 s[20:23], s[0:1], 64
s_and_b32 s{T3}, s2, 7
s_lshl2_add_u32 s{RT}, s{T3}, s3
s_lshr_b32 s{CB}, s{T3}, 1
s_lshl2_add_u32 s{CB}, s{CB}, s3
s_and_b32 s{RW}, s{WL}, 1
s_lshl1_add_u32 s{RW}, s3, s{RW}
s_mov_b32 s{ONE}, 1
"""
a(f"""
s_load_dwordx2 s[{X}:{X+1}], s[0:1], 0
s_and_b32 s{T0}, s2, 4
s_mul_i32 s{T0}, s{T0}, 6
s_load_dwordx2 s[{W}:{W+1}], s[0:1], s{T0} offset:8
v_readfirstlane_b32 s{WV}, v0
s_cmpk_ge_u32 s2, 256
s_cbranch_scc1 Lend
v_and_b32 v1, 63, v0
s_lshr_b32 s{T1}, s2, 3
s_and_b32 s{CBK}, s{T1}, 7
s_lshr_b32 s3, s{T1}, 3
s_and_b32 s{RB}, s2, 1
s_lshl3_add_u32 s{RB}, s{RB}, s{CBK}
s_lshr_b32 s{WL}, s{WV}, 6
s_and_b32 s{WL}, s{WL}, 3
s_cmpk_lt_u32 s{WV}, 256
s_cbranch_scc1 Lx
""")

vm = VM()
sty = Stamper(1)
a(f"""
v_lshrrev_b32 v20, 3, v1
v_and_b32 v21, 7, v1
v_lshrrev_b32 v22, 4, v1
v_xor_b32 v23, v21, v22
v_lshlrev_b32 v2, 10, v20
v_lshl_add_u32 v2, v23, 4, v2
s_add_u32 s{ROT}, s{CBK}, s3
s_lshl_b32 s{ROT}, s{ROT}, 2
s_and_b32 s{T0}, s{ROT}, 7
s_lshl2_add_u32 s{XS}, s{RB}, s{WL}
s_lshl_b32 s{XS}, s{XS}, 15
s_lshl_b32 s{T1}, s{T0}, 7
s_add_u32 s{T1}, s{T1}, s{XS}
s_lshl_b32 s67, s{WL}, 12
s_mov_b32 m0, s67
s_mov_b32 s{X+2}, {2048*1024}
s_mov_b32 s{X+3}, 0x20000
v_xor_b32 v3, 64, v2
v_add_u32 v3, {8192-1024}, v3
s_waitcnt lgkmcnt(0)
buffer_load_dwordx4 v2, s[{X}:{X+3}], s{T1} offen lds
v_add_u32 v4, {2*(8192-1024)}, v2
v_add_u32 v5, {2*(8192-1024)}, v3
buffer_load_dwordx4 v3, s[{X}:{X+3}], s{T1} offen offset:1024 lds
v_and_b32 v23, 1, v22
v_lshlrev_b32 v24, 1, v23
v_xor_b32 v24, v21, v24
v_mul_u32_u24 v25, 3072, v20
buffer_load_dwordx4 v4, s[{X}:{X+3}], s{T1} offen offset:2048 lds
v_lshl_add_u32 v6, v24, 4, v25
s_and_b32 s{WSB}, s2, 2
s_lshl1_add_u32 s{WSB}, s{WSB}, s3
s_lshl_b32 s{WSB}, s{WSB}, 7
s_mul_i32 s66, s{WL}, {16*3072}
buffer_load_dwordx4 v5, s[{X}:{X+3}], s{T1} offen offset:3072 lds
s_add_u32 s66, s66, s{WSB}
s_mul_i32 s{T2}, s{T0}, {64*3072}
s_add_u32 s{T2}, s{T2}, s66
s_mov_b32 s{W+2}, {512*3072}
s_mov_b32 s{W+3}, s{X+3}
s_add_u32 m0, s67, 16384
v_xor_b32 v7, 64, v6
buffer_load_dwordx4 v6, s[{W}:{W+3}], s{T2} offen offset:2048 lds
v_add_u32 v7, {8*3072-1024}, v7
v_add_u32 v10, 1024, v6
buffer_load_dwordx4 v7, s[{W}:{W+3}], s{T2} offen offset:3072 lds
v_add_u32 v11, 1024, v7
buffer_load_dwordx4 v10, s[{W}:{W+3}], s{T2} offen lds
buffer_load_dwordx4 v11, s[{W}:{W+3}], s{T2} offen offset:1024 lds
""")
for _ in range(8): vm.issue("c0")
def chunk_setup(c):
    slot = SL[c % 4]
    a(f"s_add_u32 s{T0}, s{ROT}, {c}")
    a(f"s_and_b32 s{T0}, s{T0}, 7")
    a(f"s_lshl_b32 s{T1}, s{T0}, 7")
    a(f"s_add_u32 m0, s67, {slot}")
    a(f"s_add_u32 s{T1}, s{T1}, s{XS}")
def issue_chunk(c, setup=True):
    slot = SL[c % 4]
    if setup: chunk_setup(c)
    for q in range(4):
        dma(2 + q, X, T1, q * 1024, f"c{c}", vm)
        if q == 0: a(f"s_mul_i32 s{T2}, s{T0}, {64*3072}")
        if q == 1: a(f"s_add_u32 s{T2}, s{T2}, s66")
    a(f"s_add_u32 m0, s67, {slot+16384}")
    a("s_nop 0")
    dma(10, W, T2, 0, f"c{c}", vm)
    dma(11, W, T2, 1024, f"c{c}", vm)
    dma(6, W, T2, 2048, f"c{c}", vm)
    dma(7, W, T2, 3072, f"c{c}", vm)
def issue_wq(h):
    for i in range(4):
        a(f"s_add_u32 s{T0}, s68, {i}")
        a(f"s_and_b32 s{T0}, s{T0}, 3")
        a(f"s_add_u32 s{T2}, s{T0}, s{ROT}")
        if h: a(f"s_add_u32 s{T2}, s{T2}, 4")
        a(f"s_and_b32 s{T2}, s{T2}, 7")
        a(f"s_mul_i32 s{T2}, s{T2}, {64*3072}")
        a(f"s_lshl_b32 s{T0}, s{T0}, 13")
        a(f"s_add_u32 s{T0}, s{T0}, s69")
        a(f"s_add_u32 m0, s{T0}, {WQ+h*32768}")
        a(f"s_add_u32 s{T2}, s{T2}, s66")
        for q in range(2):
            dma(26 + q, W, T2, q * 1024, f"q{h}", vm)
sty()
a(COMMON)
a(f"""
; Wq piece offsets v26,v27
v_lshlrev_b32 v24, 2, v23
v_xor_b32 v24, v21, v24
v_lshl_add_u32 v26, v24, 4, v25
v_add_u32 v27, {8*3072-1024}, v26
v_lshlrev_b32 v56, 10, v20
v_lshl_add_u32 v56, v24, 4, v56
v_add_u32 v57, {8192-1024}, v56
v_add_u32 v58, {2*(8192-1024)}, v56
v_add_u32 v59, {3*(8192-1024)}, v56
s_lshr_b32 s68, s{CBK}, 1
s_lshl_b32 s69, s{WL}, 11
v_lshrrev_b32 v8, 5, v1
v_and_b32 v24, 3, v1
v_bfe_u32 v25, v1, 2, 2
v_lshl_add_u32 v60, v8, 2, v25
v_lshlrev_b32 v60, 7, v60
v_lshl_add_u32 v60, v23, 5, v60
v_lshl_add_u32 v60, v24, 3, v60
v_bfe_u32 v25, v1, 3, 1
s_and_b32 s{T0}, s{WL}, 1
v_xor_b32 v25, s{T0}, v25
v_lshl_add_u32 v60, v25, 6, v60
v_lshlrev_b32 v19, 4, v1
v_mov_b32 v30, {MISC}
v_mov_b32 v31, 1
; atomic voffset v9 : g*256 + pos(d)*4
v_lshlrev_b32 v9, {RSH+2}, v22
v_lshl_add_u32 v9, v24, 2, v9
v_bfe_u32 v25, v1, 2, 1
v_lshl_add_u32 v9, v25, 5, v9
v_bfe_u32 v25, v1, 3, 1
v_lshl_add_u32 v9, v25, 4, v9
""")
T128 = opts.get("tm") == "128"
T128A = f"s_and_b32 s{T1}, s69, 0x1000\ns_add_u32 s{T1}, s{T1}, {KVP}\ns_and_b32 s{T0}, s{WL}, 1\ns_lshl_b32 s{T0}, s{T0}, 2"
T128B = f"v_and_b32 v25, 7, v1\nv_xor_b32 v25, s{T0}, v25"
T128C = f"""s_add_u32 s{T1}, s69, {KVP}
v_lshrrev_b32 v29, 3, v1
v_lshl_add_u32 v14, v29, 7, s{T1}
v_and_b32 v25, 7, v1
v_lshlrev_b32 v15, 10, v29
v_lshl_add_u32 v15, v25, 4, v15
v_xor_b32 v25, v25, v29
v_lshl_add_u32 v14, v25, 4, v14"""
T64C = f"""v_lshrrev_b32 v29, 2, v1
v_lshl_add_u32 v14, v29, 6, s{T1}
v_bfe_u32 v25, v1, 3, 2
v_xor_b32 v25, v25, v24
v_lshl_add_u32 v14, v25, 4, v14
v_lshlrev_b32 v15, 10, v29
v_lshl_add_u32 v15, v24, 4, v15"""
LATEV = f"""; partial read addresses v20,v21 ; out transposition v12 (write), v13 (write2), v14 (read), v15 (global)
s_add_u32 s{T1}, s69, {KVP}
v_add_u32 v20, s{T1}, v19
v_lshl_add_u32 v21, v1, 2, s{T1}
v_and_b32 v28, 31, v1
{T128A if T128 else ""}
v_lshl_add_u32 v12, v28, {7 if T128 else 6}, s{T1}
{T128B if T128 else "v_bfe_u32 v25, v1, 1, 2"}
{"v_lshl_add_u32 v12, v8, 3, v12" if "nof64" not in opts else "v_xor_b32 v25, v25, v8"}
v_lshl_add_u32 v12, v25, 4, v12
v_xor_b32 v13, 32, v12
v_xor_b32 v16, 16, v12
v_xor_b32 v18, 48, v12
{T128C if T128 else T64C}
v_lshrrev_b32 v29, 2, v1
; kv fetch voffset v22, frag write v23 ; g voffset v28
v_lshlrev_b32 v22, {RSH}, v29
v_lshl_add_u32 v22, v24, 4, v22
s_lshl_b32 s{T1}, s{WL}, 10
s_add_u32 s{T1}, s{T1}, {KVF}
v_lshl_add_u32 v23, v1, 3, s{T1}
v_lshlrev_b32 v28, 2, v28
; P3: o images v24 (own), v25 (partner) ; exchange v29 (write), v17 (read)
s_lshl_b32 s{T1}, s{WL}, {13 if "nosm" not in opts else 15}
v_add_u32 v24, s{T1}, v19
v_xor_b32 v25, {"0x2000" if "nosm" not in opts else "0x8000"}, v24
s_add_u32 s{T1}, s67, {XCH}
v_lshl_add_u32 v29, v1, {3 if "nox64" not in opts else 4}, s{T1}
v_xor_b32 v17, 0x2000, v29
"""
LATE = int(opts.get("late", 1))
if LATE < 0: a(LATEV)
a(f"""
s_cmp_ge_u32 s{WL}, 2
s_waitcnt lgkmcnt(0)
s_cselect_b32 s{WO}, s14, s8
s_cselect_b32 s{WO+1}, s15, s9
s_mov_b32 s{WO+2}, {512*1024}
s_mov_b32 s{WO+3}, 0x20000
; wo col offset s14 ; staging s15 ; kv acc s12 ; kv counter s13 ; gate row s6
s_lshl_b32 s14, s{CBK}, 7
s_lshl_b32 s15, s{WL}, 14
s_add_u32 s15, s15, {STG}
s_lshl_b32 s{WOS}, s{WL}, 13
v_add_u32 v46, s{WOS}, v60
v_xor_b32 v47, 0x2000, v46
v_add_u32 v60, s15, v60
v_xor_b32 v61, 0x4000, v60
s_lshr_b32 s{T1}, s{WL}, 1
s_lshl_b32 s{T1}, s{T1}, 2
s_add_u32 s{T1}, s{T1}, {MISC+16}
v_mov_b32 v62, s{T1}
s_lshl_b32 s{T0}, s{CB}, 2
s_add_u32 s{T0}, s{T0}, s{WL}
s_mul_i32 s12, s{T0}, {KVSTR}
s_add_u32 s12, s12, {KVACC}
s_and_b32 s3, s{RB}, {KA-1}
s_mul_i32 s3, s3, {KAS}
s_add_u32 s3, s3, s12
s_lshl_b32 s13, s{T0}, 10
s_add_u32 s13, s13, {KVCNT}
s_and_b32 s{T1}, s{RB}, {KR-1}
s_mul_i32 s{T1}, s{T1}, {RST}
s_add_u32 s13, s13, s{T1}
s_lshl_b32 s6, s{CB}, 11
s_add_u32 s6, s6, s{XS}
s_lshr_b32 s7, s6, 8
s_add_u32 s7, s7, {GBUF}
""")
LATES = f"""; P3: g s8 ; o counter s9 ; out s10,s11
s_lshl_b32 s{T1}, s{RT}, 1
s_lshr_b32 s{T0}, s{WL}, 1
s_add_u32 s{T1}, s{T1}, s{T0}
s_lshl_b32 s8, s{T1}, 7
s_add_u32 s8, s8, {GBUF}
s_lshl_b32 s9, s{T1}, 10
s_add_u32 s9, s9, {OCNT}
s_and_b32 s{T0}, s{CBK}, {OR-1}
s_mul_i32 s{T0}, s{T0}, {RST}
s_add_u32 s9, s9, s{T0}
s_lshl_b32 s10, s{T1}, 15
s_lshl_b32 s{T0}, s{CBK}, 7
s_add_u32 s10, s10, s{T0}
s_and_b32 s{T0}, s{WL}, 1
s_lshl_b32 s{T0}, s{T0}, {14 if T128 else 6}
s_add_u32 s10, s10, s{T0}
s_add_u32 s11, s10, {8192 if T128 else 16384}
"""
if LATE < 0: a(LATES)
a(f"""
v_mov_b32 v44, 0
v_mov_b32 v45, 0
""")
srd(a, WS, 22, WS_BYTES)
srd(a, OUT, 18, 2048 * 1024)
issue_chunk(1)
a("global_load_dwordx4 v[40:43], v19, s[16:17]")
vm.issue("gw")
for i in range(8):
    vm.wait(f"c{i}")
    a("s_barrier")
    if i in (0, 3, 7): sty()
    if i == 6: a(f"s_load_dword s{T4}, s[20:21], 0")
    if i == 7:
        a(f"""buffer_load_dwordx4 v[48:51], v19, s[{X}:{X+3}], s6 offen
buffer_load_dwordx4 v[52:55], v19, s[{X}:{X+3}], s6 offen offset:1024""")
        vm.issue("gate"); vm.issue("gate")
    if i + 2 < 8:
        issue_chunk(i + 2)
    else:
        issue_wq(i - 6)
    if i == LATE:
        a(LATEV); a(LATES)
WR = 128
def wreg(sg, hl, c): return WR + ((sg * 4 + hl) * 2 + c) * 4
def issue_wo(sg, part=(0, 1)):
    a(f"s_add_u32 s{T2}, s{RW}, {2*sg}")
    a(f"s_and_b32 s{T2}, s{T2}, 7")
    a(f"s_lshl_b32 s{T2}, s{T2}, 16")
    for p in part:
        if opts.get("mode") in ("5", "7") and sg >= 2:
            a(f"s_add_u32 m0, s{WOS}, {(sg - 2) * 32768 + p * 4096}")
        else:
            a(f"s_add_u32 m0, s15, {(sg % 2) * 8192 + p * 4096}")
        if p == part[0]: a(f"s_add_u32 s{T2}, s{T2}, s14")
        if p == 1: a(f"s_add_u32 s{T2}, s{T2}, 32768")
        for q in range(4):
            dma(56 + q, WO, T2, q * 1024, f"wo{sg}{p}", vm)
def wo_tr(sg, hls=range(4)):
    for hl in hls:
        for c in range(2):
            r = wreg(sg, hl, c)
            off = (sg % 2) * 8192 + hl * 2048
            b_ = 60
            if opts.get("mode") in ("5", "7") and sg >= 2:
                off = (sg - 2) * 32768 + hl * 2048; b_ = 46
            tr(r, b_ + c, off); tr(r + 2, b_ + c, off + 1024)
pc = [0]
def pair_add():
    lds_add(62, 31, 0); pc[0] += 2
def pair_wait(label):
    spin(label, f"ds_read_b32 v63, v62\ns_waitcnt lgkmcnt(0)\nv_cmp_gt_u32 vcc, {pc[0]}, v63", T3, mult=8)
def cnt_wait(label, off):
    spin(label, f"ds_read_b32 v63, v30 offset:{off}\ns_waitcnt lgkmcnt(0)\nv_cmp_gt_u32 vcc, 4, v63", T3, sleep=1, mult=8)
M5 = opts.get("mode") in ("5", "7")
QS = "qs" in opts or M5
if QS:
    vm.wait("q0")
    lds_add(30, 31, 0)
cnt_wait("Lad", 12)
E0 = opts.get("e0", "0")
if E0 == "0": issue_wo(0, part=(0,))
a(f"""
s_cmp_ge_u32 s{T4}, 64
s_cbranch_scc0 Lzc
Lzc_done:
""")
rare.append(f"""Lzc:
s_mov_b32 s{T3}, 0
Lzc_top:
s_load_dword s{T4}, s[20:21], 0 glc
s_waitcnt lgkmcnt(0)
s_cmp_ge_u32 s{T4}, 64
s_cbranch_scc1 Lzc_done
s_sleep 4
s_add_u32 s{T3}, s{T3}, 1
s_cmp_lt_u32 s{T3}, {SPIN}
s_cbranch_scc1 Lzc_top
s_branch Lzc_done""")
sty()
vm.wait("gate")
for k in range(4):
    a(f"v_dot2c_f32_bf16 v44, v{48+k}, v{40+k}")
    a(f"v_dot2c_f32_bf16 v45, v{52+k}, v{40+k}")
a(f"""
s_nop 2
v_permlane32_swap_b32 v44, v45
s_nop 1
v_add_f32 v44, v44, v45
s_nop 1
v_add_f32_dpp v44, v44, v44 row_ror:8 row_mask:0xf bank_mask:0xf
s_nop 1
v_add_f32_dpp v44, v44, v44 row_ror:4 row_mask:0xf bank_mask:0xf
s_nop 1
v_add_f32_dpp v44, v44, v44 row_ror:2 row_mask:0xf bank_mask:0xf
s_nop 1
v_add_f32_dpp v44, v44, v44 row_ror:1 row_mask:0xf bank_mask:0xf
v_mov_b32 v45, v44
s_nop 1
v_permlane16_swap_b32 v44, v45
s_nop 1
v_add_f32 v44, v44, v45
{"" if "nogr" in opts else "v_cvt_pk_bf16_f32 v44, v44, v44" + chr(10) + "v_and_b32 v44, 0xffff0000, v44"}
v_mul_f32 v44, 0xbfb8aa3b, v44
v_exp_f32 v44, v44
v_lshlrev_b32 v45, 2, v8
v_add_f32 v44, 1.0, v44
v_rcp_f32 v44, v44
{"" if "nogr" in opts else "s_nop 0" + chr(10) + "v_cvt_pk_bf16_f32 v44, v44, v44" + chr(10) + "v_and_b32 v44, 0xffff0000, v44"}
""")
if not QS:
    vm.wait("q1")
    lds_add(30, 31, 0)
a("s_setprio 2")
if PB:
    a(f"v_lshlrev_b32 v37, 2, v1\ns_and_b32 s{T0}, s{RB}, {PB-1}\ns_lshl_b32 s{T0}, s{T0}, 9\ns_add_u32 s{T0}, s{T0}, s12")
    spin("Lkp", "ds_read_b32 v36, v21 offset:1024\nds_read_b32 v32, v21\nds_read_b32 v33, v21 offset:256\ns_waitcnt lgkmcnt(0)\nv_cmp_eq_u32 vcc, 0, v36", T3, sleep=int(opts.get("psl", 1)), mult=8)
    for r in range(2):
        a(f"buffer_atomic_pk_add_bf16 v{32+r}, v37, s[{WS}:{WS+3}], s{T0} offen offset:{r*256}")
        vm.issue("atom")
else:
    spin("Lkp", "ds_read_b32 v36, v21 offset:1024\nds_read_b128 v[32:35], v20\ns_waitcnt lgkmcnt(0)\nv_cmp_eq_u32 vcc, 0, v36", T3, sleep=int(opts.get("psl", 1)), mult=8)
    for r in range(4):
        a(f"buffer_atomic_add_f32 v{32+r}, v9, s[{WS}:{WS+3}], s3 offen offset:{r*RS}")
        vm.issue("atom")
a(f"""
s_mov_b64 exec, 0xffff
s_add_u32 s3, s3, {ZO}
buffer_atomic_add_f32 v36, v9, s[{WS}:{WS+3}], s3 offen
s_mov_b32 exec_lo, 1
s_mov_b32 exec_hi, 1
buffer_store_dword v44, v45, s[{WS}:{WS+3}], s7 offen sc1
s_mov_b64 exec, -1
s_mov_b32 s{T4}, 1
s_mov_b32 s{T5}, 16
v_lshlrev_b32 v38, 3, v1
""")
vm.issue("atom"); vm.issue("gst")
sty()
if QS:
    vm.wait("q1")
    lds_add(30, 31, 24)
MODE = opts.get("mode", "4")
if E0 == "0": issue_wo(0, part=(1,))
if E0 == "1": issue_wo(0, part=(0,))
if E0 == "2":
    a("s_sleep 2"); issue_wo(0)
if MODE in ("1", "3"): issue_wo(1, part=(0,))
vm.wait("atom")
for r in range(1, KR):
    a(f"s_xor_b32 s{T0}, s13, {r*RST}\ns_atomic_add s{ONE}, s[22:23], s{T0}")
a(f"s_atomic_add s{T4}, s[22:23], s13 glc")
sty()
fst = sty.n + 1
def fetch():
    if PB:
        a(f"buffer_load_dwordx2 v[32:33], v38, s[{WS}:{WS+3}], s12 offen sc1")
        for r in range(1, PB):
            a(f"buffer_load_dwordx2 v[{64+2*r}:{65+2*r}], v38, s[{WS}:{WS+3}], s12 offen offset:{512*r} sc1")
        a(f"""s_mov_b64 exec, 0xf
buffer_load_dwordx4 v[40:43], v22, s[{WS}:{WS+3}], s3 offen sc1
s_mov_b64 exec, -1
s_mov_b32 s{T5}, -1
s_waitcnt vmcnt(0)""")
        if PB > 1:
            for q in range(2):
                a(f"v_lshlrev_b32 v48, 16, v{32+q}\nv_and_b32 v49, 0xffff0000, v{32+q}")
                for r in range(1, PB):
                    a(f"v_lshlrev_b32 v50, 16, v{64+2*r+q}\nv_and_b32 v51, 0xffff0000, v{64+2*r+q}\nv_add_f32 v48, v48, v50\nv_add_f32 v49, v49, v51")
                a(f"v_cvt_pk_bf16_f32 v{32+q}, v48, v49")
        a(f"""ds_write_b64 v23, v[32:33]
v_cvt_pk_bf16_f32 v34, v40, v41
v_cvt_pk_bf16_f32 v35, v42, v43
s_mov_b64 exec, 0xf
ds_write_b64 v23, v[34:35] offset:512""")
    else:
        a(f"""buffer_load_dwordx4 v[32:35], v22, s[{WS}:{WS+3}], s12 offen sc1
s_mov_b64 exec, 0xf
buffer_load_dwordx4 v[36:39], v22, s[{WS}:{WS+3}], s3 offen sc1
s_mov_b64 exec, -1
s_mov_b32 s{T5}, -1
s_waitcnt vmcnt(0)
v_cvt_pk_bf16_f32 v32, v32, v33
v_cvt_pk_bf16_f32 v33, v34, v35
v_cvt_pk_bf16_f32 v34, v36, v37
v_cvt_pk_bf16_f32 v35, v38, v39
ds_write_b64 v23, v[32:33]
s_mov_b64 exec, 0xf
ds_write_b64 v23, v[34:35] offset:512""")
    lds_add(30, 31, 4)
    a("s_setprio 0")
    if STAMPS: a(f"{TS} s[{70+2*fst}:{71+2*fst}]")
POLL = f"s_load_dword s{T4}, s[22:23], s13 glc"
def maybe_fetch(k):
    a(f"s_cmp_eq_u32 s{T4}, s{T5}\ns_cbranch_scc0 Lmf{k}")
    fetch()
    a(f"Lmf{k}:")
def must_fetch():
    a(f"s_cmp_eq_u32 s{T5}, -1\ns_cbranch_scc1 Lkv_have\ns_cmp_eq_u32 s{T4}, 16\ns_cbranch_scc1 Lpollkv_done")
    if "kd" in opts:
        a("s_waitcnt lgkmcnt(0)")
        pspin("Lpollkv", 13, int(opts["kd"]), int(opts.get("kg", 5)), T3)
    else:
        sspin("Lpollkv", POLL + f"\ns_waitcnt lgkmcnt(0)\ns_cmp_eq_u32 s{T4}, 16", T3, sleep=int(opts.get("ksleep", 1)))
    fetch()
    a("Lkv_have:")
if E0 == "1": issue_wo(0, part=(1,))
if MODE != "7": issue_wo(1, part=((1,) if MODE in ("1", "3") else (0, 1)))
if MODE == "7":
    a(f"s_waitcnt lgkmcnt(0)\ns_add_u32 s{T4}, s{T4}, 1")
    sty(); sty.n += 1
    must_fetch()
    issue_wo(1)
    cnt_wait("Ls1", 8)
    issue_wo(2); issue_wo(3)
    vm.wait("wo11")
    pair_add(); pair_wait("Lps0")
    wo_tr(0); wo_tr(1)
    vm.wait("wo31")
    pair_add(); pair_wait("Lps2")
    wo_tr(2); wo_tr(3)
elif MODE in ("0", "1"):
    a(f"s_waitcnt lgkmcnt(0)\ns_add_u32 s{T4}, s{T4}, 1")
    maybe_fetch(0)
    vm.wait("wo11"); pair_add(); pair_wait("Lps0")
    a(POLL)
    wo_tr(0); wo_tr(1)
    a("s_waitcnt lgkmcnt(0)")
    pair_add()
    sty(); sty.n += 1
    must_fetch()
    pair_wait("Lps1")
    issue_wo(2)
    cnt_wait("Lxo", 8)
    issue_wo(3)
    vm.wait("wo31"); pair_add(); pair_wait("Lps2")
    wo_tr(2); wo_tr(3)
elif MODE == "5":
    cnt_wait("Ls0", 28)
    a(f"s_add_u32 s{T4}, s{T4}, 1")
    maybe_fetch(0)
    a(f"s_cmp_eq_u32 s{T5}, -1\ns_cbranch_scc1 Lnp5\n" + POLL + "\nLnp5:")
    issue_wo(2)
    a("s_waitcnt lgkmcnt(0)")
    sty(); sty.n += 1
    must_fetch()
    pair_add()
    if opts.get("s3") == "1":
        pair_wait("Lps0"); wo_tr(0)
    cnt_wait("Ls1", 32 if opts.get("s3") != "2" else 8)
    issue_wo(3)
    if opts.get("s3") != "1":
        pair_wait("Lps0"); wo_tr(0)
    wo_tr(1)
    vm.wait("wo31")
    pair_add(); pair_wait("Lps2")
    wo_tr(2); wo_tr(3)
elif MODE == "4":
    if "pa" in opts:
        vm.wait("wo11"); pair_add()
    a(f"s_waitcnt lgkmcnt(0)\ns_add_u32 s{T4}, s{T4}, 1")
    sty(); sty.n += 1
    must_fetch()
    if "pa" not in opts: pair_add()
    pair_wait("Lps0")
    if "fs" in opts:
        wo_tr(0)
        a("s_waitcnt lgkmcnt(0)")
        pair_add()
        wo_tr(1)
        pair_wait("Lps1")
        pair_add()
        issue_wo(2)
        pair_wait("Lps1b")
        issue_wo(3)
    else:
        wo_tr(0); wo_tr(1)
        a("s_waitcnt lgkmcnt(0)")
        pair_add(); pair_wait("Lps1")
        R2 = opts.get("r2", "0")
        if R2 == "0": cnt_wait("Lxo", 8)
        if R2 == "3":
            issue_wo(2, part=(0,)); cnt_wait("Lxo", 8); issue_wo(2, part=(1,))
        else:
            issue_wo(2)
        if R2 == "1": cnt_wait("Lxo", 8)
        issue_wo(3)
    if "nw" not in opts: vm.wait("wo31")
    if "nosm" in opts:
        pair_add(); pair_wait("Lps2")
        wo_tr(2); wo_tr(3)
else:
    vm.wait("wo01"); pair_add()
    a(f"s_waitcnt lgkmcnt(0)\ns_add_u32 s{T4}, s{T4}, 1")
    maybe_fetch(0)
    pair_wait("Lps0")
    a(POLL)
    wo_tr(0)
    vm.wait("wo11")
    a("s_waitcnt lgkmcnt(0)")
    pair_add()
    sty(); sty.n += 1
    must_fetch()
    pair_wait("Lps1")
    wo_tr(1)
    issue_wo(2)
    a("s_waitcnt lgkmcnt(0)")
    pair_add()
    cnt_wait("Lxo", 8)
    pair_wait("Lps2")
    issue_wo(3)
    vm.wait("wo31"); pair_add(); pair_wait("Lps3")
    wo_tr(2); wo_tr(3)
OV = ""
def o_poll(preg=36):
    a(f"s_bitcmp1_b32 s{WL}, 0\ns_cbranch_scc1 Lpollo_done")
    if "odel" in opts: a(f"s_sleep {opts['odel']}")
    if "od" in opts:
        pspin("Lpollo", 9, int(opts["od"]), int(opts.get("og", 4)), T3, preg)
    else:
        sspin("Lpollo", f"s_load_dword s{T4}, s[22:23], s9 glc\ns_waitcnt lgkmcnt(0)\ns_cmp_eq_u32 s{T4}, 16", T3, sleep=int(opts.get("osleep", 2)))
a("s_waitcnt lgkmcnt(0)")
if "yp" in opts: o_poll()
sty()
a("s_barrier")
if "nosm" not in opts and not M5:
    if "nw" in opts:
        vm.wait("wo31"); pair_add(); pair_wait("Lps2")
    wo_tr(2); wo_tr(3)
a(f"buffer_load_dword v2, v28, s[{WS}:{WS+3}], s8 offen sc1")
if "nosm" not in opts:
    a("v_add_u32 v10, 0x10000, v24\nv_add_u32 v11, 0x10000, v25\ns_waitcnt lgkmcnt(0)")
ACC = [32, 48]
OB = 64; NBUF = 16
lg = LG()
items = [(st_, k, c) for st_ in range(4) for k in range(8) for c in range(2)]
def rdO(n):
    st_, k, c = items[n]
    r = OB + 4 * (n % NBUF)
    if "nosm" not in opts:
        a(f"ds_read_b128 v[{r}:{r+3}], v{(24 if st_ < 2 else 10)+c} offset:{(st_&1)*32768 + k*1024}")
    else:
        a(f"ds_read_b128 v[{r}:{r+3}], v{24+c} offset:{st_*8192 + k*1024}")
    lg.issue(f"O{n}")
def mfO(n):
    st_, k, c = items[n]
    if n % 2 == 0: lg.wait(f"O{n+1}")
    mfma(ACC[1 if st_ < 2 else 0], wreg(2 * (st_ & 1) + (k >> 2), k & 3, c), OB + 4 * (n % NBUF), "0" if n in (0, 32) else None)
LAG = 4
done = 0
wq = list(range(4))
fin = ["s_waitcnt vmcnt(0)", "v_sub_f32 v4, 1.0, v2" + ("" if "nogr" in opts else "\nv_cvt_pk_bf16_f32 v4, v4, v4\nv_and_b32 v4, 0xffff0000, v4"), f"s_cmp_ge_u32 s{WL}, 2\ns_cselect_b64 vcc, -1, 0",
       "v_cndmask_b32 v6, v2, v4, vcc", "v_cndmask_b32 v4, v4, v2, vcc"]
for n in range(64):
    if n == 56 and "sl" in opts:
        a("s_barrier")
        rdO(n); rdO(n + 1)
    if n % 16 == 0:
        if n == 48: lg.wait("W")
        if n == 0 and OV == "4": a("s_waitcnt vmcnt(1)")
        a("s_barrier")
        if n == 0: sty()
        rdO(n); rdO(n + 1)
    if n % 16 < 14 and not ("sl" in opts and n in (54, 55)): rdO(n + 2)
    if n >= LAG:
        mfO(done); done += 1
        if "nox64" not in opts:
            wq = []
            if 36 <= done < 44:
                k = done - 36
                if k == 0: a("s_nop 1")
                a(f"ds_write_b64 v29, v[{48+2*k}:{49+2*k}] offset:{k*512}"); lg.issue("W")
            if 46 <= done < 54:
                k = done - 46
                a(f"ds_read_b64 v[{48+2*k}:{49+2*k}], v17 offset:{k*512}"); lg.issue("P")
        else:
            if done in (37, 38, 40, 42):
                k = wq.pop(0)
                a(f"ds_write_b128 v29, v[{48+4*k}:{51+4*k}] offset:{k*1024}"); lg.issue("W")
            if done >= 50 and done < 54:
                k = done - 50
                a(f"ds_read_b128 v[{48+4*k}:{51+4*k}], v17 offset:{k*1024}"); lg.issue("P")
        if done >= 54 and fin: a(fin.pop(0))
assert not wq and not fin
vq = [f"v_mul_f32 v{48+r}, v{48+r}, v4" for r in range(16)]
while done < 64:
    mfO(done); done += 1
    for _ in range(4):
        a(vq.pop(0))
sty()
a("s_nop 7")
if "nof64" not in opts:
    for p in range(4):
        for r in (4 * p, 4 * p + 2):
            a(f"v_pk_fma_f32 v[{32+r}:{33+r}], v[{32+r}:{33+r}], v[6:7], v[{48+r}:{49+r}] op_sel_hi:[1,0,1]")
        a(f"v_cvt_pk_bf16_f32 v{32+4*p}, v{32+4*p}, v{33+4*p}")
        a(f"v_cvt_pk_bf16_f32 v{33+4*p}, v{34+4*p}, v{35+4*p}")
        a(f"ds_write_b64 v{[12, 16, 13, 18][p]}, v[{32+4*p}:{33+4*p}]")
else:
    for r in range(0, 16, 2):
        a(f"v_pk_fma_f32 v[{32+r}:{33+r}], v[{32+r}:{33+r}], v[6:7], v[{48+r}:{49+r}] op_sel_hi:[1,0,1]")
    for r in range(8):
        a(f"v_cvt_pk_bf16_f32 v{32+r}, v{32+2*r}, v{33+2*r}")
if "nof64" in opts:
    a("""v_permlane32_swap_b32 v32, v34
v_permlane32_swap_b32 v33, v35
v_permlane32_swap_b32 v36, v38
v_permlane32_swap_b32 v37, v39
ds_write_b128 v12, v[32:35]
ds_write_b128 v13, v[36:39]""")
if T128: a("s_waitcnt lgkmcnt(0)\ns_barrier")
a(f"""
ds_read_b128 v[64:67], v14
ds_read_b128 v[68:71], v14 offset:1024
s_waitcnt lgkmcnt(1)
buffer_store_dwordx4 v[64:67], v15, s[{OUT}:{OUT+3}], s10 offen sc1
s_waitcnt lgkmcnt(0)
buffer_store_dwordx4 v[68:71], v15, s[{OUT}:{OUT+3}], s11 offen sc1
""")
if STAMPS:
    sty()
    a("s_waitcnt vmcnt(0)")
    while sty.n < STAMPS: sty()
    a("s_branch Lstamps")
else:
    a("s_endpgm")

vm = VM()
stx = Stamper(1)
a("Lx:")
PBV5 = f"s_lshl_b32 s{T1}, s{WL}, 11\ns_add_u32 s{T1}, s{T1}, {KVP}\nv_lshl_add_u32 v5, v20, 5, s{T1}\nv_lshl_add_u32 v5, v25, 4, v5\nv_lshl_add_u32 v5, v24, 3, v5"
a(COMMON)
a(f"""
s_getpc_b64 s[66:67]
Lpc0:
s_sub_u32 s66, s66, Lpc0-{NAME}_kernel
s_subb_u32 s67, s67, 0
s_and_b32 s{T0}, s{CBK}, 3
s_lshl_b32 s{T0}, s{T0}, 2
s_add_u32 s{T0}, s{T0}, s{WL}
s_lshl_b32 s{T0}, s{T0}, 10
v_lshl_add_u32 v140, v1, 7, s{T0}
v_min_u32 v140, Lcode_end-{NAME}_kernel-4, v140
s_mov_b64 exec, 0xff
global_load_dword v252, v140, s[66:67]
s_mov_b64 exec, -1
v_lshlrev_b32 v14, 4, v1
v_mov_b32 v240, 0
v_mov_b32 v241, 0
v_mov_b32 v242, 0
v_mov_b32 v243, 0
v_mov_b32 v12, {MISC}
v_mov_b32 v13, 1
s_lshl_b32 s{T1}, s{WL}, 11
s_add_u32 s{T1}, s{T1}, {KVP}
v_add_u32 v5, s{T1}, v14
v_lshl_add_u32 v15, v1, 2, s{T1}
ds_write_b128 v12, v[240:243]
ds_write_b32 v15, v240 offset:1024
ds_write_b128 v12, v[240:243] offset:16
ds_write_b128 v12, v[240:243] offset:32
v_and_b32 v23, 3, v1
s_mov_b32 s{WS+2}, {WS_BYTES}
s_mov_b32 s{WS+3}, 0x20000
s_cmp_eq_u32 s{RB}, s{CB}
s_waitcnt lgkmcnt(0)
s_mov_b32 s{WS}, s22
s_mov_b32 s{WS+1}, s23
s_cbranch_scc0 Lnozero
s_lshl_b32 s{T0}, s{CB}, 2
s_add_u32 s{T0}, s{T0}, s{WL}
s_mul_i32 s{T1}, s{T0}, {KVSTR}
s_add_u32 s{T1}, s{T1}, {KVACC}
""")
for r in range(1, KA):
    a(f"""s_add_u32 s{T2}, s{T1}, {r*KAS}
buffer_store_dwordx4 v[240:243], v14, s[{WS}:{WS+3}], s{T2} offen sc1
s_mov_b64 exec, 0xf
buffer_store_dwordx4 v[240:243], v14, s[{WS}:{WS+3}], s{T2} offen offset:1024 sc1
s_mov_b64 exec, -1""")
a(f"""
buffer_store_dwordx4 v[240:243], v14, s[{WS}:{WS+3}], s{T1} offen sc1
{f"buffer_store_dwordx4 v[240:243], v14, s[{WS}:{WS+3}], s{T1} offen offset:1024 sc1" if (RSH == 7 or PB == 4) else ""}
s_add_u32 s{T1}, s{T1}, {ZO}
s_lshl_b32 s{T2}, s{T0}, 10
s_add_u32 s{T3}, s{T2}, {OCNT}
s_add_u32 s{T2}, s{T2}, {KVCNT}
buffer_store_dwordx4 v[240:243], v14, s[{WS}:{WS+3}], s{T2} offen sc1
buffer_store_dwordx4 v[240:243], v14, s[{WS}:{WS+3}], s{T3} offen sc1
s_mov_b64 exec, {"0xf" if "z64" in opts else "0xff"}
buffer_store_dwordx4 v[240:243], v14, s[{WS}:{WS+3}], s{T1} offen sc1
""")
if "nogz" not in opts:
    a(f"""s_lshl_b32 s{T2}, s{T0}, 7
s_add_u32 s{T2}, s{T2}, {GBUF}
buffer_store_dwordx4 v[240:243], v14, s[{WS}:{WS+3}], s{T2} offen sc1""")
a(f"""s_mov_b64 exec, -1
Lnozero:
s_mov_b32 s{SLG}, 0x{LOG2E:x}
s_mov_b32 s{SLG+1}, 0x{LOG2E:x}
s_mov_b32 s{SEP}, 0x{EPS:x}
s_mov_b32 s{SEP+1}, 0x{EPS:x}
v_and_b32 v20, 15, v1
v_lshrrev_b32 v21, 4, v1
v_lshrrev_b32 v22, 1, v20
v_xor_b32 v22, v21, v22
v_lshlrev_b32 v2, 7, v20
v_lshl_add_u32 v2, v22, 4, v2
v_xor_b32 v3, 64, v2
; W base v4
v_lshrrev_b32 v24, 5, v1
v_lshlrev_b32 v4, 12, v24
v_and_b32 v25, 1, v21
v_lshl_add_u32 v4, v25, 10, v4
v_lshrrev_b32 v26, 2, v20
v_lshl_add_u32 v4, v26, 7, v4
v_bfe_u32 v22, v1, 3, 2
v_xor_b32 v22, s{WL}, v22
v_lshl_add_u32 v4, v22, 5, v4
v_lshl_add_u32 v4, v23, 3, v4
v_add_u32 v4, 16384, v4
{PBV5 if PB else ""}
v_bfe_u32 v22, v1, 3, 1
v_lshl_add_u32 v10, v24, 3, v26
v_lshlrev_b32 v10, 7, v10
v_lshl_add_u32 v10, v25, 5, v10
v_lshl_add_u32 v10, v23, 3, v10
v_lshl_add_u32 v10, v22, 6, v10
v_xor_b32 v11, 64, v10
v_and_b32 v20, 31, v1
s_lshl_b32 s{T0}, s{WL}, 12
v_lshl_add_u32 v6, v20, 7, s{T0}
v_bfe_u32 v25, v1, 1, 3
v_xor_b32 v25, v24, v25
v_lshl_add_u32 v6, v25, 4, v6
v_xor_b32 v7, 32, v6
v_xor_b32 v8, 64, v6
v_xor_b32 v9, 96, v6
; o store s68 / counter s69 / o-load s66,s67 ; wo^T store T0 ; flag offset s24
s_lshl_b32 s{T1}, s{RB}, 2
s_add_u32 s{T1}, s{T1}, s{WL}
s_lshl_b32 s68, s{T1}, 16
s_lshl_b32 s{T3}, s{CB}, 12
s_add_u32 s68, s68, s{T3}
s_add_u32 s68, s68, {OBUF}
s_lshl_b32 s69, s{T1}, 10
s_add_u32 s69, s69, {OCNT}
s_lshr_b32 s{T2}, s{WL}, 1
s_lshl_b32 s66, s{RT}, 1
s_add_u32 s66, s66, s{T2}
s_lshl_b32 s66, s66, 16
s_lshl_b32 s{T2}, s{T2}, 15
s_add_u32 s66, s66, s{T2}
s_add_u32 s66, s66, {OBUF}
s_lshl_b32 s67, s{WL}, {13 if "nosm" not in opts else 15}
s_lshl_b32 s9, s{RT}, 1
s_lshr_b32 s{T0}, s{WL}, 1
s_add_u32 s9, s9, s{T0}
s_lshl_b32 s9, s9, 10
s_add_u32 s9, s9, {OCNT}
s_and_b32 s{T0}, s{CBK}, {OR-1}
s_mul_i32 s{T0}, s{T0}, {RST}
s_add_u32 s9, s9, s{T0}
""")
RG, BF, AK, AV, XR = 16, 48, 64, 96, 128
FLI = int(opts.get("fli", 2))
stx()
lg = LG()
for i in range(8):
    so = (i & 1) * 32768
    a("s_barrier")
    if i in (0, 7): stx()
    for sidx in range(16):
        n = (sidx - LAGA) % 16
        ci = i if sidx >= LAGA else i - 1
        ks = n >> 3; rt = n & 7
        em = ci >= 0
        first = (ci == 0 and ks == 0)
        if em:
            tags = [f"X{ci}_{n}"] + ([f"B{ci}_{ks}0", f"B{ci}_{ks}1"] if rt == 0 else [])
            if sidx % 2 == 0 and rt != 7:
                tags.append(f"X{ci}_{n+1}")
            if sidx % 2 == 0 or rt == 0:
                lg.wait(*tags)
            mfma16(AK + 4 * rt, RG + 4 * (n % 8), BF + ks * 8, "1.0" if first else None)
        def rdB(k_, sec, u):
            tr(BF + k_ * 8 + sec * 4 + 2 * u, 4, so + k_ * 8192 + sec * 2048 + u * 512)
            lg.issue(f"B{i}_{k_}{sec}")
        if sidx < 2:
            rdB(0, sidx, 0); rdB(0, sidx, 1)
        elif 6 <= sidx < 10:
            rdB(1, (sidx - 6) >> 1, sidx & 1)
        elif sidx in (10, 11, 12, 13):
            t = sidx - 10
            xr = XR + (4 * i + t) * 4
            a(f"ds_read_b128 v[{xr}:{xr+3}], v{6+t} offset:{so}")
            lg.issue("XR")
        elif (i & 1) and i < 7 and sidx == 14:
            a("v_xor_b32 v2, 0x10000, v2\nv_xor_b32 v4, 0x10000, v4")
        elif i > 0 and (i & 1) == 0 and sidx in (2, 3):
            k = 6 + 2 * (sidx - 2)
            a(f"v_xor_b32 v{k}, 0x10000, v{k}\nv_xor_b32 v{k+1}, 0x10000, v{k+1}")
        elif i > 0 and (i & 1) == 0 and sidx == 4:
            a("v_xor_b32 v3, 0x10000, v3")
        elif i == 1 and sidx == 2:
            a(f"s_cmp_eq_u32 s{RB}, s{CB}\ns_cbranch_scc1 Lflag\nLflag_done:")
            rare.append(f"Lflag:\ns_waitcnt vmcnt(0)\ns_atomic_add s{ONE}, s[20:21], 0\ns_branch Lflag_done")
        elif i == 5 and sidx == 2:
            a("s_waitcnt vmcnt(0)")
        if em:
            mfma16(AV + 4 * rt, RG + 4 * (n % 8), BF + ks * 8 + 4, "0" if first else None)
        r = RG + 4 * (sidx % 8)
        a(f"ds_read_b128 v[{r}:{r+3}], v{2 + (sidx >> 3)} offset:{so + (sidx & 7) * 2048}")
        lg.issue(f"X{i}_{sidx}")
for n in range(16 - LAGA, 16):
    lg.wait(f"X7_{n}")
    mfma16(AK + 4 * (n & 7), RG + 4 * (n % 8), BF + 8)
lds_add(12, 13, 12)
for n in range(16 - LAGA, 16):
    mfma16(AV + 4 * (n & 7), RG + 4 * (n % 8), BF + 12)
stx()
for op in phi_ops(AK, 32, RG, pk=True):
    a(op)
a("ds_read_b32 v2, v12")
for r in range(60, 64):
    a(f"v_mov_b32 v{r}, 0x3f803f80")
for r in range(16):
    a(f"v_cvt_pk_bf16_f32 v{AV+r}, v{AV+2*r}, v{AV+2*r+1}")
    if r % 4 == 1:
        mfma16(56, 60, AK + (r // 4) * 4, "0" if r < 4 else None)
a("s_waitcnt lgkmcnt(0)")
for p in range(4):
    if PB: mfma16(52, AK + 4 * p, AV + 4 * p, "0" if p == 0 else None)
    else: mfma16(52, AV + 4 * p, AK + 4 * p, "0" if p == 0 else None)
a(f"v_and_b32 v3, 31, v1\nv_min_u32 v3, 16, v3\nv_lshlrev_b32 v3, 5, v3\nv_lshrrev_b32 v4, 5, v1\nv_lshl_add_u32 v3, v4, 4, v3\nv_add_u32 v3, {KVF}, v3\nv_cmp_ne_u32 vcc, 4, v2\ns_nop 0")
if PB: a("v_cvt_pk_bf16_f32 v52, v52, v53\nv_cvt_pk_bf16_f32 v53, v54, v55\nds_write_b64 v5, v[52:53]")
else: a("ds_write_b128 v5, v[52:55]")
a("ds_write_b32 v15, v56 offset:1024\ns_cbranch_vccz Lq0_done")
spin("Lq0", "ds_read_b32 v2, v12\ns_waitcnt lgkmcnt(0)\nv_cmp_ne_u32 vcc, 4, v2", T3, mult=8)
NB = 8
if QS:
    BM = opts.get("bm", "0")
    if BM == "0":
        seq = [(ct, s) for s in range(32) for ct in range(2)]
    else:
        seq = [(ct, s) for s in range(16) for ct in range(2)] + [(0, s) for s in range(16, 32)] + [(1, s) for s in range(16, 32)]
    lgq = LG()
    def qread(n):
        ct, s = seq[n]
        r = RG + (n % NB) * 4
        off = WQ + (s // 4) * 8192 + (s % 4) * 2048
        tr(r, 10 + ct, off); tr(r + 2, 10 + ct, off + 512)
        lgq.issue(f"q{n}"); lgq.issue(f"q{n}")
    PF = 6
    for n in range(PF):
        qread(n)
    stx()
    ph0 = phi_ops(64, 16, 96)[:16 + 10] if BM == "1" else []
    for n, (ct, s) in enumerate(seq):
        if n + PF == 28:
            a("ds_read_b32 v2, v12 offset:24"); lgq.issue("c")
        if n + PF == 32:
            lgq.wait("c")
            a("v_cmp_ne_u32 vcc, 4, v2\ns_cbranch_vccnz Lq1\nLq1_done:")
            rare.append(f"""Lq1:
    s_mov_b32 s{T3}, 0
    Lq1_top:
    ds_read_b32 v2, v12 offset:24
    s_waitcnt lgkmcnt(0)
    v_cmp_ne_u32 vcc, 4, v2
    s_cbranch_vccz Lq1_done
    s_add_u32 s{T3}, s{T3}, 1
    s_cmp_lt_u32 s{T3}, {SPIN*8}
    s_cbranch_scc1 Lq1_top
    s_branch Lq1_done""")
        if n + PF < 64:
            qread(n + PF)
        if n % 2 == 0: lgq.wait(f"q{n+1}")
        mfma(64 + 16 * ct, RG + (n % NB) * 4, XR + s * 4, "1.0" if s == 0 else None)
        if M5 and n == 30:
            lds_add(12, 13, 28); lgq.issue("sig")
        if M5 and n == 62:
            lds_add(12, 13, 32); lgq.issue("sig")
        if n >= 51:
            for op in ph0[:2]: a(op)
            ph0 = ph0[2:]
    assert not ph0
    stx()
    if BM == "0":
        a("s_nop 7\ns_nop 2")
        ph1 = phi_ops(64, 32, 96, pk=True)
        PQ = [64, 68, 72, 76]
    else:
        rest = phi_ops(64, 16, 96, pk=True)[8 + 10:]
        ph1 = rest + phi_ops(80, 16, 112, pk=True)
        PQ = [64, 68, 80, 84]
    for op in ph1[:-10]:
        a(op)
    a("ds_read_b32 v2, v12 offset:4")
    for op in ph1[-10:]:
        a(op)
    stx()
else:
    seq = [(ct, s) for ct in range(2) for s in range(32)]
    lgq = LG()
    def qread(n):
        ct, s = seq[n]
        r = RG + (n % NB) * 4
        off = WQ + (s // 4) * 8192 + (s % 4) * 2048
        tr(r, 10 + ct, off); tr(r + 2, 10 + ct, off + 512)
        lgq.issue(f"q{n}"); lgq.issue(f"q{n}")
    PF = 6
    for n in range(PF):
        qread(n)
    stx()
    ph0 = phi_ops(64, 16, 96)
    for n, (ct, s) in enumerate(seq):
        if n + PF < 64:
            qread(n + PF)
        if n % 2 == 0: lgq.wait(f"q{n+1}")
        mfma(64 + 16 * ct, RG + (n % NB) * 4, XR + s * 4, "1.0" if s == 0 else None)
        if n >= 35:
            k = (2 if n < 58 else 2) if n < 63 else len(ph0)
            for op in ph0[:k]:
                a(op)
            ph0 = ph0[k:]
    assert not ph0
    stx()
    ph1 = phi_ops(80, 16, 96, pk=True)
    for op in ph1[:-10]:
        a(op)
    a("ds_read_b32 v2, v12 offset:4")
    for op in ph1[-10:]:
        a(op)
    stx()
    PQ = [64, 68, 80, 84]
a("s_waitcnt lgkmcnt(0)\nv_cmp_ne_u32 vcc, 4, v2\ns_cbranch_vccz Lkvw_done")
spin("Lkvw", "ds_read_b32 v2, v12 offset:4\ns_waitcnt lgkmcnt(0)\nv_cmp_ne_u32 vcc, 4, v2", T3, mult=8)
stx()
for h in range(4):
    a(f"ds_read_b128 v[{16+4*h}:{19+4*h}], v3 offset:{h*1024}")
DN = [192, 208, 224, 240]
for h in range(4):
    a(f"s_waitcnt lgkmcnt({3-h})")
    mfma(DN[h], 16 + 4 * h, PQ[h], "0")
vm = VM()
def o_half(st_, hf, setup_only=False, do_setup=True):
    g = 2 * (st_ & 1) + hf
    if do_setup:
        a(f"s_add_u32 s{T2}, s{RW}, {2*g}")
        a(f"s_and_b32 s{T2}, s{T2}, 7")
        a(f"s_lshl_b32 s{T2}, s{T2}, 12")
        a(f"s_add_u32 s{T2}, s{T2}, s66")
        a(f"s_add_u32 m0, s67, {st_*(32768 if 'nosm' not in opts else 8192)+hf*4096}")
        if st_ < 2: a(f"s_xor_b32 s{T2}, s{T2}, 0x10000")
        else: a("s_nop 0")
    if setup_only: return
    for q in range(4):
        dma(14, WS, T2, q * 1024, f"o{st_}{hf}", vm, "sc1 ")
o_half(0, 0, setup_only=True)
for h in range(4):
    d = DN[h]
    a(f"v_add_f32 v{d+8}, s{SEP}, v{d+8}")
    a(f"v_rcp_f32 v{d+8}, v{d+8}")
    a("s_nop 0")
    for r in range(0, 8, 2):
        a(f"v_pk_mul_f32 v[{d+r}:{d+r+1}], v[{d+r}:{d+r+1}], v[{d+8}:{d+9}] op_sel_hi:[1,0]")
    for r in range(4):
        a(f"v_cvt_pk_bf16_f32 v{d+r}, v{d+2*r}, v{d+2*r+1}")
    a(f"buffer_store_dwordx4 v[{d}:{d+3}], v14, s[{WS}:{WS+3}], s68 offen offset:{h*1024} sc1")
lds_add(12, 13, 8)
stx()
if "noack" not in opts: a("s_waitcnt vmcnt(0)")
a(f"s_atomic_add s{ONE}, s[22:23], s69")
for r in range(1, OR):
    a(f"s_atomic_add s{ONE}, s[22:23], s69 offset:{r*RST}")
stx()
if "yp" not in opts:
    a("s_waitcnt lgkmcnt(0)" if "od" in opts else "")
    o_poll(24)
a("s_barrier")
stx()
o_half(0, 0, do_setup=False); o_half(0, 1)
if "xl" in opts:
    o_half(1, 0)
    vm.wait("o01"); a("s_barrier")
    o_half(1, 1); o_half(2, 0); o_half(2, 1)
    vm.wait("o11"); a("s_barrier")
    o_half(3, 0); o_half(3, 1)
    vm.wait("o21"); a("s_barrier")
else:
    for st_ in range(3):
        o_half(st_ + 1, 0); o_half(st_ + 1, 1)
        vm.wait(f"o{st_}1"); a("s_barrier")
if "sl" in opts: vm.wait("o30"); a("s_barrier")
vm.wait("o31"); a("s_barrier")
if STAMPS:
    if T128: a("s_barrier")
    while stx.n < STAMPS: stx()
    a("Lstamps:")
    a(f"v_subrev_u32 v40, {SWAVE*64}, v0")
    emit_stamp_store(a, 0, STAMPS, 70, 22, 2, 20, stmp=60, tid="v40")
a("Lend:")
a("s_endpgm")
for r in rare:
    a(r)
a("Lcode_end:")
open(sys.argv[1], "w").write(file_text([(NAME + "_kernel", 256, 512, 163840)], [(NAME + "_kernel", a.text(), 256, None)]))
```

```python
import sys, struct
from asmlib import *

opts = dict(o.split("=") if "=" in o else (o, "1") for o in sys.argv[2:])
STAMPS = int(opts.get("stamps", 0))
SWAVE = int(opts.get("swave", 0))
LAGA = 6
a = Asm()
KA = int(opts.get("ka", 1)); KAS = 0x14000
KR = int(opts.get("kr", 4)); OR = int(opts.get("or", 4)); RST = int(opts.get("rst", 256))

RSH = int(opts.get('rsh', 6)); RS = 1 << RSH
KVSTR = 1152 if RSH == 6 else 17 * RS
KVCNT = 0x20000
OCNT = 0x30000
GBUF = 0x40000
OBUF = 0x100000
KVACC = 0x500000
WS_BYTES = 0x600000
EPS = 0x358637bd
LOG2E = 0x3fb8aa3b
SPIN = int(opts.get("spin", 20000))
SL = [0, 32768, 65536, 98304, 131072]
WQ = SL[0]
STG = SL[2]
MISC = SL[4]
KVF = SL[4] + 4096
KVP = SL[4] + 8192
XCH = SL[4] + 16384

class Cnt:
    def __init__(self, name, mx): self.q = []; self.name = name; self.mx = mx
    def issue(self, tag): self.q.append(tag)
    def n_after(self, tag):
        idx = max(i for i, t in enumerate(self.q) if t == tag)
        return len(self.q) - 1 - idx
    def wait(self, *tags):
        n = min(self.mx, min(self.n_after(t) for t in tags))
        a(f"s_waitcnt {self.name}({n})")
def VM(): return Cnt("vmcnt", 63)
def LG(): return Cnt("lgkmcnt", 15)
TS = 's_memtime' if 'cyc' in opts else 's_memrealtime'
class Stamper:
    def __init__(self, start=0): self.n = start
    def __call__(self):
        if STAMPS:
            assert self.n < STAMPS, self.n
            a(f"{TS} s[{70+2*self.n}:{71+2*self.n}]")
            self.n += 1

X, W, WO, WS, OUT = 24, 28, 32, 40, 44
SLG, SEP = 36, 38
RT, CBK, RW, ONE = 48, 49, 50, 51
RB, CB, WV, ROT, XS, WSB, WL, T0, T1, T2, T3, WOS, T5, T4 = 52, 53, 54, 55, 56, 57, 58, 59, 60, 61, 62, 63, 64, 65

def mfma(d, sa, sb, c=None):
    cc = f"v[{d}:{d+15}]" if c is None else c
    a(f"v_mfma_f32_32x32x16_bf16 v[{d}:{d+15}], v[{sa}:{sa+3}], v[{sb}:{sb+3}], {cc}")
def mfma16(d, sa, sb, c=None):
    cc = f"v[{d}:{d+3}]" if c is None else c
    a(f"v_mfma_f32_16x16x32_bf16 v[{d}:{d+3}], v[{sa}:{sa+3}], v[{sb}:{sb+3}], {cc}")
def tr(r, addr, off):
    a(f"ds_read_b64_tr_b16 v[{r}:{r+1}], v{addr} offset:{off}")
def phi_ops(acc, n, tmp, pk=False):
    ops = []
    if pk:
        for r in range(0, n, 2):
            ops.append(f"v_pk_fma_f32 v[{tmp+r}:{tmp+r+1}], v[{acc+r}:{acc+r+1}], s[{SLG}:{SLG+1}], s[{SLG}:{SLG+1}] neg_lo:[0,0,1] neg_hi:[0,0,1]")
    else:
        for r in range(n):
            ops.append(f"v_fma_f32 v{tmp+r}, v{acc+r}, s{SLG}, -s{SLG}")
    for r in range(n):
        ops.append(f"v_exp_f32 v{tmp+r}, v{tmp+r} clamp")
        if r >= 2:
            ops.append(f"v_max_f32 v{acc+r-2}, v{acc+r-2}, v{tmp+r-2}")
    ops.append(f"v_max_f32 v{acc+n-2}, v{acc+n-2}, v{tmp+n-2}")
    ops.append(f"v_max_f32 v{acc+n-1}, v{acc+n-1}, v{tmp+n-1}")
    if pk:
        for r in range(0, n, 2):
            ops.append(f"v_pk_add_f32 v[{acc+r}:{acc+r+1}], v[{acc+r}:{acc+r+1}], s[{SEP}:{SEP+1}]")
    else:
        for r in range(n):
            ops.append(f"v_add_f32 v{acc+r}, s{SEP}, v{acc+r}")
    for r in range(n // 2):
        ops.append(f"v_cvt_pk_bf16_f32 v{acc+r}, v{acc+2*r}, v{acc+2*r+1}")
    return ops
def spin(label, body, cnt, sleep=None, mult=1):
    a(f"s_mov_b32 s{cnt}, 0\n{label}_top:")
    a(body)
    a(f"s_cbranch_vccz {label}_done")
    if sleep: a(f"s_sleep {sleep}")
    a(f"s_add_u32 s{cnt}, s{cnt}, 1\ns_cmp_lt_u32 s{cnt}, {SPIN*mult}\ns_cbranch_scc1 {label}_top")
    a(f"{label}_done:")
def sspin(label, body, cnt, sleep=None):
    a(f"s_mov_b32 s{cnt}, 0\n{label}_top:")
    a(body)
    a(f"s_cbranch_scc1 {label}_done")
    if sleep: a(f"s_sleep {sleep}")
    a(f"s_add_u32 s{cnt}, s{cnt}, 1\ns_cmp_lt_u32 s{cnt}, {SPIN}\ns_cbranch_scc1 {label}_top")
    a(f"{label}_done:")
def pspin(label, off, depth, gap, cnt, base=36):
    regs = [base + i for i in range(depth)]
    for r in regs: a(f"s_mov_b32 s{r}, 0")
    for r in regs[:-1]:
        a(f"s_load_dword s{r}, s[22:23], s{off} glc\ns_sleep {gap}")
    a(f"s_mov_b32 s{cnt}, 0\n{label}_top:")
    for i in range(depth):
        r = regs[(i - 1) % depth]
        a(f"s_load_dword s{r}, s[22:23], s{off} glc\ns_waitcnt lgkmcnt({depth-1})")
        a(f"s_max_u32 s{T4}, s{regs[0]}, s{regs[1]}")
        for q in regs[2:]: a(f"s_max_u32 s{T4}, s{T4}, s{q}")
        a(f"s_cmp_eq_u32 s{T4}, 16\ns_cbranch_scc1 {label}_done")
    a(f"s_add_u32 s{cnt}, s{cnt}, 1\ns_cmp_lt_u32 s{cnt}, {SPIN}\ns_cbranch_scc1 {label}_top\n{label}_done:")
rare = []
def lds_add(vaddr, vone, off):
    a(f"s_mov_b64 exec, 1\nds_add_u32 v{vaddr}, v{vone} offset:{off}\ns_mov_b64 exec, -1")
def dma(voff, sr, soff, off, tag, vmq, extra=""):
    o = f"offset:{off} " if off else ""
    a(f"buffer_load_dwordx4 v{voff}, s[{sr}:{sr+3}], s{soff} offen {o}{extra}lds")
    vmq.issue(tag)

st = Stamper()
st()
COMMON = f"""
s_load_dwordx16 s[4:19], s[0:1], 0
s_load_dwordx4 s[20:23], s[0:1], 64
s_and_b32 s{T3}, s2, 7
s_lshl2_add_u32 s{RT}, s{T3}, s3
s_lshr_b32 s{CB}, s{T3}, 1
s_lshl2_add_u32 s{CB}, s{CB}, s3
s_and_b32 s{RW}, s{WL}, 1
s_lshl1_add_u32 s{RW}, s3, s{RW}
s_mov_b32 s{ONE}, 1
"""
a(f"""
s_load_dwordx2 s[{X}:{X+1}], s[0:1], 0
s_and_b32 s{T0}, s2, 4
s_mul_i32 s{T0}, s{T0}, 6
s_load_dwordx2 s[{W}:{W+1}], s[0:1], s{T0} offset:8
v_readfirstlane_b32 s{WV}, v0
s_cmpk_ge_u32 s2, 256
s_cbranch_scc1 Lend
v_and_b32 v1, 63, v0
s_lshr_b32 s{T1}, s2, 3
s_and_b32 s{CBK}, s{T1}, 7
s_lshr_b32 s3, s{T1}, 3
s_and_b32 s{RB}, s2, 1
s_lshl3_add_u32 s{RB}, s{RB}, s{CBK}
s_lshr_b32 s{WL}, s{WV}, 6
s_and_b32 s{WL}, s{WL}, 3
s_cmpk_lt_u32 s{WV}, 256
s_cbranch_scc1 Lx
""")

vm = VM()
sty = Stamper(1)
a(f"""
v_lshrrev_b32 v20, 3, v1
v_and_b32 v21, 7, v1
v_lshrrev_b32 v22, 4, v1
v_xor_b32 v23, v21, v22
v_lshlrev_b32 v2, 10, v20
v_lshl_add_u32 v2, v23, 4, v2
s_add_u32 s{ROT}, s{CBK}, s3
s_lshl_b32 s{ROT}, s{ROT}, 2
s_and_b32 s{T0}, s{ROT}, 7
s_lshl2_add_u32 s{XS}, s{RB}, s{WL}
s_lshl_b32 s{XS}, s{XS}, 15
s_lshl_b32 s{T1}, s{T0}, 7
s_add_u32 s{T1}, s{T1}, s{XS}
s_lshl_b32 s67, s{WL}, 12
s_mov_b32 m0, s67
s_mov_b32 s{X+2}, {2048*1024}
s_mov_b32 s{X+3}, 0x20000
v_xor_b32 v3, 64, v2
v_add_u32 v3, {8192-1024}, v3
s_waitcnt lgkmcnt(0)
buffer_load_dwordx4 v2, s[{X}:{X+3}], s{T1} offen lds
v_add_u32 v4, {2*(8192-1024)}, v2
v_add_u32 v5, {2*(8192-1024)}, v3
buffer_load_dwordx4 v3, s[{X}:{X+3}], s{T1} offen offset:1024 lds
v_and_b32 v23, 1, v22
v_lshlrev_b32 v24, 1, v23
v_xor_b32 v24, v21, v24
v_mul_u32_u24 v25, 3072, v20
buffer_load_dwordx4 v4, s[{X}:{X+3}], s{T1} offen offset:2048 lds
v_lshl_add_u32 v6, v24, 4, v25
s_and_b32 s{WSB}, s2, 2
s_lshl1_add_u32 s{WSB}, s{WSB}, s3
s_lshl_b32 s{WSB}, s{WSB}, 7
s_mul_i32 s66, s{WL}, {16*3072}
buffer_load_dwordx4 v5, s[{X}:{X+3}], s{T1} offen offset:3072 lds
s_add_u32 s66, s66, s{WSB}
s_mul_i32 s{T2}, s{T0}, {64*3072}
s_add_u32 s{T2}, s{T2}, s66
s_mov_b32 s{W+2}, {512*3072}
s_mov_b32 s{W+3}, s{X+3}
s_add_u32 m0, s67, 16384
v_xor_b32 v7, 64, v6
buffer_load_dwordx4 v6, s[{W}:{W+3}], s{T2} offen offset:2048 lds
v_add_u32 v7, {8*3072-1024}, v7
v_add_u32 v10, 1024, v6
buffer_load_dwordx4 v7, s[{W}:{W+3}], s{T2} offen offset:3072 lds
v_add_u32 v11, 1024, v7
buffer_load_dwordx4 v10, s[{W}:{W+3}], s{T2} offen lds
buffer_load_dwordx4 v11, s[{W}:{W+3}], s{T2} offen offset:1024 lds
""")
for _ in range(8): vm.issue("c0")
def chunk_setup(c):
    slot = SL[c % 4]
    a(f"s_add_u32 s{T0}, s{ROT}, {c}")
    a(f"s_and_b32 s{T0}, s{T0}, 7")
    a(f"s_lshl_b32 s{T1}, s{T0}, 7")
    a(f"s_add_u32 m0, s67, {slot}")
    a(f"s_add_u32 s{T1}, s{T1}, s{XS}")
def issue_chunk(c, setup=True):
    slot = SL[c % 4]
    if setup: chunk_setup(c)
    for q in range(4):
        dma(2 + q, X, T1, q * 1024, f"c{c}", vm)
        if q == 0: a(f"s_mul_i32 s{T2}, s{T0}, {64*3072}")
        if q == 1: a(f"s_add_u32 s{T2}, s{T2}, s66")
    a(f"s_add_u32 m0, s67, {slot+16384}")
    a("s_nop 0")
    dma(10, W, T2, 0, f"c{c}", vm)
    dma(11, W, T2, 1024, f"c{c}", vm)
    dma(6, W, T2, 2048, f"c{c}", vm)
    dma(7, W, T2, 3072, f"c{c}", vm)
def issue_wq(h):
    for i in range(4):
        a(f"s_add_u32 s{T0}, s68, {i}")
        a(f"s_and_b32 s{T0}, s{T0}, 3")
        a(f"s_add_u32 s{T2}, s{T0}, s{ROT}")
        if h: a(f"s_add_u32 s{T2}, s{T2}, 4")
        a(f"s_and_b32 s{T2}, s{T2}, 7")
        a(f"s_mul_i32 s{T2}, s{T2}, {64*3072}")
        a(f"s_lshl_b32 s{T0}, s{T0}, 13")
        a(f"s_add_u32 s{T0}, s{T0}, s69")
        a(f"s_add_u32 m0, s{T0}, {WQ+h*32768}")
        a(f"s_add_u32 s{T2}, s{T2}, s66")
        for q in range(2):
            dma(26 + q, W, T2, q * 1024, f"q{h}", vm)
sty()
a(COMMON)
a(f"""
; Wq piece offsets v26,v27
v_lshlrev_b32 v24, 2, v23
v_xor_b32 v24, v21, v24
v_lshl_add_u32 v26, v24, 4, v25
v_add_u32 v27, {8*3072-1024}, v26
v_lshlrev_b32 v56, 10, v20
v_lshl_add_u32 v56, v24, 4, v56
v_add_u32 v57, {8192-1024}, v56
v_add_u32 v58, {2*(8192-1024)}, v56
v_add_u32 v59, {3*(8192-1024)}, v56
s_lshr_b32 s68, s{CBK}, 1
s_lshl_b32 s69, s{WL}, 11
v_lshrrev_b32 v8, 5, v1
v_and_b32 v24, 3, v1
v_bfe_u32 v25, v1, 2, 2
v_lshl_add_u32 v60, v8, 2, v25
v_lshlrev_b32 v60, 7, v60
v_lshl_add_u32 v60, v23, 5, v60
v_lshl_add_u32 v60, v24, 3, v60
v_bfe_u32 v25, v1, 3, 1
s_and_b32 s{T0}, s{WL}, 1
v_xor_b32 v25, s{T0}, v25
v_lshl_add_u32 v60, v25, 6, v60
v_lshlrev_b32 v19, 4, v1
v_mov_b32 v30, {MISC}
v_mov_b32 v31, 1
; atomic voffset v9 : g*256 + pos(d)*4
v_lshlrev_b32 v9, {RSH+2}, v22
v_lshl_add_u32 v9, v24, 2, v9
v_bfe_u32 v25, v1, 2, 1
v_lshl_add_u32 v9, v25, 5, v9
v_bfe_u32 v25, v1, 3, 1
v_lshl_add_u32 v9, v25, 4, v9
""")
T128 = opts.get("tm") == "128"
T128A = f"s_and_b32 s{T1}, s69, 0x1000\ns_add_u32 s{T1}, s{T1}, {KVP}\ns_and_b32 s{T0}, s{WL}, 1\ns_lshl_b32 s{T0}, s{T0}, 2"
T128B = f"v_and_b32 v25, 7, v1\nv_xor_b32 v25, s{T0}, v25"
T128C = f"""s_add_u32 s{T1}, s69, {KVP}
v_lshrrev_b32 v29, 3, v1
v_lshl_add_u32 v14, v29, 7, s{T1}
v_and_b32 v25, 7, v1
v_lshlrev_b32 v15, 10, v29
v_lshl_add_u32 v15, v25, 4, v15
v_xor_b32 v25, v25, v29
v_lshl_add_u32 v14, v25, 4, v14"""
T64C = f"""v_lshrrev_b32 v29, 2, v1
v_lshl_add_u32 v14, v29, 6, s{T1}
v_bfe_u32 v25, v1, 3, 2
v_xor_b32 v25, v25, v24
v_lshl_add_u32 v14, v25, 4, v14
v_lshlrev_b32 v15, 10, v29
v_lshl_add_u32 v15, v24, 4, v15"""
LATEV = f"""; partial read addresses v20,v21 ; out transposition v12 (write), v13 (write2), v14 (read), v15 (global)
s_add_u32 s{T1}, s69, {KVP}
v_add_u32 v20, s{T1}, v19
v_lshl_add_u32 v21, v1, 2, s{T1}
v_and_b32 v28, 31, v1
{T128A if T128 else ""}
v_lshl_add_u32 v12, v28, {7 if T128 else 6}, s{T1}
{T128B if T128 else "v_bfe_u32 v25, v1, 1, 2"}
{"v_lshl_add_u32 v12, v8, 3, v12" if "nof64" not in opts else "v_xor_b32 v25, v25, v8"}
v_lshl_add_u32 v12, v25, 4, v12
v_xor_b32 v13, 32, v12
v_xor_b32 v16, 16, v12
v_xor_b32 v18, 48, v12
{T128C if T128 else T64C}
v_lshrrev_b32 v29, 2, v1
; kv fetch voffset v22, frag write v23 ; g voffset v28
v_lshlrev_b32 v22, {RSH}, v29
v_lshl_add_u32 v22, v24, 4, v22
s_lshl_b32 s{T1}, s{WL}, 10
s_add_u32 s{T1}, s{T1}, {KVF}
v_lshl_add_u32 v23, v1, 3, s{T1}
v_lshlrev_b32 v28, 2, v28
; P3: o images v24 (own), v25 (partner) ; exchange v29 (write), v17 (read)
s_lshl_b32 s{T1}, s{WL}, {13 if "nosm" not in opts else 15}
v_add_u32 v24, s{T1}, v19
v_xor_b32 v25, {"0x2000" if "nosm" not in opts else "0x8000"}, v24
s_add_u32 s{T1}, s67, {XCH}
v_lshl_add_u32 v29, v1, {3 if "nox64" not in opts else 4}, s{T1}
v_xor_b32 v17, 0x2000, v29
"""
LATE = int(opts.get("late", 1))
if LATE < 0: a(LATEV)
a(f"""
s_cmp_ge_u32 s{WL}, 2
s_waitcnt lgkmcnt(0)
s_cselect_b32 s{WO}, s14, s8
s_cselect_b32 s{WO+1}, s15, s9
s_mov_b32 s{WO+2}, {512*1024}
s_mov_b32 s{WO+3}, 0x20000
; wo col offset s14 ; staging s15 ; kv acc s12 ; kv counter s13 ; gate row s6
s_lshl_b32 s14, s{CBK}, 7
s_lshl_b32 s15, s{WL}, 14
s_add_u32 s15, s15, {STG}
s_lshl_b32 s{WOS}, s{WL}, 13
v_add_u32 v46, s{WOS}, v60
v_xor_b32 v47, 0x2000, v46
v_add_u32 v60, s15, v60
v_xor_b32 v61, 0x4000, v60
s_lshr_b32 s{T1}, s{WL}, 1
s_lshl_b32 s{T1}, s{T1}, 2
s_add_u32 s{T1}, s{T1}, {MISC+16}
v_mov_b32 v62, s{T1}
s_lshl_b32 s{T0}, s{CB}, 2
s_add_u32 s{T0}, s{T0}, s{WL}
s_mul_i32 s12, s{T0}, {KVSTR}
s_add_u32 s12, s12, {KVACC}
s_and_b32 s3, s{RB}, {KA-1}
s_mul_i32 s3, s3, {KAS}
s_add_u32 s3, s3, s12
s_lshl_b32 s13, s{T0}, 10
s_add_u32 s13, s13, {KVCNT}
s_and_b32 s{T1}, s{RB}, {KR-1}
s_mul_i32 s{T1}, s{T1}, {RST}
s_add_u32 s13, s13, s{T1}
s_lshl_b32 s6, s{CB}, 11
s_add_u32 s6, s6, s{XS}
s_lshr_b32 s7, s6, 8
s_add_u32 s7, s7, {GBUF}
""")
LATES = f"""; P3: g s8 ; o counter s9 ; out s10,s11
s_lshl_b32 s{T1}, s{RT}, 1
s_lshr_b32 s{T0}, s{WL}, 1
s_add_u32 s{T1}, s{T1}, s{T0}
s_lshl_b32 s8, s{T1}, 7
s_add_u32 s8, s8, {GBUF}
s_lshl_b32 s9, s{T1}, 10
s_add_u32 s9, s9, {OCNT}
s_and_b32 s{T0}, s{CBK}, {OR-1}
s_mul_i32 s{T0}, s{T0}, {RST}
s_add_u32 s9, s9, s{T0}
s_lshl_b32 s10, s{T1}, 15
s_lshl_b32 s{T0}, s{CBK}, 7
s_add_u32 s10, s10, s{T0}
s_and_b32 s{T0}, s{WL}, 1
s_lshl_b32 s{T0}, s{T0}, {14 if T128 else 6}
s_add_u32 s10, s10, s{T0}
s_add_u32 s11, s10, {8192 if T128 else 16384}
"""
if LATE < 0: a(LATES)
a(f"""
v_mov_b32 v44, 0
v_mov_b32 v45, 0
""")
srd(a, WS, 22, WS_BYTES)
srd(a, OUT, 18, 2048 * 1024)
issue_chunk(1)
a("global_load_dwordx4 v[40:43], v19, s[16:17]")
vm.issue("gw")
for i in range(8):
    vm.wait(f"c{i}")
    a("s_barrier")
    if i in (0, 3, 7): sty()
    if i == 6: a(f"s_load_dword s{T4}, s[20:21], 0")
    if i == 7:
        a(f"""buffer_load_dwordx4 v[48:51], v19, s[{X}:{X+3}], s6 offen
buffer_load_dwordx4 v[52:55], v19, s[{X}:{X+3}], s6 offen offset:1024""")
        vm.issue("gate"); vm.issue("gate")
    if i + 2 < 8:
        issue_chunk(i + 2)
    else:
        issue_wq(i - 6)
    if i == LATE:
        a(LATEV); a(LATES)
WR = 128
def wreg(sg, hl, c): return WR + ((sg * 4 + hl) * 2 + c) * 4
def issue_wo(sg, part=(0, 1)):
    a(f"s_add_u32 s{T2}, s{RW}, {2*sg}")
    a(f"s_and_b32 s{T2}, s{T2}, 7")
    a(f"s_lshl_b32 s{T2}, s{T2}, 16")
    for p in part:
        if opts.get("mode") in ("5", "7") and sg >= 2:
            a(f"s_add_u32 m0, s{WOS}, {(sg - 2) * 32768 + p * 4096}")
        else:
            a(f"s_add_u32 m0, s15, {(sg % 2) * 8192 + p * 4096}")
        if p == part[0]: a(f"s_add_u32 s{T2}, s{T2}, s14")
        if p == 1: a(f"s_add_u32 s{T2}, s{T2}, 32768")
        for q in range(4):
            dma(56 + q, WO, T2, q * 1024, f"wo{sg}{p}", vm)
def wo_tr(sg, hls=range(4)):
    for hl in hls:
        for c in range(2):
            r = wreg(sg, hl, c)
            off = (sg % 2) * 8192 + hl * 2048
            b_ = 60
            if opts.get("mode") in ("5", "7") and sg >= 2:
                off = (sg - 2) * 32768 + hl * 2048; b_ = 46
            tr(r, b_ + c, off); tr(r + 2, b_ + c, off + 1024)
pc = [0]
def pair_add():
    lds_add(62, 31, 0); pc[0] += 2
def pair_wait(label):
    spin(label, f"ds_read_b32 v63, v62\ns_waitcnt lgkmcnt(0)\nv_cmp_gt_u32 vcc, {pc[0]}, v63", T3, mult=8)
def cnt_wait(label, off):
    spin(label, f"ds_read_b32 v63, v30 offset:{off}\ns_waitcnt lgkmcnt(0)\nv_cmp_gt_u32 vcc, 4, v63", T3, sleep=1, mult=8)
M5 = opts.get("mode") in ("5", "7")
QS = "qs" in opts or M5
if QS:
    vm.wait("q0")
    lds_add(30, 31, 0)
cnt_wait("Lad", 12)
E0 = opts.get("e0", "0")
if E0 == "0": issue_wo(0, part=(0,))
a(f"""
s_cmp_ge_u32 s{T4}, 64
s_cbranch_scc0 Lzc
Lzc_done:
""")
rare.append(f"""Lzc:
s_mov_b32 s{T3}, 0
Lzc_top:
s_load_dword s{T4}, s[20:21], 0 glc
s_waitcnt lgkmcnt(0)
s_cmp_ge_u32 s{T4}, 64
s_cbranch_scc1 Lzc_done
s_sleep 4
s_add_u32 s{T3}, s{T3}, 1
s_cmp_lt_u32 s{T3}, {SPIN}
s_cbranch_scc1 Lzc_top
s_branch Lzc_done""")
sty()
vm.wait("gate")
for k in range(4):
    a(f"v_dot2c_f32_bf16 v44, v{48+k}, v{40+k}")
    a(f"v_dot2c_f32_bf16 v45, v{52+k}, v{40+k}")
a(f"""
s_nop 2
v_permlane32_swap_b32 v44, v45
s_nop 1
v_add_f32 v44, v44, v45
s_nop 1
v_add_f32_dpp v44, v44, v44 row_ror:8 row_mask:0xf bank_mask:0xf
s_nop 1
v_add_f32_dpp v44, v44, v44 row_ror:4 row_mask:0xf bank_mask:0xf
s_nop 1
v_add_f32_dpp v44, v44, v44 row_ror:2 row_mask:0xf bank_mask:0xf
s_nop 1
v_add_f32_dpp v44, v44, v44 row_ror:1 row_mask:0xf bank_mask:0xf
v_mov_b32 v45, v44
s_nop 1
v_permlane16_swap_b32 v44, v45
s_nop 1
v_add_f32 v44, v44, v45
v_mul_f32 v44, 0xbfb8aa3b, v44
v_exp_f32 v44, v44
v_lshlrev_b32 v45, 2, v8
v_add_f32 v44, 1.0, v44
v_rcp_f32 v44, v44
""")
if not QS:
    vm.wait("q1")
    lds_add(30, 31, 0)
a("s_setprio 2")
spin("Lkp", "ds_read_b32 v36, v21 offset:1024\nds_read_b128 v[32:35], v20\ns_waitcnt lgkmcnt(0)\nv_cmp_eq_u32 vcc, 0, v36", T3, sleep=int(opts.get("psl", 1)), mult=8)
for r in range(4):
    a(f"buffer_atomic_add_f32 v{32+r}, v9, s[{WS}:{WS+3}], s3 offen offset:{r*RS}")
    vm.issue("atom")
a(f"""
s_mov_b64 exec, 0xffff
s_add_u32 s3, s3, {16*RS}
buffer_atomic_add_f32 v36, v9, s[{WS}:{WS+3}], s3 offen
s_mov_b32 exec_lo, 1
s_mov_b32 exec_hi, 1
buffer_store_dword v44, v45, s[{WS}:{WS+3}], s7 offen sc1
s_mov_b64 exec, -1
s_mov_b32 s{T4}, 1
s_mov_b32 s{T5}, 16
""")
vm.issue("atom"); vm.issue("gst")
sty()
if QS:
    vm.wait("q1")
    lds_add(30, 31, 24)
MODE = opts.get("mode", "4")
if E0 == "0": issue_wo(0, part=(1,))
if E0 == "1": issue_wo(0, part=(0,))
if E0 == "2":
    a("s_sleep 2"); issue_wo(0)
if MODE in ("1", "3"): issue_wo(1, part=(0,))
vm.wait("atom")
for r in range(1, KR):
    a(f"s_xor_b32 s{T0}, s13, {r*RST}\ns_atomic_add s{ONE}, s[22:23], s{T0}")
a(f"s_atomic_add s{T4}, s[22:23], s13 glc")
sty()
fst = sty.n + 1
def fetch():
    a(f"""buffer_load_dwordx4 v[32:35], v22, s[{WS}:{WS+3}], s12 offen sc1
s_mov_b64 exec, 0xf
buffer_load_dwordx4 v[36:39], v22, s[{WS}:{WS+3}], s3 offen sc1
s_mov_b64 exec, -1
s_mov_b32 s{T5}, -1
s_waitcnt vmcnt(0)
v_cvt_pk_bf16_f32 v32, v32, v33
v_cvt_pk_bf16_f32 v33, v34, v35
v_cvt_pk_bf16_f32 v34, v36, v37
v_cvt_pk_bf16_f32 v35, v38, v39
ds_write_b64 v23, v[32:33]
s_mov_b64 exec, 0xf
ds_write_b64 v23, v[34:35] offset:512""")
    lds_add(30, 31, 4)
    a("s_setprio 0")
    if STAMPS: a(f"{TS} s[{70+2*fst}:{71+2*fst}]")
POLL = f"s_load_dword s{T4}, s[22:23], s13 glc"
def maybe_fetch(k):
    a(f"s_cmp_eq_u32 s{T4}, s{T5}\ns_cbranch_scc0 Lmf{k}")
    fetch()
    a(f"Lmf{k}:")
def must_fetch():
    a(f"s_cmp_eq_u32 s{T5}, -1\ns_cbranch_scc1 Lkv_have\ns_cmp_eq_u32 s{T4}, 16\ns_cbranch_scc1 Lpollkv_done")
    if "kd" in opts:
        a("s_waitcnt lgkmcnt(0)")
        pspin("Lpollkv", 13, int(opts["kd"]), int(opts.get("kg", 5)), T3)
    else:
        sspin("Lpollkv", POLL + f"\ns_waitcnt lgkmcnt(0)\ns_cmp_eq_u32 s{T4}, 16", T3, sleep=int(opts.get("ksleep", 1)))
    fetch()
    a("Lkv_have:")
if E0 == "1": issue_wo(0, part=(1,))
if MODE != "7": issue_wo(1, part=((1,) if MODE in ("1", "3") else (0, 1)))
if MODE == "7":
    a(f"s_waitcnt lgkmcnt(0)\ns_add_u32 s{T4}, s{T4}, 1")
    sty(); sty.n += 1
    must_fetch()
    issue_wo(1)
    cnt_wait("Ls1", 8)
    issue_wo(2); issue_wo(3)
    vm.wait("wo11")
    pair_add(); pair_wait("Lps0")
    wo_tr(0); wo_tr(1)
    vm.wait("wo31")
    pair_add(); pair_wait("Lps2")
    wo_tr(2); wo_tr(3)
elif MODE in ("0", "1"):
    a(f"s_waitcnt lgkmcnt(0)\ns_add_u32 s{T4}, s{T4}, 1")
    maybe_fetch(0)
    vm.wait("wo11"); pair_add(); pair_wait("Lps0")
    a(POLL)
    wo_tr(0); wo_tr(1)
    a("s_waitcnt lgkmcnt(0)")
    pair_add()
    sty(); sty.n += 1
    must_fetch()
    pair_wait("Lps1")
    issue_wo(2)
    cnt_wait("Lxo", 8)
    issue_wo(3)
    vm.wait("wo31"); pair_add(); pair_wait("Lps2")
    wo_tr(2); wo_tr(3)
elif MODE == "5":
    cnt_wait("Ls0", 28)
    a(f"s_add_u32 s{T4}, s{T4}, 1")
    maybe_fetch(0)
    a(f"s_cmp_eq_u32 s{T5}, -1\ns_cbranch_scc1 Lnp5\n" + POLL + "\nLnp5:")
    issue_wo(2)
    a("s_waitcnt lgkmcnt(0)")
    sty(); sty.n += 1
    must_fetch()
    pair_add()
    if opts.get("s3") == "1":
        pair_wait("Lps0"); wo_tr(0)
    cnt_wait("Ls1", 32 if opts.get("s3") != "2" else 8)
    issue_wo(3)
    if opts.get("s3") != "1":
        pair_wait("Lps0"); wo_tr(0)
    wo_tr(1)
    vm.wait("wo31")
    pair_add(); pair_wait("Lps2")
    wo_tr(2); wo_tr(3)
elif MODE == "4":
    if "pa" in opts:
        vm.wait("wo11"); pair_add()
    a(f"s_waitcnt lgkmcnt(0)\ns_add_u32 s{T4}, s{T4}, 1")
    sty(); sty.n += 1
    must_fetch()
    if "pa" not in opts: pair_add()
    pair_wait("Lps0")
    if "fs" in opts:
        wo_tr(0)
        a("s_waitcnt lgkmcnt(0)")
        pair_add()
        wo_tr(1)
        pair_wait("Lps1")
        pair_add()
        issue_wo(2)
        pair_wait("Lps1b")
        issue_wo(3)
    else:
        wo_tr(0); wo_tr(1)
        a("s_waitcnt lgkmcnt(0)")
        pair_add(); pair_wait("Lps1")
        R2 = opts.get("r2", "0")
        if R2 == "0": cnt_wait("Lxo", 8)
        if R2 == "3":
            issue_wo(2, part=(0,)); cnt_wait("Lxo", 8); issue_wo(2, part=(1,))
        else:
            issue_wo(2)
        if R2 == "1": cnt_wait("Lxo", 8)
        issue_wo(3)
    if "nw" not in opts: vm.wait("wo31")
    if "nosm" in opts:
        pair_add(); pair_wait("Lps2")
        wo_tr(2); wo_tr(3)
else:
    vm.wait("wo01"); pair_add()
    a(f"s_waitcnt lgkmcnt(0)\ns_add_u32 s{T4}, s{T4}, 1")
    maybe_fetch(0)
    pair_wait("Lps0")
    a(POLL)
    wo_tr(0)
    vm.wait("wo11")
    a("s_waitcnt lgkmcnt(0)")
    pair_add()
    sty(); sty.n += 1
    must_fetch()
    pair_wait("Lps1")
    wo_tr(1)
    issue_wo(2)
    a("s_waitcnt lgkmcnt(0)")
    pair_add()
    cnt_wait("Lxo", 8)
    pair_wait("Lps2")
    issue_wo(3)
    vm.wait("wo31"); pair_add(); pair_wait("Lps3")
    wo_tr(2); wo_tr(3)
OV = ""
def o_poll(preg=36):
    a(f"s_bitcmp1_b32 s{WL}, 0\ns_cbranch_scc1 Lpollo_done")
    if "odel" in opts: a(f"s_sleep {opts['odel']}")
    if "od" in opts:
        pspin("Lpollo", 9, int(opts["od"]), int(opts.get("og", 4)), T3, preg)
    else:
        sspin("Lpollo", f"s_load_dword s{T4}, s[22:23], s9 glc\ns_waitcnt lgkmcnt(0)\ns_cmp_eq_u32 s{T4}, 16", T3, sleep=int(opts.get("osleep", 2)))
a("s_waitcnt lgkmcnt(0)")
if "yp" in opts: o_poll()
sty()
a("s_barrier")
if "nosm" not in opts and not M5:
    if "nw" in opts:
        vm.wait("wo31"); pair_add(); pair_wait("Lps2")
    wo_tr(2); wo_tr(3)
a(f"buffer_load_dword v2, v28, s[{WS}:{WS+3}], s8 offen sc1")
if "nosm" not in opts:
    a("v_add_u32 v10, 0x10000, v24\nv_add_u32 v11, 0x10000, v25\ns_waitcnt lgkmcnt(0)")
ACC = [32, 48]
OB = 64; NBUF = 16
lg = LG()
items = [(st_, k, c) for st_ in range(4) for k in range(8) for c in range(2)]
def rdO(n):
    st_, k, c = items[n]
    r = OB + 4 * (n % NBUF)
    if "nosm" not in opts:
        a(f"ds_read_b128 v[{r}:{r+3}], v{(24 if st_ < 2 else 10)+c} offset:{(st_&1)*32768 + k*1024}")
    else:
        a(f"ds_read_b128 v[{r}:{r+3}], v{24+c} offset:{st_*8192 + k*1024}")
    lg.issue(f"O{n}")
def mfO(n):
    st_, k, c = items[n]
    if n % 2 == 0: lg.wait(f"O{n+1}")
    mfma(ACC[1 if st_ < 2 else 0], wreg(2 * (st_ & 1) + (k >> 2), k & 3, c), OB + 4 * (n % NBUF), "0" if n in (0, 32) else None)
LAG = 4
done = 0
wq = list(range(4))
fin = ["s_waitcnt vmcnt(0)", "v_sub_f32 v4, 1.0, v2", f"s_cmp_ge_u32 s{WL}, 2\ns_cselect_b64 vcc, -1, 0",
       "v_cndmask_b32 v6, v2, v4, vcc", "v_cndmask_b32 v4, v4, v2, vcc"]
for n in range(64):
    if n == 56 and "sl" in opts:
        a("s_barrier")
        rdO(n); rdO(n + 1)
    if n % 16 == 0:
        if n == 48: lg.wait("W")
        if n == 0 and OV == "4": a("s_waitcnt vmcnt(1)")
        a("s_barrier")
        if n == 0: sty()
        rdO(n); rdO(n + 1)
    if n % 16 < 14 and not ("sl" in opts and n in (54, 55)): rdO(n + 2)
    if n >= LAG:
        mfO(done); done += 1
        if "nox64" not in opts:
            wq = []
            if 36 <= done < 44:
                k = done - 36
                if k == 0: a("s_nop 1")
                a(f"ds_write_b64 v29, v[{48+2*k}:{49+2*k}] offset:{k*512}"); lg.issue("W")
            if 46 <= done < 54:
                k = done - 46
                a(f"ds_read_b64 v[{48+2*k}:{49+2*k}], v17 offset:{k*512}"); lg.issue("P")
        else:
            if done in (37, 38, 40, 42):
                k = wq.pop(0)
                a(f"ds_write_b128 v29, v[{48+4*k}:{51+4*k}] offset:{k*1024}"); lg.issue("W")
            if done >= 50 and done < 54:
                k = done - 50
                a(f"ds_read_b128 v[{48+4*k}:{51+4*k}], v17 offset:{k*1024}"); lg.issue("P")
        if done >= 54 and fin: a(fin.pop(0))
assert not wq and not fin
vq = [f"v_mul_f32 v{48+r}, v{48+r}, v4" for r in range(16)]
while done < 64:
    mfO(done); done += 1
    for _ in range(4):
        a(vq.pop(0))
sty()
a("s_nop 7")
if "nof64" not in opts:
    for p in range(4):
        for r in (4 * p, 4 * p + 2):
            a(f"v_pk_fma_f32 v[{32+r}:{33+r}], v[{32+r}:{33+r}], v[6:7], v[{48+r}:{49+r}] op_sel_hi:[1,0,1]")
        a(f"v_cvt_pk_bf16_f32 v{32+4*p}, v{32+4*p}, v{33+4*p}")
        a(f"v_cvt_pk_bf16_f32 v{33+4*p}, v{34+4*p}, v{35+4*p}")
        a(f"ds_write_b64 v{[12, 16, 13, 18][p]}, v[{32+4*p}:{33+4*p}]")
else:
    for r in range(0, 16, 2):
        a(f"v_pk_fma_f32 v[{32+r}:{33+r}], v[{32+r}:{33+r}], v[6:7], v[{48+r}:{49+r}] op_sel_hi:[1,0,1]")
    for r in range(8):
        a(f"v_cvt_pk_bf16_f32 v{32+r}, v{32+2*r}, v{33+2*r}")
if "nof64" in opts:
    a("""v_permlane32_swap_b32 v32, v34
v_permlane32_swap_b32 v33, v35
v_permlane32_swap_b32 v36, v38
v_permlane32_swap_b32 v37, v39
ds_write_b128 v12, v[32:35]
ds_write_b128 v13, v[36:39]""")
if T128: a("s_waitcnt lgkmcnt(0)\ns_barrier")
a(f"""
ds_read_b128 v[64:67], v14
ds_read_b128 v[68:71], v14 offset:1024
s_waitcnt lgkmcnt(1)
buffer_store_dwordx4 v[64:67], v15, s[{OUT}:{OUT+3}], s10 offen sc1
s_waitcnt lgkmcnt(0)
buffer_store_dwordx4 v[68:71], v15, s[{OUT}:{OUT+3}], s11 offen sc1
""")
if STAMPS:
    sty()
    a("s_waitcnt vmcnt(0)")
    while sty.n < STAMPS: sty()
    a("s_branch Lstamps")
else:
    a("s_endpgm")

vm = VM()
stx = Stamper(1)
a("Lx:")
a(COMMON)
a(f"""
s_getpc_b64 s[66:67]
Lpc0:
s_sub_u32 s66, s66, Lpc0-{NAME}_kernel
s_subb_u32 s67, s67, 0
s_and_b32 s{T0}, s{CBK}, 3
s_lshl_b32 s{T0}, s{T0}, 2
s_add_u32 s{T0}, s{T0}, s{WL}
s_lshl_b32 s{T0}, s{T0}, 10
v_lshl_add_u32 v140, v1, 7, s{T0}
v_min_u32 v140, Lcode_end-{NAME}_kernel-4, v140
s_mov_b64 exec, 0xff
global_load_dword v252, v140, s[66:67]
s_mov_b64 exec, -1
v_lshlrev_b32 v14, 4, v1
v_mov_b32 v240, 0
v_mov_b32 v241, 0
v_mov_b32 v242, 0
v_mov_b32 v243, 0
v_mov_b32 v12, {MISC}
v_mov_b32 v13, 1
s_lshl_b32 s{T1}, s{WL}, 11
s_add_u32 s{T1}, s{T1}, {KVP}
v_add_u32 v5, s{T1}, v14
v_lshl_add_u32 v15, v1, 2, s{T1}
ds_write_b128 v12, v[240:243]
ds_write_b32 v15, v240 offset:1024
ds_write_b128 v12, v[240:243] offset:16
ds_write_b128 v12, v[240:243] offset:32
v_and_b32 v23, 3, v1
s_mov_b32 s{WS+2}, {WS_BYTES}
s_mov_b32 s{WS+3}, 0x20000
s_cmp_eq_u32 s{RB}, s{CB}
s_waitcnt lgkmcnt(0)
s_mov_b32 s{WS}, s22
s_mov_b32 s{WS+1}, s23
s_cbranch_scc0 Lnozero
s_lshl_b32 s{T0}, s{CB}, 2
s_add_u32 s{T0}, s{T0}, s{WL}
s_mul_i32 s{T1}, s{T0}, {KVSTR}
s_add_u32 s{T1}, s{T1}, {KVACC}
""")
for r in range(1, KA):
    a(f"""s_add_u32 s{T2}, s{T1}, {r*KAS}
buffer_store_dwordx4 v[240:243], v14, s[{WS}:{WS+3}], s{T2} offen sc1
s_mov_b64 exec, 0xf
buffer_store_dwordx4 v[240:243], v14, s[{WS}:{WS+3}], s{T2} offen offset:1024 sc1
s_mov_b64 exec, -1""")
a(f"""
buffer_store_dwordx4 v[240:243], v14, s[{WS}:{WS+3}], s{T1} offen sc1
{f"buffer_store_dwordx4 v[240:243], v14, s[{WS}:{WS+3}], s{T1} offen offset:1024 sc1" if RSH == 7 else ""}
s_add_u32 s{T1}, s{T1}, {16*RS}
s_lshl_b32 s{T2}, s{T0}, 10
s_add_u32 s{T3}, s{T2}, {OCNT}
s_add_u32 s{T2}, s{T2}, {KVCNT}
buffer_store_dwordx4 v[240:243], v14, s[{WS}:{WS+3}], s{T2} offen sc1
buffer_store_dwordx4 v[240:243], v14, s[{WS}:{WS+3}], s{T3} offen sc1
s_mov_b64 exec, {"0xf" if "z64" in opts else "0xff"}
buffer_store_dwordx4 v[240:243], v14, s[{WS}:{WS+3}], s{T1} offen sc1
""")
if "nogz" not in opts:
    a(f"""s_lshl_b32 s{T2}, s{T0}, 7
s_add_u32 s{T2}, s{T2}, {GBUF}
buffer_store_dwordx4 v[240:243], v14, s[{WS}:{WS+3}], s{T2} offen sc1""")
a(f"""s_mov_b64 exec, -1
Lnozero:
s_mov_b32 s{SLG}, 0x{LOG2E:x}
s_mov_b32 s{SLG+1}, 0x{LOG2E:x}
s_mov_b32 s{SEP}, 0x{EPS:x}
s_mov_b32 s{SEP+1}, 0x{EPS:x}
v_and_b32 v20, 15, v1
v_lshrrev_b32 v21, 4, v1
v_lshrrev_b32 v22, 1, v20
v_xor_b32 v22, v21, v22
v_lshlrev_b32 v2, 7, v20
v_lshl_add_u32 v2, v22, 4, v2
v_xor_b32 v3, 64, v2
; W base v4
v_lshrrev_b32 v24, 5, v1
v_lshlrev_b32 v4, 12, v24
v_and_b32 v25, 1, v21
v_lshl_add_u32 v4, v25, 10, v4
v_lshrrev_b32 v26, 2, v20
v_lshl_add_u32 v4, v26, 7, v4
v_bfe_u32 v22, v1, 3, 2
v_xor_b32 v22, s{WL}, v22
v_lshl_add_u32 v4, v22, 5, v4
v_lshl_add_u32 v4, v23, 3, v4
v_add_u32 v4, 16384, v4
v_bfe_u32 v22, v1, 3, 1
v_lshl_add_u32 v10, v24, 3, v26
v_lshlrev_b32 v10, 7, v10
v_lshl_add_u32 v10, v25, 5, v10
v_lshl_add_u32 v10, v23, 3, v10
v_lshl_add_u32 v10, v22, 6, v10
v_xor_b32 v11, 64, v10
v_and_b32 v20, 31, v1
s_lshl_b32 s{T0}, s{WL}, 12
v_lshl_add_u32 v6, v20, 7, s{T0}
v_bfe_u32 v25, v1, 1, 3
v_xor_b32 v25, v24, v25
v_lshl_add_u32 v6, v25, 4, v6
v_xor_b32 v7, 32, v6
v_xor_b32 v8, 64, v6
v_xor_b32 v9, 96, v6
; o store s68 / counter s69 / o-load s66,s67 ; wo^T store T0 ; flag offset s24
s_lshl_b32 s{T1}, s{RB}, 2
s_add_u32 s{T1}, s{T1}, s{WL}
s_lshl_b32 s68, s{T1}, 16
s_lshl_b32 s{T3}, s{CB}, 12
s_add_u32 s68, s68, s{T3}
s_add_u32 s68, s68, {OBUF}
s_lshl_b32 s69, s{T1}, 10
s_add_u32 s69, s69, {OCNT}
s_lshr_b32 s{T2}, s{WL}, 1
s_lshl_b32 s66, s{RT}, 1
s_add_u32 s66, s66, s{T2}
s_lshl_b32 s66, s66, 16
s_lshl_b32 s{T2}, s{T2}, 15
s_add_u32 s66, s66, s{T2}
s_add_u32 s66, s66, {OBUF}
s_lshl_b32 s67, s{WL}, {13 if "nosm" not in opts else 15}
s_lshl_b32 s9, s{RT}, 1
s_lshr_b32 s{T0}, s{WL}, 1
s_add_u32 s9, s9, s{T0}
s_lshl_b32 s9, s9, 10
s_add_u32 s9, s9, {OCNT}
s_and_b32 s{T0}, s{CBK}, {OR-1}
s_mul_i32 s{T0}, s{T0}, {RST}
s_add_u32 s9, s9, s{T0}
""")
RG, BF, AK, AV, XR = 16, 48, 64, 96, 128
FLI = int(opts.get("fli", 2))
stx()
lg = LG()
for i in range(8):
    so = (i & 1) * 32768
    a("s_barrier")
    if i in (0, 7): stx()
    for sidx in range(16):
        n = (sidx - LAGA) % 16
        ci = i if sidx >= LAGA else i - 1
        ks = n >> 3; rt = n & 7
        em = ci >= 0
        first = (ci == 0 and ks == 0)
        if em:
            tags = [f"X{ci}_{n}"] + ([f"B{ci}_{ks}0", f"B{ci}_{ks}1"] if rt == 0 else [])
            if sidx % 2 == 0 and rt != 7:
                tags.append(f"X{ci}_{n+1}")
            if sidx % 2 == 0 or rt == 0:
                lg.wait(*tags)
            mfma16(AK + 4 * rt, RG + 4 * (n % 8), BF + ks * 8, "1.0" if first else None)
        def rdB(k_, sec, u):
            tr(BF + k_ * 8 + sec * 4 + 2 * u, 4, so + k_ * 8192 + sec * 2048 + u * 512)
            lg.issue(f"B{i}_{k_}{sec}")
        if sidx < 2:
            rdB(0, sidx, 0); rdB(0, sidx, 1)
        elif 6 <= sidx < 10:
            rdB(1, (sidx - 6) >> 1, sidx & 1)
        elif sidx in (10, 11, 12, 13):
            t = sidx - 10
            xr = XR + (4 * i + t) * 4
            a(f"ds_read_b128 v[{xr}:{xr+3}], v{6+t} offset:{so}")
            lg.issue("XR")
        elif (i & 1) and i < 7 and sidx == 14:
            a("v_xor_b32 v2, 0x10000, v2\nv_xor_b32 v4, 0x10000, v4")
        elif i > 0 and (i & 1) == 0 and sidx in (2, 3):
            k = 6 + 2 * (sidx - 2)
            a(f"v_xor_b32 v{k}, 0x10000, v{k}\nv_xor_b32 v{k+1}, 0x10000, v{k+1}")
        elif i > 0 and (i & 1) == 0 and sidx == 4:
            a("v_xor_b32 v3, 0x10000, v3")
        elif i == 1 and sidx == 2:
            a(f"s_cmp_eq_u32 s{RB}, s{CB}\ns_cbranch_scc1 Lflag\nLflag_done:")
            rare.append(f"Lflag:\ns_waitcnt vmcnt(0)\ns_atomic_add s{ONE}, s[20:21], 0\ns_branch Lflag_done")
        elif i == 5 and sidx == 2:
            a("s_waitcnt vmcnt(0)")
        if em:
            mfma16(AV + 4 * rt, RG + 4 * (n % 8), BF + ks * 8 + 4, "0" if first else None)
        r = RG + 4 * (sidx % 8)
        a(f"ds_read_b128 v[{r}:{r+3}], v{2 + (sidx >> 3)} offset:{so + (sidx & 7) * 2048}")
        lg.issue(f"X{i}_{sidx}")
for n in range(16 - LAGA, 16):
    lg.wait(f"X7_{n}")
    mfma16(AK + 4 * (n & 7), RG + 4 * (n % 8), BF + 8)
lds_add(12, 13, 12)
for n in range(16 - LAGA, 16):
    mfma16(AV + 4 * (n & 7), RG + 4 * (n % 8), BF + 12)
stx()
for op in phi_ops(AK, 32, RG, pk=True):
    a(op)
a("ds_read_b32 v2, v12")
for r in range(60, 64):
    a(f"v_mov_b32 v{r}, 0x3f803f80")
for r in range(16):
    a(f"v_cvt_pk_bf16_f32 v{AV+r}, v{AV+2*r}, v{AV+2*r+1}")
    if r % 4 == 1:
        mfma16(56, 60, AK + (r // 4) * 4, "0" if r < 4 else None)
a("s_waitcnt lgkmcnt(0)")
for p in range(4):
    mfma16(52, AV + 4 * p, AK + 4 * p, "0" if p == 0 else None)
a(f"v_and_b32 v3, 31, v1\nv_min_u32 v3, 16, v3\nv_lshlrev_b32 v3, 5, v3\nv_lshrrev_b32 v4, 5, v1\nv_lshl_add_u32 v3, v4, 4, v3\nv_add_u32 v3, {KVF}, v3\nv_cmp_ne_u32 vcc, 4, v2\ns_nop 0")
a("ds_write_b128 v5, v[52:55]\nds_write_b32 v15, v56 offset:1024\ns_cbranch_vccz Lq0_done")
spin("Lq0", "ds_read_b32 v2, v12\ns_waitcnt lgkmcnt(0)\nv_cmp_ne_u32 vcc, 4, v2", T3, mult=8)
NB = 8
if QS:
    BM = opts.get("bm", "0")
    if BM == "0":
        seq = [(ct, s) for s in range(32) for ct in range(2)]
    else:
        seq = [(ct, s) for s in range(16) for ct in range(2)] + [(0, s) for s in range(16, 32)] + [(1, s) for s in range(16, 32)]
    lgq = LG()
    def qread(n):
        ct, s = seq[n]
        r = RG + (n % NB) * 4
        off = WQ + (s // 4) * 8192 + (s % 4) * 2048
        tr(r, 10 + ct, off); tr(r + 2, 10 + ct, off + 512)
        lgq.issue(f"q{n}"); lgq.issue(f"q{n}")
    PF = 6
    for n in range(PF):
        qread(n)
    stx()
    ph0 = phi_ops(64, 16, 96)[:16 + 10] if BM == "1" else []
    for n, (ct, s) in enumerate(seq):
        if n + PF == 28:
            a("ds_read_b32 v2, v12 offset:24"); lgq.issue("c")
        if n + PF == 32:
            lgq.wait("c")
            a("v_cmp_ne_u32 vcc, 4, v2\ns_cbranch_vccnz Lq1\nLq1_done:")
            rare.append(f"""Lq1:
    s_mov_b32 s{T3}, 0
    Lq1_top:
    ds_read_b32 v2, v12 offset:24
    s_waitcnt lgkmcnt(0)
    v_cmp_ne_u32 vcc, 4, v2
    s_cbranch_vccz Lq1_done
    s_add_u32 s{T3}, s{T3}, 1
    s_cmp_lt_u32 s{T3}, {SPIN*8}
    s_cbranch_scc1 Lq1_top
    s_branch Lq1_done""")
        if n + PF < 64:
            qread(n + PF)
        if n % 2 == 0: lgq.wait(f"q{n+1}")
        mfma(64 + 16 * ct, RG + (n % NB) * 4, XR + s * 4, "1.0" if s == 0 else None)
        if M5 and n == 30:
            lds_add(12, 13, 28); lgq.issue("sig")
        if M5 and n == 62:
            lds_add(12, 13, 32); lgq.issue("sig")
        if n >= 51:
            for op in ph0[:2]: a(op)
            ph0 = ph0[2:]
    assert not ph0
    stx()
    if BM == "0":
        a("s_nop 7\ns_nop 2")
        ph1 = phi_ops(64, 32, 96, pk=True)
        PQ = [64, 68, 72, 76]
    else:
        rest = phi_ops(64, 16, 96, pk=True)[8 + 10:]
        ph1 = rest + phi_ops(80, 16, 112, pk=True)
        PQ = [64, 68, 80, 84]
    for op in ph1[:-10]:
        a(op)
    a("ds_read_b32 v2, v12 offset:4")
    for op in ph1[-10:]:
        a(op)
    stx()
else:
    seq = [(ct, s) for ct in range(2) for s in range(32)]
    lgq = LG()
    def qread(n):
        ct, s = seq[n]
        r = RG + (n % NB) * 4
        off = WQ + (s // 4) * 8192 + (s % 4) * 2048
        tr(r, 10 + ct, off); tr(r + 2, 10 + ct, off + 512)
        lgq.issue(f"q{n}"); lgq.issue(f"q{n}")
    PF = 6
    for n in range(PF):
        qread(n)
    stx()
    ph0 = phi_ops(64, 16, 96)
    for n, (ct, s) in enumerate(seq):
        if n + PF < 64:
            qread(n + PF)
        if n % 2 == 0: lgq.wait(f"q{n+1}")
        mfma(64 + 16 * ct, RG + (n % NB) * 4, XR + s * 4, "1.0" if s == 0 else None)
        if n >= 35:
            k = (2 if n < 58 else 2) if n < 63 else len(ph0)
            for op in ph0[:k]:
                a(op)
            ph0 = ph0[k:]
    assert not ph0
    stx()
    ph1 = phi_ops(80, 16, 96, pk=True)
    for op in ph1[:-10]:
        a(op)
    a("ds_read_b32 v2, v12 offset:4")
    for op in ph1[-10:]:
        a(op)
    stx()
    PQ = [64, 68, 80, 84]
a("s_waitcnt lgkmcnt(0)\nv_cmp_ne_u32 vcc, 4, v2\ns_cbranch_vccz Lkvw_done")
spin("Lkvw", "ds_read_b32 v2, v12 offset:4\ns_waitcnt lgkmcnt(0)\nv_cmp_ne_u32 vcc, 4, v2", T3, mult=8)
stx()
for h in range(4):
    a(f"ds_read_b128 v[{16+4*h}:{19+4*h}], v3 offset:{h*1024}")
DN = [192, 208, 224, 240]
for h in range(4):
    a(f"s_waitcnt lgkmcnt({3-h})")
    mfma(DN[h], 16 + 4 * h, PQ[h], "0")
vm = VM()
def o_half(st_, hf, setup_only=False, do_setup=True):
    g = 2 * (st_ & 1) + hf
    if do_setup:
        a(f"s_add_u32 s{T2}, s{RW}, {2*g}")
        a(f"s_and_b32 s{T2}, s{T2}, 7")
        a(f"s_lshl_b32 s{T2}, s{T2}, 12")
        a(f"s_add_u32 s{T2}, s{T2}, s66")
        a(f"s_add_u32 m0, s67, {st_*(32768 if 'nosm' not in opts else 8192)+hf*4096}")
        if st_ < 2: a(f"s_xor_b32 s{T2}, s{T2}, 0x10000")
        else: a("s_nop 0")
    if setup_only: return
    for q in range(4):
        dma(14, WS, T2, q * 1024, f"o{st_}{hf}", vm, "sc1 ")
o_half(0, 0, setup_only=True)
for h in range(4):
    d = DN[h]
    a(f"v_add_f32 v{d+8}, s{SEP}, v{d+8}")
    a(f"v_rcp_f32 v{d+8}, v{d+8}")
    a("s_nop 0")
    for r in range(0, 8, 2):
        a(f"v_pk_mul_f32 v[{d+r}:{d+r+1}], v[{d+r}:{d+r+1}], v[{d+8}:{d+9}] op_sel_hi:[1,0]")
    for r in range(4):
        a(f"v_cvt_pk_bf16_f32 v{d+r}, v{d+2*r}, v{d+2*r+1}")
    a(f"buffer_store_dwordx4 v[{d}:{d+3}], v14, s[{WS}:{WS+3}], s68 offen offset:{h*1024} sc1")
lds_add(12, 13, 8)
stx()
if "noack" not in opts: a("s_waitcnt vmcnt(0)")
a(f"s_atomic_add s{ONE}, s[22:23], s69")
for r in range(1, OR):
    a(f"s_atomic_add s{ONE}, s[22:23], s69 offset:{r*RST}")
stx()
if "yp" not in opts:
    a("s_waitcnt lgkmcnt(0)" if "od" in opts else "")
    o_poll(24)
a("s_barrier")
stx()
o_half(0, 0, do_setup=False); o_half(0, 1)
if "xl" in opts:
    o_half(1, 0)
    vm.wait("o01"); a("s_barrier")
    o_half(1, 1); o_half(2, 0); o_half(2, 1)
    vm.wait("o11"); a("s_barrier")
    o_half(3, 0); o_half(3, 1)
    vm.wait("o21"); a("s_barrier")
else:
    for st_ in range(3):
        o_half(st_ + 1, 0); o_half(st_ + 1, 1)
        vm.wait(f"o{st_}1"); a("s_barrier")
if "sl" in opts: vm.wait("o30"); a("s_barrier")
vm.wait("o31"); a("s_barrier")
if STAMPS:
    if T128: a("s_barrier")
    while stx.n < STAMPS: stx()
    a("Lstamps:")
    a(f"v_subrev_u32 v40, {SWAVE*64}, v0")
    emit_stamp_store(a, 0, STAMPS, 70, 22, 2, 20, stmp=60, tid="v40")
a("Lend:")
a("s_endpgm")
for r in rare:
    a(r)
a("Lcode_end:")
open(sys.argv[1], "w").write(file_text([(NAME + "_kernel", 256, 512, 163840)], [(NAME + "_kernel", a.text(), 256, None)]))
```

```python
import sys, struct
from asmlib import *

opts = dict(o.split("=") if "=" in o else (o, "1") for o in sys.argv[2:])
STAMPS = int(opts.get("stamps", 0))
SWAVE = int(opts.get("swave", 0))
LAGA = 6
a = Asm()
KA = int(opts.get("ka", 1)); KAS = 0x14000
KR = int(opts.get("kr", 4)); OR = int(opts.get("or", 4)); RST = int(opts.get("rst", 256))

RSH = int(opts.get('rsh', 6)); RS = 1 << RSH
KVSTR = 1152 if RSH == 6 else 17 * RS
PB = int(opts.get('pb', 2))
ZO = 2048 if PB == 4 else 16 * RS
if PB == 4: KVSTR = 2176
WB = int(opts.get('wb', '0'), 0)
KVCNT = WB + 0x20000
OCNT = WB + 0x30000
GBUF = WB + 0x40000
OBUF = WB + 0x100000
KVACC = WB + 0x500000
WS_BYTES = WB + 0x600000
EPS = 0x358637bd
LOG2E = 0x3fb8aa3b
SPIN = int(opts.get("spin", 20000))
SL = [0, 32768, 65536, 98304, 131072]
WQ = SL[0]
STG = SL[2]
MISC = SL[4]
KVF = SL[4] + 4096
KVP = SL[4] + 8192
XCH = SL[4] + 16384

class Cnt:
    def __init__(self, name, mx): self.q = []; self.name = name; self.mx = mx
    def issue(self, tag): self.q.append(tag)
    def n_after(self, tag):
        idx = max(i for i, t in enumerate(self.q) if t == tag)
        return len(self.q) - 1 - idx
    def wait(self, *tags):
        n = min(self.mx, min(self.n_after(t) for t in tags))
        a(f"s_waitcnt {self.name}({n})")
def VM(): return Cnt("vmcnt", 63)
def LG(): return Cnt("lgkmcnt", 15)
TS = 's_memtime' if 'cyc' in opts else 's_memrealtime'
class Stamper:
    def __init__(self, start=0): self.n = start
    def __call__(self):
        if STAMPS:
            assert self.n < STAMPS, self.n
            a(f"{TS} s[{70+2*self.n}:{71+2*self.n}]")
            self.n += 1

X, W, WO, WS, OUT = 24, 28, 32, 40, 44
SLG, SEP = 36, 38
RT, CBK, RW, ONE = 48, 49, 50, 51
RB, CB, WV, ROT, XS, WSB, WL, T0, T1, T2, T3, WOS, T5, T4 = 52, 53, 54, 55, 56, 57, 58, 59, 60, 61, 62, 63, 64, 65

def mfma(d, sa, sb, c=None):
    cc = f"v[{d}:{d+15}]" if c is None else c
    a(f"v_mfma_f32_32x32x16_bf16 v[{d}:{d+15}], v[{sa}:{sa+3}], v[{sb}:{sb+3}], {cc}")
def mfma16(d, sa, sb, c=None):
    cc = f"v[{d}:{d+3}]" if c is None else c
    a(f"v_mfma_f32_16x16x32_bf16 v[{d}:{d+3}], v[{sa}:{sa+3}], v[{sb}:{sb+3}], {cc}")
def tr(r, addr, off):
    a(f"ds_read_b64_tr_b16 v[{r}:{r+1}], v{addr} offset:{off}")
def phi_ops(acc, n, tmp, pk=False):
    ops = []
    if pk:
        for r in range(0, n, 2):
            ops.append(f"v_pk_fma_f32 v[{tmp+r}:{tmp+r+1}], v[{acc+r}:{acc+r+1}], s[{SLG}:{SLG+1}], s[{SLG}:{SLG+1}] neg_lo:[0,0,1] neg_hi:[0,0,1]")
    else:
        for r in range(n):
            ops.append(f"v_fma_f32 v{tmp+r}, v{acc+r}, s{SLG}, -s{SLG}")
    for r in range(n):
        ops.append(f"v_exp_f32 v{tmp+r}, v{tmp+r} clamp")
        if r >= 2:
            ops.append(f"v_max_f32 v{acc+r-2}, v{acc+r-2}, v{tmp+r-2}")
    ops.append(f"v_max_f32 v{acc+n-2}, v{acc+n-2}, v{tmp+n-2}")
    ops.append(f"v_max_f32 v{acc+n-1}, v{acc+n-1}, v{tmp+n-1}")
    if pk:
        for r in range(0, n, 2):
            ops.append(f"v_pk_add_f32 v[{acc+r}:{acc+r+1}], v[{acc+r}:{acc+r+1}], s[{SEP}:{SEP+1}]")
    else:
        for r in range(n):
            ops.append(f"v_add_f32 v{acc+r}, s{SEP}, v{acc+r}")
    for r in range(n // 2):
        ops.append(f"v_cvt_pk_bf16_f32 v{acc+r}, v{acc+2*r}, v{acc+2*r+1}")
    return ops
def spin(label, body, cnt, sleep=None, mult=1):
    a(f"s_mov_b32 s{cnt}, 0\n{label}_top:")
    a(body)
    a(f"s_cbranch_vccz {label}_done")
    if sleep: a(f"s_sleep {sleep}")
    a(f"s_add_u32 s{cnt}, s{cnt}, 1\ns_cmp_lt_u32 s{cnt}, {SPIN*mult}\ns_cbranch_scc1 {label}_top")
    a(f"{label}_done:")
def sspin(label, body, cnt, sleep=None):
    a(f"s_mov_b32 s{cnt}, 0\n{label}_top:")
    a(body)
    a(f"s_cbranch_scc1 {label}_done")
    if sleep: a(f"s_sleep {sleep}")
    a(f"s_add_u32 s{cnt}, s{cnt}, 1\ns_cmp_lt_u32 s{cnt}, {SPIN}\ns_cbranch_scc1 {label}_top")
    a(f"{label}_done:")
def pspin(label, off, depth, gap, cnt, base=36):
    regs = [base + i for i in range(depth)]
    for r in regs: a(f"s_mov_b32 s{r}, 0")
    for r in regs[:-1]:
        a(f"s_load_dword s{r}, s[22:23], s{off} glc\ns_sleep {gap}")
    a(f"s_mov_b32 s{cnt}, 0\n{label}_top:")
    for i in range(depth):
        r = regs[(i - 1) % depth]
        a(f"s_load_dword s{r}, s[22:23], s{off} glc\ns_waitcnt lgkmcnt({depth-1})")
        a(f"s_max_u32 s{T4}, s{regs[0]}, s{regs[1]}")
        for q in regs[2:]: a(f"s_max_u32 s{T4}, s{T4}, s{q}")
        a(f"s_cmp_eq_u32 s{T4}, 16\ns_cbranch_scc1 {label}_done")
    a(f"s_add_u32 s{cnt}, s{cnt}, 1\ns_cmp_lt_u32 s{cnt}, {SPIN}\ns_cbranch_scc1 {label}_top\n{label}_done:")
rare = []
def lds_add(vaddr, vone, off):
    a(f"s_mov_b64 exec, 1\nds_add_u32 v{vaddr}, v{vone} offset:{off}\ns_mov_b64 exec, -1")
def dma(voff, sr, soff, off, tag, vmq, extra=""):
    o = f"offset:{off} " if off else ""
    a(f"buffer_load_dwordx4 v{voff}, s[{sr}:{sr+3}], s{soff} offen {o}{extra}lds")
    vmq.issue(tag)

st = Stamper()
st()
COMMON = f"""
s_load_dwordx16 s[4:19], s[0:1], 0
s_load_dwordx4 s[20:23], s[0:1], 64
s_and_b32 s{T3}, s2, 7
s_lshl2_add_u32 s{RT}, s{T3}, s3
s_lshr_b32 s{CB}, s{T3}, 1
s_lshl2_add_u32 s{CB}, s{CB}, s3
s_and_b32 s{RW}, s{WL}, 1
s_lshl1_add_u32 s{RW}, s3, s{RW}
s_mov_b32 s{ONE}, 1
"""
a(f"""
s_load_dwordx2 s[{X}:{X+1}], s[0:1], 0
s_and_b32 s{T0}, s2, 4
s_mul_i32 s{T0}, s{T0}, 6
s_load_dwordx2 s[{W}:{W+1}], s[0:1], s{T0} offset:8
v_readfirstlane_b32 s{WV}, v0
s_cmpk_ge_u32 s2, 256
s_cbranch_scc1 Lend
v_and_b32 v1, 63, v0
s_lshr_b32 s{T1}, s2, 3
s_and_b32 s{CBK}, s{T1}, 7
s_lshr_b32 s3, s{T1}, 3
s_and_b32 s{RB}, s2, 1
s_lshl3_add_u32 s{RB}, s{RB}, s{CBK}
s_lshr_b32 s{WL}, s{WV}, 6
s_and_b32 s{WL}, s{WL}, 3
s_cmpk_lt_u32 s{WV}, 256
s_cbranch_scc1 Lx
""")

vm = VM()
sty = Stamper(1)
a(f"""
v_lshrrev_b32 v20, 3, v1
v_and_b32 v21, 7, v1
v_lshrrev_b32 v22, 4, v1
v_xor_b32 v23, v21, v22
v_lshlrev_b32 v2, 10, v20
v_lshl_add_u32 v2, v23, 4, v2
s_add_u32 s{ROT}, s{CBK}, s3
s_lshl_b32 s{ROT}, s{ROT}, 2
s_and_b32 s{T0}, s{ROT}, 7
s_lshl2_add_u32 s{XS}, s{RB}, s{WL}
s_lshl_b32 s{XS}, s{XS}, 15
s_lshl_b32 s{T1}, s{T0}, 7
s_add_u32 s{T1}, s{T1}, s{XS}
s_lshl_b32 s67, s{WL}, 12
s_mov_b32 m0, s67
s_mov_b32 s{X+2}, {2048*1024}
s_mov_b32 s{X+3}, 0x20000
v_xor_b32 v3, 64, v2
v_add_u32 v3, {8192-1024}, v3
s_waitcnt lgkmcnt(0)
buffer_load_dwordx4 v2, s[{X}:{X+3}], s{T1} offen lds
v_add_u32 v4, {2*(8192-1024)}, v2
v_add_u32 v5, {2*(8192-1024)}, v3
buffer_load_dwordx4 v3, s[{X}:{X+3}], s{T1} offen offset:1024 lds
v_and_b32 v23, 1, v22
v_lshlrev_b32 v24, 1, v23
v_xor_b32 v24, v21, v24
v_mul_u32_u24 v25, 3072, v20
buffer_load_dwordx4 v4, s[{X}:{X+3}], s{T1} offen offset:2048 lds
v_lshl_add_u32 v6, v24, 4, v25
s_and_b32 s{WSB}, s2, 2
s_lshl1_add_u32 s{WSB}, s{WSB}, s3
s_lshl_b32 s{WSB}, s{WSB}, 7
s_mul_i32 s66, s{WL}, {16*3072}
buffer_load_dwordx4 v5, s[{X}:{X+3}], s{T1} offen offset:3072 lds
s_add_u32 s66, s66, s{WSB}
s_mul_i32 s{T2}, s{T0}, {64*3072}
s_add_u32 s{T2}, s{T2}, s66
s_mov_b32 s{W+2}, {512*3072}
s_mov_b32 s{W+3}, s{X+3}
s_add_u32 m0, s67, 16384
v_xor_b32 v7, 64, v6
buffer_load_dwordx4 v6, s[{W}:{W+3}], s{T2} offen offset:2048 lds
v_add_u32 v7, {8*3072-1024}, v7
v_add_u32 v10, 1024, v6
buffer_load_dwordx4 v7, s[{W}:{W+3}], s{T2} offen offset:3072 lds
v_add_u32 v11, 1024, v7
buffer_load_dwordx4 v10, s[{W}:{W+3}], s{T2} offen lds
buffer_load_dwordx4 v11, s[{W}:{W+3}], s{T2} offen offset:1024 lds
""")
for _ in range(8): vm.issue("c0")
def chunk_setup(c):
    slot = SL[c % 4]
    a(f"s_add_u32 s{T0}, s{ROT}, {c}")
    a(f"s_and_b32 s{T0}, s{T0}, 7")
    a(f"s_lshl_b32 s{T1}, s{T0}, 7")
    a(f"s_add_u32 m0, s67, {slot}")
    a(f"s_add_u32 s{T1}, s{T1}, s{XS}")
def issue_chunk(c, setup=True):
    slot = SL[c % 4]
    if setup: chunk_setup(c)
    for q in range(4):
        dma(2 + q, X, T1, q * 1024, f"c{c}", vm)
        if q == 0: a(f"s_mul_i32 s{T2}, s{T0}, {64*3072}")
        if q == 1: a(f"s_add_u32 s{T2}, s{T2}, s66")
    a(f"s_add_u32 m0, s67, {slot+16384}")
    a("s_nop 0")
    dma(10, W, T2, 0, f"c{c}", vm)
    dma(11, W, T2, 1024, f"c{c}", vm)
    dma(6, W, T2, 2048, f"c{c}", vm)
    dma(7, W, T2, 3072, f"c{c}", vm)
def issue_wq(h):
    for i in range(4):
        a(f"s_add_u32 s{T0}, s68, {i}")
        a(f"s_and_b32 s{T0}, s{T0}, 3")
        a(f"s_add_u32 s{T2}, s{T0}, s{ROT}")
        if h: a(f"s_add_u32 s{T2}, s{T2}, 4")
        a(f"s_and_b32 s{T2}, s{T2}, 7")
        a(f"s_mul_i32 s{T2}, s{T2}, {64*3072}")
        a(f"s_lshl_b32 s{T0}, s{T0}, 13")
        a(f"s_add_u32 s{T0}, s{T0}, s69")
        a(f"s_add_u32 m0, s{T0}, {WQ+h*32768}")
        a(f"s_add_u32 s{T2}, s{T2}, s66")
        for q in range(2):
            dma(26 + q, W, T2, q * 1024, f"q{h}", vm)
sty()
a(COMMON)
a(f"""
; Wq piece offsets v26,v27
v_lshlrev_b32 v24, 2, v23
v_xor_b32 v24, v21, v24
v_lshl_add_u32 v26, v24, 4, v25
v_add_u32 v27, {8*3072-1024}, v26
v_lshlrev_b32 v56, 10, v20
v_lshl_add_u32 v56, v24, 4, v56
v_add_u32 v57, {8192-1024}, v56
v_add_u32 v58, {2*(8192-1024)}, v56
v_add_u32 v59, {3*(8192-1024)}, v56
s_lshr_b32 s68, s{CBK}, 1
s_lshl_b32 s69, s{WL}, 11
v_lshrrev_b32 v8, 5, v1
v_and_b32 v24, 3, v1
v_bfe_u32 v25, v1, 2, 2
v_lshl_add_u32 v60, v8, 2, v25
v_lshlrev_b32 v60, 7, v60
v_lshl_add_u32 v60, v23, 5, v60
v_lshl_add_u32 v60, v24, 3, v60
v_bfe_u32 v25, v1, 3, 1
s_and_b32 s{T0}, s{WL}, 1
v_xor_b32 v25, s{T0}, v25
v_lshl_add_u32 v60, v25, 6, v60
v_lshlrev_b32 v19, 4, v1
v_mov_b32 v30, {MISC}
v_mov_b32 v31, 1
; atomic voffset v9 : g*256 + pos(d)*4
v_lshlrev_b32 v9, {RSH+2}, v22
v_lshl_add_u32 v9, v24, 2, v9
v_bfe_u32 v25, v1, 2, 1
v_lshl_add_u32 v9, v25, 5, v9
v_bfe_u32 v25, v1, 3, 1
v_lshl_add_u32 v9, v25, 4, v9
""")
T128 = opts.get("tm") == "128"
T128A = f"s_and_b32 s{T1}, s69, 0x1000\ns_add_u32 s{T1}, s{T1}, {KVP}\ns_and_b32 s{T0}, s{WL}, 1\ns_lshl_b32 s{T0}, s{T0}, 2"
T128B = f"v_and_b32 v25, 7, v1\nv_xor_b32 v25, s{T0}, v25"
T128C = f"""s_add_u32 s{T1}, s69, {KVP}
v_lshrrev_b32 v29, 3, v1
v_lshl_add_u32 v14, v29, 7, s{T1}
v_and_b32 v25, 7, v1
v_lshlrev_b32 v15, 10, v29
v_lshl_add_u32 v15, v25, 4, v15
v_xor_b32 v25, v25, v29
v_lshl_add_u32 v14, v25, 4, v14"""
T64C = f"""v_lshrrev_b32 v29, 2, v1
v_lshl_add_u32 v14, v29, 6, s{T1}
v_bfe_u32 v25, v1, 3, 2
v_xor_b32 v25, v25, v24
v_lshl_add_u32 v14, v25, 4, v14
v_lshlrev_b32 v15, 10, v29
v_lshl_add_u32 v15, v24, 4, v15"""
LATEV = f"""; partial read addresses v20,v21 ; out transposition v12 (write), v13 (write2), v14 (read), v15 (global)
s_add_u32 s{T1}, s69, {KVP}
v_add_u32 v20, s{T1}, v19
v_lshl_add_u32 v21, v1, 2, s{T1}
v_and_b32 v28, 31, v1
{T128A if T128 else ""}
v_lshl_add_u32 v12, v28, {7 if T128 else 6}, s{T1}
{T128B if T128 else "v_bfe_u32 v25, v1, 1, 2"}
{"v_lshl_add_u32 v12, v8, 3, v12" if "nof64" not in opts else "v_xor_b32 v25, v25, v8"}
v_lshl_add_u32 v12, v25, 4, v12
v_xor_b32 v13, 32, v12
v_xor_b32 v16, 16, v12
v_xor_b32 v18, 48, v12
{T128C if T128 else T64C}
v_lshrrev_b32 v29, 2, v1
; kv fetch voffset v22, frag write v23 ; g voffset v28
v_lshlrev_b32 v22, {RSH}, v29
v_lshl_add_u32 v22, v24, 4, v22
s_lshl_b32 s{T1}, s{WL}, 10
s_add_u32 s{WSB}, s{T1}, {KVF}
s_add_u32 s{T1}, s{T1}, {(MISC + 512) if "km" in opts else KVF}
v_lshl_add_u32 v23, v1, 3, s{T1}
v_lshlrev_b32 v28, 2, v28
; P3: o images v24 (own), v25 (partner) ; exchange v29 (write), v17 (read)
s_lshl_b32 s{T1}, s{WL}, {13 if "nosm" not in opts else 15}
v_add_u32 v24, s{T1}, v19
v_xor_b32 v25, {"0x2000" if "nosm" not in opts else "0x8000"}, v24
s_add_u32 s{T1}, s67, {XCH}
v_lshl_add_u32 v29, v1, {3 if "nox64" not in opts else 4}, s{T1}
v_xor_b32 v17, 0x2000, v29
"""
LATE = int(opts.get("late", 1))
if LATE < 0: a(LATEV)
a(f"""
s_cmp_ge_u32 s{WL}, 2
s_waitcnt lgkmcnt(0)
s_cselect_b32 s{WO}, s14, s8
s_cselect_b32 s{WO+1}, s15, s9
s_mov_b32 s{WO+2}, {512*1024}
s_mov_b32 s{WO+3}, 0x20000
; wo col offset s14 ; staging s15 ; kv acc s12 ; kv counter s13 ; gate row s6
s_lshl_b32 s14, s{CBK}, 7
s_lshl_b32 s15, s{WL}, 14
s_add_u32 s15, s15, {STG}
s_lshl_b32 s{WOS}, s{WL}, 13
v_add_u32 v46, s{WOS}, v60
v_xor_b32 v47, 0x2000, v46
v_add_u32 v60, s15, v60
v_xor_b32 v61, 0x4000, v60
s_lshr_b32 s{T1}, s{WL}, 1
s_lshl_b32 s{T1}, s{T1}, 2
s_add_u32 s{T1}, s{T1}, {MISC+16}
v_mov_b32 v62, s{T1}
s_lshl_b32 s{T0}, s{CB}, 2
s_add_u32 s{T0}, s{T0}, s{WL}
s_mul_i32 s12, s{T0}, {KVSTR}
s_add_u32 s12, s12, {KVACC}
s_and_b32 s3, s{RB}, {KA-1}
s_mul_i32 s3, s3, {KAS}
s_add_u32 s3, s3, s12
s_lshl_b32 s13, s{T0}, 10
s_add_u32 s13, s13, {KVCNT}
s_and_b32 s{T1}, s{RB}, {KR-1}
s_mul_i32 s{T1}, s{T1}, {RST}
s_add_u32 s13, s13, s{T1}
s_lshl_b32 s6, s{CB}, 11
s_add_u32 s6, s6, s{XS}
s_lshr_b32 s7, s6, 8
s_add_u32 s7, s7, {GBUF}
""")
LATES = f"""; P3: g s8 ; o counter s9 ; out s10,s11
s_lshl_b32 s{T1}, s{RT}, 1
s_lshr_b32 s{T0}, s{WL}, 1
s_add_u32 s{T1}, s{T1}, s{T0}
s_lshl_b32 s8, s{T1}, 7
s_add_u32 s8, s8, {GBUF}
s_lshl_b32 s9, s{T1}, 10
s_add_u32 s9, s9, {OCNT}
s_and_b32 s{T0}, s{CBK}, {OR-1}
s_mul_i32 s{T0}, s{T0}, {RST}
s_add_u32 s9, s9, s{T0}
s_lshl_b32 s10, s{T1}, 15
s_lshl_b32 s{T0}, s{CBK}, 7
s_add_u32 s10, s10, s{T0}
s_and_b32 s{T0}, s{WL}, 1
s_lshl_b32 s{T0}, s{T0}, {14 if T128 else 6}
s_add_u32 s10, s10, s{T0}
s_add_u32 s11, s10, {8192 if T128 else 16384}
"""
if LATE < 0: a(LATES)
a(f"""
v_mov_b32 v44, 0
v_mov_b32 v45, 0
""")
srd(a, WS, 22, WS_BYTES)
srd(a, OUT, 18, 2048 * 1024)
issue_chunk(1)
a("global_load_dwordx4 v[40:43], v19, s[16:17]")
vm.issue("gw")
for i in range(8):
    vm.wait(f"c{i}")
    a("s_barrier")
    if i in (0, 3, 7): sty()
    if i == 6: a(f"s_load_dword s{T4}, s[20:21], 0")
    if i == 7:
        a(f"""buffer_load_dwordx4 v[48:51], v19, s[{X}:{X+3}], s6 offen
buffer_load_dwordx4 v[52:55], v19, s[{X}:{X+3}], s6 offen offset:1024""")
        vm.issue("gate"); vm.issue("gate")
    if i + 2 < 8:
        issue_chunk(i + 2)
    else:
        issue_wq(i - 6)
    if i == LATE:
        a(LATEV); a(LATES)
WR = 128
def wreg(sg, hl, c): return WR + ((sg * 4 + hl) * 2 + c) * 4
def issue_wo(sg, part=(0, 1)):
    a(f"s_add_u32 s{T2}, s{RW}, {2*sg}")
    a(f"s_and_b32 s{T2}, s{T2}, 7")
    a(f"s_lshl_b32 s{T2}, s{T2}, 16")
    for p in part:
        if opts.get("mode") in ("5", "7") and sg >= 2:
            a(f"s_add_u32 m0, s{WOS}, {(sg - 2) * 32768 + p * 4096}")
        else:
            a(f"s_add_u32 m0, s15, {(sg % 2) * 8192 + p * 4096}")
        if p == part[0]: a(f"s_add_u32 s{T2}, s{T2}, s14")
        if p == 1: a(f"s_add_u32 s{T2}, s{T2}, 32768")
        for q in range(4):
            dma(56 + q, WO, T2, q * 1024, f"wo{sg}{p}", vm)
def wo_tr(sg, hls=range(4)):
    for hl in hls:
        for c in range(2):
            r = wreg(sg, hl, c)
            off = (sg % 2) * 8192 + hl * 2048
            b_ = 60
            if opts.get("mode") in ("5", "7") and sg >= 2:
                off = (sg - 2) * 32768 + hl * 2048; b_ = 46
            tr(r, b_ + c, off); tr(r + 2, b_ + c, off + 1024)
pc = [0]
def pair_add():
    lds_add(62, 31, 0); pc[0] += 2
def pair_wait(label):
    spin(label, f"ds_read_b32 v63, v62\ns_waitcnt lgkmcnt(0)\nv_cmp_gt_u32 vcc, {pc[0]}, v63", T3, mult=8)
def cnt_wait(label, off):
    spin(label, f"ds_read_b32 v63, v30 offset:{off}\ns_waitcnt lgkmcnt(0)\nv_cmp_gt_u32 vcc, 4, v63", T3, sleep=1, mult=8)
M5 = opts.get("mode") in ("5", "7")
QS = "qs" in opts or M5
if QS:
    vm.wait("q0")
    lds_add(30, 31, 0)
cnt_wait("Lad", 12)
E0 = opts.get("e0", "0")
if E0 == "0": issue_wo(0, part=(0,))
a(f"""
s_cmp_ge_u32 s{T4}, 64
s_cbranch_scc0 Lzc
Lzc_done:
""")
rare.append(f"""Lzc:
s_mov_b32 s{T3}, 0
Lzc_top:
s_load_dword s{T4}, s[20:21], 0 glc
s_waitcnt lgkmcnt(0)
s_cmp_ge_u32 s{T4}, 64
s_cbranch_scc1 Lzc_done
s_sleep 4
s_add_u32 s{T3}, s{T3}, 1
s_cmp_lt_u32 s{T3}, {SPIN}
s_cbranch_scc1 Lzc_top
s_branch Lzc_done""")
sty()
vm.wait("gate")
for k in range(4):
    a(f"v_dot2c_f32_bf16 v44, v{48+k}, v{40+k}")
    a(f"v_dot2c_f32_bf16 v45, v{52+k}, v{40+k}")
a(f"""
s_nop 2
v_permlane32_swap_b32 v44, v45
s_nop 1
v_add_f32 v44, v44, v45
s_nop 1
v_add_f32_dpp v44, v44, v44 row_ror:8 row_mask:0xf bank_mask:0xf
s_nop 1
v_add_f32_dpp v44, v44, v44 row_ror:4 row_mask:0xf bank_mask:0xf
s_nop 1
v_add_f32_dpp v44, v44, v44 row_ror:2 row_mask:0xf bank_mask:0xf
s_nop 1
v_add_f32_dpp v44, v44, v44 row_ror:1 row_mask:0xf bank_mask:0xf
v_mov_b32 v45, v44
s_nop 1
v_permlane16_swap_b32 v44, v45
s_nop 1
v_add_f32 v44, v44, v45
{"" if "nogr" in opts else "v_cvt_pk_bf16_f32 v44, v44, v44" + chr(10) + "v_and_b32 v44, 0xffff0000, v44"}
v_mul_f32 v44, 0xbfb8aa3b, v44
v_exp_f32 v44, v44
v_lshlrev_b32 v45, 2, v8
v_add_f32 v44, 1.0, v44
v_rcp_f32 v44, v44
{"" if "nogr" in opts else "s_nop 0" + chr(10) + "v_cvt_pk_bf16_f32 v44, v44, v44" + chr(10) + "v_and_b32 v44, 0xffff0000, v44"}
""")
if not QS:
    vm.wait("q1")
    lds_add(30, 31, 0)
a("s_setprio 2")
if PB:
    a(f"v_lshlrev_b32 v37, 2, v1\ns_and_b32 s{T0}, s{RB}, {PB-1}\ns_lshl_b32 s{T0}, s{T0}, 9\ns_add_u32 s{T0}, s{T0}, s12")
    spin("Lkp", "ds_read_b32 v36, v21 offset:1024\nds_read_b32 v32, v21\nds_read_b32 v33, v21 offset:256\ns_waitcnt lgkmcnt(0)\nv_cmp_eq_u32 vcc, 0, v36", T3, sleep=int(opts.get("psl", 1)), mult=8)
    for r in range(2):
        a(f"buffer_atomic_pk_add_bf16 v{32+r}, v37, s[{WS}:{WS+3}], s{T0} offen offset:{r*256}")
        vm.issue("atom")
else:
    spin("Lkp", "ds_read_b32 v36, v21 offset:1024\nds_read_b128 v[32:35], v20\ns_waitcnt lgkmcnt(0)\nv_cmp_eq_u32 vcc, 0, v36", T3, sleep=int(opts.get("psl", 1)), mult=8)
    for r in range(4):
        a(f"buffer_atomic_add_f32 v{32+r}, v9, s[{WS}:{WS+3}], s3 offen offset:{r*RS}")
        vm.issue("atom")
a(f"""
s_mov_b64 exec, 0xffff
s_add_u32 s3, s3, {ZO}
buffer_atomic_add_f32 v36, v9, s[{WS}:{WS+3}], s3 offen
s_mov_b32 exec_lo, 1
s_mov_b32 exec_hi, 1
buffer_store_dword v44, v45, s[{WS}:{WS+3}], s7 offen sc1
s_mov_b64 exec, -1
s_mov_b32 s{T4}, 1
s_mov_b32 s{T5}, 16
v_lshlrev_b32 v38, 3, v1
""")
vm.issue("atom"); vm.issue("gst")
sty()
if QS:
    vm.wait("q1")
    lds_add(30, 31, 24)
MODE = opts.get("mode", "4")
if E0 == "0": issue_wo(0, part=(1,))
if E0 == "1": issue_wo(0, part=(0,))
if E0 == "2":
    a("s_sleep 2"); issue_wo(0)
if MODE in ("1", "3"): issue_wo(1, part=(0,))
vm.wait("atom")
for r in range(1, KR):
    a(f"s_xor_b32 s{T0}, s13, {r*RST}\ns_atomic_add s{ONE}, s[22:23], s{T0}")
a(f"s_atomic_add s{T4}, s[22:23], s13 glc")
sty()
fst = sty.n + 1
def fetch():
    if "km" in opts:
        a(f"""s_mov_b32 m0, s{WSB}
s_mov_b32 s{T5}, -1
buffer_load_dwordx4 v19, s[{WS}:{WS+3}], s12 offen sc1 lds
s_mov_b64 exec, 0xf
buffer_load_dwordx4 v[40:43], v22, s[{WS}:{WS+3}], s3 offen sc1
s_waitcnt vmcnt(0)
v_cvt_pk_bf16_f32 v34, v40, v41
v_cvt_pk_bf16_f32 v35, v42, v43
ds_write_b64 v23, v[34:35]""")
    elif PB:
        a(f"buffer_load_dwordx2 v[32:33], v38, s[{WS}:{WS+3}], s12 offen sc1")
        for r in range(1, PB):
            a(f"buffer_load_dwordx2 v[{64+2*r}:{65+2*r}], v38, s[{WS}:{WS+3}], s12 offen offset:{512*r} sc1")
        a(f"""s_mov_b64 exec, 0xf
buffer_load_dwordx4 v[40:43], v22, s[{WS}:{WS+3}], s3 offen sc1
s_mov_b64 exec, -1
s_mov_b32 s{T5}, -1
s_waitcnt vmcnt(0)""")
        if PB > 1:
            for q in range(2):
                a(f"v_lshlrev_b32 v48, 16, v{32+q}\nv_and_b32 v49, 0xffff0000, v{32+q}")
                for r in range(1, PB):
                    a(f"v_lshlrev_b32 v50, 16, v{64+2*r+q}\nv_and_b32 v51, 0xffff0000, v{64+2*r+q}\nv_add_f32 v48, v48, v50\nv_add_f32 v49, v49, v51")
                a(f"v_cvt_pk_bf16_f32 v{32+q}, v48, v49")
        a(f"""ds_write_b64 v23, v[32:33]
v_cvt_pk_bf16_f32 v34, v40, v41
v_cvt_pk_bf16_f32 v35, v42, v43
s_mov_b64 exec, 0xf
ds_write_b64 v23, v[34:35] offset:512""")
    else:
        a(f"""buffer_load_dwordx4 v[32:35], v22, s[{WS}:{WS+3}], s12 offen sc1
s_mov_b64 exec, 0xf
buffer_load_dwordx4 v[36:39], v22, s[{WS}:{WS+3}], s3 offen sc1
s_mov_b64 exec, -1
s_mov_b32 s{T5}, -1
s_waitcnt vmcnt(0)
v_cvt_pk_bf16_f32 v32, v32, v33
v_cvt_pk_bf16_f32 v33, v34, v35
v_cvt_pk_bf16_f32 v34, v36, v37
v_cvt_pk_bf16_f32 v35, v38, v39
ds_write_b64 v23, v[32:33]
s_mov_b64 exec, 0xf
ds_write_b64 v23, v[34:35] offset:512""")
    lds_add(30, 31, 4)
    a("s_setprio 0")
    if STAMPS: a(f"{TS} s[{70+2*fst}:{71+2*fst}]")
POLL = f"s_load_dword s{T4}, s[22:23], s13 glc"
def maybe_fetch(k):
    a(f"s_cmp_eq_u32 s{T4}, s{T5}\ns_cbranch_scc0 Lmf{k}")
    fetch()
    a(f"Lmf{k}:")
def must_fetch():
    a(f"s_cmp_eq_u32 s{T5}, -1\ns_cbranch_scc1 Lkv_have\ns_cmp_eq_u32 s{T4}, 16\ns_cbranch_scc1 Lpollkv_done")
    if "kd" in opts:
        a("s_waitcnt lgkmcnt(0)")
        pspin("Lpollkv", 13, int(opts["kd"]), int(opts.get("kg", 5)), T3)
    else:
        sspin("Lpollkv", POLL + f"\ns_waitcnt lgkmcnt(0)\ns_cmp_eq_u32 s{T4}, 16", T3, sleep=int(opts.get("ksleep", 1)))
    fetch()
    a("Lkv_have:")
if E0 == "1": issue_wo(0, part=(1,))
S1 = opts.get("s1", "f")
if MODE == "4" and S1 != "f":
    if S1 == "h": issue_wo(1, part=(0,))
elif MODE != "7": issue_wo(1, part=((1,) if MODE in ("1", "3") else (0, 1)))
if MODE == "7":
    a(f"s_waitcnt lgkmcnt(0)\ns_add_u32 s{T4}, s{T4}, 1")
    sty(); sty.n += 1
    must_fetch()
    issue_wo(1)
    cnt_wait("Ls1", 8)
    issue_wo(2); issue_wo(3)
    vm.wait("wo11")
    pair_add(); pair_wait("Lps0")
    wo_tr(0); wo_tr(1)
    vm.wait("wo31")
    pair_add(); pair_wait("Lps2")
    wo_tr(2); wo_tr(3)
elif MODE in ("0", "1"):
    a(f"s_waitcnt lgkmcnt(0)\ns_add_u32 s{T4}, s{T4}, 1")
    maybe_fetch(0)
    vm.wait("wo11"); pair_add(); pair_wait("Lps0")
    a(POLL)
    wo_tr(0); wo_tr(1)
    a("s_waitcnt lgkmcnt(0)")
    pair_add()
    sty(); sty.n += 1
    must_fetch()
    pair_wait("Lps1")
    issue_wo(2)
    cnt_wait("Lxo", 8)
    issue_wo(3)
    vm.wait("wo31"); pair_add(); pair_wait("Lps2")
    wo_tr(2); wo_tr(3)
elif MODE == "5":
    cnt_wait("Ls0", 28)
    a(f"s_add_u32 s{T4}, s{T4}, 1")
    maybe_fetch(0)
    a(f"s_cmp_eq_u32 s{T5}, -1\ns_cbranch_scc1 Lnp5\n" + POLL + "\nLnp5:")
    issue_wo(2)
    a("s_waitcnt lgkmcnt(0)")
    sty(); sty.n += 1
    must_fetch()
    pair_add()
    if opts.get("s3") == "1":
        pair_wait("Lps0"); wo_tr(0)
    cnt_wait("Ls1", 32 if opts.get("s3") != "2" else 8)
    issue_wo(3)
    if opts.get("s3") != "1":
        pair_wait("Lps0"); wo_tr(0)
    wo_tr(1)
    vm.wait("wo31")
    pair_add(); pair_wait("Lps2")
    wo_tr(2); wo_tr(3)
elif MODE == "4":
    if "pa" in opts:
        vm.wait("wo11"); pair_add()
    a(f"s_waitcnt lgkmcnt(0)\ns_add_u32 s{T4}, s{T4}, 1")
    sty(); sty.n += 1
    must_fetch()
    if S1 != "f":
        issue_wo(1, part=((1,) if S1 == "h" else (0, 1)))
        vm.wait("wo11")
    if "pa" not in opts: pair_add()
    pair_wait("Lps0")
    if "fs" in opts:
        wo_tr(0)
        a("s_waitcnt lgkmcnt(0)")
        pair_add()
        wo_tr(1)
        pair_wait("Lps1")
        pair_add()
        issue_wo(2)
        pair_wait("Lps1b")
        issue_wo(3)
    else:
        wo_tr(0); wo_tr(1)
        a("s_waitcnt lgkmcnt(0)")
        pair_add(); pair_wait("Lps1")
        R2 = opts.get("r2", "0")
        if R2 == "0": cnt_wait("Lxo", 8)
        if R2 == "3":
            issue_wo(2, part=(0,)); cnt_wait("Lxo", 8); issue_wo(2, part=(1,))
        else:
            issue_wo(2)
        if R2 == "1": cnt_wait("Lxo", 8)
        issue_wo(3)
    if "nw" not in opts: vm.wait("wo31")
    if "nosm" in opts:
        pair_add(); pair_wait("Lps2")
        wo_tr(2); wo_tr(3)
else:
    vm.wait("wo01"); pair_add()
    a(f"s_waitcnt lgkmcnt(0)\ns_add_u32 s{T4}, s{T4}, 1")
    maybe_fetch(0)
    pair_wait("Lps0")
    a(POLL)
    wo_tr(0)
    vm.wait("wo11")
    a("s_waitcnt lgkmcnt(0)")
    pair_add()
    sty(); sty.n += 1
    must_fetch()
    pair_wait("Lps1")
    wo_tr(1)
    issue_wo(2)
    a("s_waitcnt lgkmcnt(0)")
    pair_add()
    cnt_wait("Lxo", 8)
    pair_wait("Lps2")
    issue_wo(3)
    vm.wait("wo31"); pair_add(); pair_wait("Lps3")
    wo_tr(2); wo_tr(3)
OV = ""
def o_poll(preg=36):
    a(f"s_bitcmp1_b32 s{WL}, 0\ns_cbranch_scc1 Lpollo_done")
    if "odel" in opts: a(f"s_sleep {opts['odel']}")
    if "od" in opts:
        pspin("Lpollo", 9, int(opts["od"]), int(opts.get("og", 4)), T3, preg)
    else:
        sspin("Lpollo", f"s_load_dword s{T4}, s[22:23], s9 glc\ns_waitcnt lgkmcnt(0)\ns_cmp_eq_u32 s{T4}, 16", T3, sleep=int(opts.get("osleep", 2)))
a("s_waitcnt lgkmcnt(0)")
if "yp" in opts: o_poll()
sty()
a("s_barrier")
if "nosm" not in opts and not M5:
    if "nw" in opts:
        vm.wait("wo31"); pair_add(); pair_wait("Lps2")
    wo_tr(2); wo_tr(3)
a(f"buffer_load_dword v2, v28, s[{WS}:{WS+3}], s8 offen sc1")
if "nosm" not in opts:
    a("v_add_u32 v10, 0x10000, v24\nv_add_u32 v11, 0x10000, v25\ns_waitcnt lgkmcnt(0)")
ACC = [32, 48]
OB = 64; NBUF = 16
lg = LG()
items = [(st_, k, c) for st_ in range(4) for k in range(8) for c in range(2)]
def rdO(n):
    st_, k, c = items[n]
    r = OB + 4 * (n % NBUF)
    if "nosm" not in opts:
        a(f"ds_read_b128 v[{r}:{r+3}], v{(24 if st_ < 2 else 10)+c} offset:{(st_&1)*32768 + k*1024}")
    else:
        a(f"ds_read_b128 v[{r}:{r+3}], v{24+c} offset:{st_*8192 + k*1024}")
    lg.issue(f"O{n}")
def mfO(n):
    st_, k, c = items[n]
    if n % 2 == 0: lg.wait(f"O{n+1}")
    mfma(ACC[1 if st_ < 2 else 0], wreg(2 * (st_ & 1) + (k >> 2), k & 3, c), OB + 4 * (n % NBUF), "0" if n in (0, 32) else None)
LAG = 4
done = 0
wq = list(range(4))
fin = ["s_waitcnt vmcnt(0)", "v_sub_f32 v4, 1.0, v2" + ("" if "nogr" in opts else "\nv_cvt_pk_bf16_f32 v4, v4, v4\nv_and_b32 v4, 0xffff0000, v4"), f"s_cmp_ge_u32 s{WL}, 2\ns_cselect_b64 vcc, -1, 0",
       "v_cndmask_b32 v6, v2, v4, vcc", "v_cndmask_b32 v4, v4, v2, vcc"]
for n in range(64):
    if n == 56 and "sl" in opts:
        a("s_barrier")
        rdO(n); rdO(n + 1)
    if n % 16 == 0:
        if n == 48: lg.wait("W")
        if n == 0 and OV == "4": a("s_waitcnt vmcnt(1)")
        a("s_barrier")
        if n == 0: sty()
        rdO(n); rdO(n + 1)
    if n % 16 < 14 and not ("sl" in opts and n in (54, 55)): rdO(n + 2)
    if n >= LAG:
        mfO(done); done += 1
        if "nox64" not in opts:
            wq = []
            if 36 <= done < 44:
                k = done - 36
                if k == 0: a("s_nop 1")
                a(f"ds_write_b64 v29, v[{48+2*k}:{49+2*k}] offset:{k*512}"); lg.issue("W")
            if 46 <= done < 54:
                k = done - 46
                a(f"ds_read_b64 v[{48+2*k}:{49+2*k}], v17 offset:{k*512}"); lg.issue("P")
        else:
            if done in (37, 38, 40, 42):
                k = wq.pop(0)
                a(f"ds_write_b128 v29, v[{48+4*k}:{51+4*k}] offset:{k*1024}"); lg.issue("W")
            if done >= 50 and done < 54:
                k = done - 50
                a(f"ds_read_b128 v[{48+4*k}:{51+4*k}], v17 offset:{k*1024}"); lg.issue("P")
        if done >= 54 and fin: a(fin.pop(0))
assert not wq and not fin
vq = [f"v_mul_f32 v{48+r}, v{48+r}, v4" for r in range(16)]
while done < 64:
    mfO(done); done += 1
    for _ in range(4):
        a(vq.pop(0))
sty()
a("s_nop 7")
if "nof64" not in opts:
    for p in range(4):
        for r in (4 * p, 4 * p + 2):
            a(f"v_pk_fma_f32 v[{32+r}:{33+r}], v[{32+r}:{33+r}], v[6:7], v[{48+r}:{49+r}] op_sel_hi:[1,0,1]")
        a(f"v_cvt_pk_bf16_f32 v{32+4*p}, v{32+4*p}, v{33+4*p}")
        a(f"v_cvt_pk_bf16_f32 v{33+4*p}, v{34+4*p}, v{35+4*p}")
        a(f"ds_write_b64 v{[12, 16, 13, 18][p]}, v[{32+4*p}:{33+4*p}]")
else:
    for r in range(0, 16, 2):
        a(f"v_pk_fma_f32 v[{32+r}:{33+r}], v[{32+r}:{33+r}], v[6:7], v[{48+r}:{49+r}] op_sel_hi:[1,0,1]")
    for r in range(8):
        a(f"v_cvt_pk_bf16_f32 v{32+r}, v{32+2*r}, v{33+2*r}")
if "nof64" in opts:
    a("""v_permlane32_swap_b32 v32, v34
v_permlane32_swap_b32 v33, v35
v_permlane32_swap_b32 v36, v38
v_permlane32_swap_b32 v37, v39
ds_write_b128 v12, v[32:35]
ds_write_b128 v13, v[36:39]""")
if T128: a("s_waitcnt lgkmcnt(0)\ns_barrier")
a(f"""
ds_read_b128 v[64:67], v14
ds_read_b128 v[68:71], v14 offset:1024
s_waitcnt lgkmcnt(1)
buffer_store_dwordx4 v[64:67], v15, s[{OUT}:{OUT+3}], s10 offen sc1
s_waitcnt lgkmcnt(0)
buffer_store_dwordx4 v[68:71], v15, s[{OUT}:{OUT+3}], s11 offen sc1
""")
if STAMPS:
    sty()
    a("s_waitcnt vmcnt(0)")
    while sty.n < STAMPS: sty()
    a("s_branch Lstamps")
else:
    a("s_endpgm")

vm = VM()
stx = Stamper(1)
a("Lx:")
PBV5 = f"s_lshl_b32 s{T1}, s{WL}, 11\ns_add_u32 s{T1}, s{T1}, {KVP}\nv_lshl_add_u32 v5, v20, 5, s{T1}\nv_lshl_add_u32 v5, v25, 4, v5\nv_lshl_add_u32 v5, v24, 3, v5"
a(COMMON)
a(f"""
s_getpc_b64 s[66:67]
Lpc0:
s_sub_u32 s66, s66, Lpc0-{NAME}_kernel
s_subb_u32 s67, s67, 0
s_and_b32 s{T0}, s{CBK}, 3
s_lshl_b32 s{T0}, s{T0}, 2
s_add_u32 s{T0}, s{T0}, s{WL}
s_lshl_b32 s{T0}, s{T0}, 10
v_lshl_add_u32 v140, v1, 7, s{T0}
v_min_u32 v140, Lcode_end-{NAME}_kernel-4, v140
s_mov_b64 exec, 0xff
global_load_dword v252, v140, s[66:67]
s_mov_b64 exec, -1
v_lshlrev_b32 v14, 4, v1
v_mov_b32 v240, 0
v_mov_b32 v241, 0
v_mov_b32 v242, 0
v_mov_b32 v243, 0
v_mov_b32 v12, {MISC}
v_mov_b32 v13, 1
s_lshl_b32 s{T1}, s{WL}, 11
s_add_u32 s{T1}, s{T1}, {KVP}
v_add_u32 v5, s{T1}, v14
v_lshl_add_u32 v15, v1, 2, s{T1}
ds_write_b128 v12, v[240:243]
ds_write_b32 v15, v240 offset:1024
s_lshl_b32 s{T1}, s{WL}, 10
v_add_u32 v20, s{T1}, v12
ds_write_b128 v20, v[240:243] offset:576
ds_write_b128 v20, v[240:243] offset:592
ds_write_b128 v12, v[240:243] offset:16
ds_write_b128 v12, v[240:243] offset:32
v_and_b32 v23, 3, v1
s_mov_b32 s{WS+2}, {WS_BYTES}
s_mov_b32 s{WS+3}, 0x20000
s_cmp_eq_u32 s{RB}, s{CB}
s_waitcnt lgkmcnt(0)
s_mov_b32 s{WS}, s22
s_mov_b32 s{WS+1}, s23
s_cbranch_scc0 Lnozero
s_lshl_b32 s{T0}, s{CB}, 2
s_add_u32 s{T0}, s{T0}, s{WL}
s_mul_i32 s{T1}, s{T0}, {KVSTR}
s_add_u32 s{T1}, s{T1}, {KVACC}
""")
for r in range(1, KA):
    a(f"""s_add_u32 s{T2}, s{T1}, {r*KAS}
buffer_store_dwordx4 v[240:243], v14, s[{WS}:{WS+3}], s{T2} offen sc1
s_mov_b64 exec, 0xf
buffer_store_dwordx4 v[240:243], v14, s[{WS}:{WS+3}], s{T2} offen offset:1024 sc1
s_mov_b64 exec, -1""")
a(f"""
buffer_store_dwordx4 v[240:243], v14, s[{WS}:{WS+3}], s{T1} offen sc1
{f"buffer_store_dwordx4 v[240:243], v14, s[{WS}:{WS+3}], s{T1} offen offset:1024 sc1" if (RSH == 7 or PB == 4) else ""}
s_add_u32 s{T1}, s{T1}, {ZO}
s_lshl_b32 s{T2}, s{T0}, 10
s_add_u32 s{T3}, s{T2}, {OCNT}
s_add_u32 s{T2}, s{T2}, {KVCNT}
buffer_store_dwordx4 v[240:243], v14, s[{WS}:{WS+3}], s{T2} offen sc1
buffer_store_dwordx4 v[240:243], v14, s[{WS}:{WS+3}], s{T3} offen sc1
s_mov_b64 exec, {"0xf" if "z64" in opts else "0xff"}
buffer_store_dwordx4 v[240:243], v14, s[{WS}:{WS+3}], s{T1} offen sc1
""")
if "nogz" not in opts:
    a(f"""s_lshl_b32 s{T2}, s{T0}, 7
s_add_u32 s{T2}, s{T2}, {GBUF}
buffer_store_dwordx4 v[240:243], v14, s[{WS}:{WS+3}], s{T2} offen sc1""")
a(f"""s_mov_b64 exec, -1
Lnozero:
s_mov_b32 s{SLG}, 0x{LOG2E:x}
s_mov_b32 s{SLG+1}, 0x{LOG2E:x}
s_mov_b32 s{SEP}, 0x{EPS:x}
s_mov_b32 s{SEP+1}, 0x{EPS:x}
v_and_b32 v20, 15, v1
v_lshrrev_b32 v21, 4, v1
v_lshrrev_b32 v22, 1, v20
v_xor_b32 v22, v21, v22
v_lshlrev_b32 v2, 7, v20
v_lshl_add_u32 v2, v22, 4, v2
v_xor_b32 v3, 64, v2
; W base v4
v_lshrrev_b32 v24, 5, v1
v_lshlrev_b32 v4, 12, v24
v_and_b32 v25, 1, v21
v_lshl_add_u32 v4, v25, 10, v4
v_lshrrev_b32 v26, 2, v20
v_lshl_add_u32 v4, v26, 7, v4
v_bfe_u32 v22, v1, 3, 2
v_xor_b32 v22, s{WL}, v22
v_lshl_add_u32 v4, v22, 5, v4
v_lshl_add_u32 v4, v23, 3, v4
v_add_u32 v4, 16384, v4
{PBV5 if PB else ""}
v_bfe_u32 v22, v1, 3, 1
v_lshl_add_u32 v10, v24, 3, v26
v_lshlrev_b32 v10, 7, v10
v_lshl_add_u32 v10, v25, 5, v10
v_lshl_add_u32 v10, v23, 3, v10
v_lshl_add_u32 v10, v22, 6, v10
v_xor_b32 v11, 64, v10
v_and_b32 v20, 31, v1
s_lshl_b32 s{T0}, s{WL}, 12
v_lshl_add_u32 v6, v20, 7, s{T0}
v_bfe_u32 v25, v1, 1, 3
v_xor_b32 v25, v24, v25
v_lshl_add_u32 v6, v25, 4, v6
v_xor_b32 v7, 32, v6
v_xor_b32 v8, 64, v6
v_xor_b32 v9, 96, v6
; o store s68 / counter s69 / o-load s66,s67 ; wo^T store T0 ; flag offset s24
s_lshl_b32 s{T1}, s{RB}, 2
s_add_u32 s{T1}, s{T1}, s{WL}
s_lshl_b32 s68, s{T1}, 16
s_lshl_b32 s{T3}, s{CB}, 12
s_add_u32 s68, s68, s{T3}
s_add_u32 s68, s68, {OBUF}
s_lshl_b32 s69, s{T1}, 10
s_add_u32 s69, s69, {OCNT}
s_lshr_b32 s{T2}, s{WL}, 1
s_lshl_b32 s66, s{RT}, 1
s_add_u32 s66, s66, s{T2}
s_lshl_b32 s66, s66, 16
s_lshl_b32 s{T2}, s{T2}, 15
s_add_u32 s66, s66, s{T2}
s_add_u32 s66, s66, {OBUF}
s_lshl_b32 s67, s{WL}, {13 if "nosm" not in opts else 15}
s_lshl_b32 s9, s{RT}, 1
s_lshr_b32 s{T0}, s{WL}, 1
s_add_u32 s9, s9, s{T0}
s_lshl_b32 s9, s9, 10
s_add_u32 s9, s9, {OCNT}
s_and_b32 s{T0}, s{CBK}, {OR-1}
s_mul_i32 s{T0}, s{T0}, {RST}
s_add_u32 s9, s9, s{T0}
""")
RG, BF, AK, AV, XR = 16, 48, 64, 96, 128
FLI = int(opts.get("fli", 2))
stx()
lg = LG()
for i in range(8):
    so = (i & 1) * 32768
    a("s_barrier")
    if i in (0, 7): stx()
    for sidx in range(16):
        n = (sidx - LAGA) % 16
        ci = i if sidx >= LAGA else i - 1
        ks = n >> 3; rt = n & 7
        em = ci >= 0
        first = (ci == 0 and ks == 0)
        if em:
            tags = [f"X{ci}_{n}"] + ([f"B{ci}_{ks}0", f"B{ci}_{ks}1"] if rt == 0 else [])
            if sidx % 2 == 0 and rt != 7:
                tags.append(f"X{ci}_{n+1}")
            if sidx % 2 == 0 or rt == 0:
                lg.wait(*tags)
            mfma16(AK + 4 * rt, RG + 4 * (n % 8), BF + ks * 8, "1.0" if first else None)
        def rdB(k_, sec, u):
            tr(BF + k_ * 8 + sec * 4 + 2 * u, 4, so + k_ * 8192 + sec * 2048 + u * 512)
            lg.issue(f"B{i}_{k_}{sec}")
        if sidx < 2:
            rdB(0, sidx, 0); rdB(0, sidx, 1)
        elif 6 <= sidx < 10:
            rdB(1, (sidx - 6) >> 1, sidx & 1)
        elif sidx in (10, 11, 12, 13):
            t = sidx - 10
            xr = XR + (4 * i + t) * 4
            a(f"ds_read_b128 v[{xr}:{xr+3}], v{6+t} offset:{so}")
            lg.issue("XR")
        elif (i & 1) and i < 7 and sidx == 14:
            a("v_xor_b32 v2, 0x10000, v2\nv_xor_b32 v4, 0x10000, v4")
        elif i > 0 and (i & 1) == 0 and sidx in (2, 3):
            k = 6 + 2 * (sidx - 2)
            a(f"v_xor_b32 v{k}, 0x10000, v{k}\nv_xor_b32 v{k+1}, 0x10000, v{k+1}")
        elif i > 0 and (i & 1) == 0 and sidx == 4:
            a("v_xor_b32 v3, 0x10000, v3")
        elif i == 1 and sidx == 2:
            a(f"s_cmp_eq_u32 s{RB}, s{CB}\ns_cbranch_scc1 Lflag\nLflag_done:")
            rare.append(f"Lflag:\ns_waitcnt vmcnt(0)\ns_atomic_add s{ONE}, s[20:21], 0\ns_branch Lflag_done")
        elif i == 5 and sidx == 2:
            a("s_waitcnt vmcnt(0)")
        if em:
            mfma16(AV + 4 * rt, RG + 4 * (n % 8), BF + ks * 8 + 4, "0" if first else None)
        r = RG + 4 * (sidx % 8)
        a(f"ds_read_b128 v[{r}:{r+3}], v{2 + (sidx >> 3)} offset:{so + (sidx & 7) * 2048}")
        lg.issue(f"X{i}_{sidx}")
for n in range(16 - LAGA, 16):
    lg.wait(f"X7_{n}")
    mfma16(AK + 4 * (n & 7), RG + 4 * (n % 8), BF + 8)
lds_add(12, 13, 12)
for n in range(16 - LAGA, 16):
    mfma16(AV + 4 * (n & 7), RG + 4 * (n % 8), BF + 12)
stx()
for op in phi_ops(AK, 32, RG, pk=True):
    a(op)
a("ds_read_b32 v2, v12")
for r in range(60, 64):
    a(f"v_mov_b32 v{r}, 0x3f803f80")
for r in range(16):
    a(f"v_cvt_pk_bf16_f32 v{AV+r}, v{AV+2*r}, v{AV+2*r+1}")
    if r % 4 == 1:
        mfma16(56, 60, AK + (r // 4) * 4, "0" if r < 4 else None)
a("s_waitcnt lgkmcnt(0)")
for p in range(4):
    if PB: mfma16(52, AK + 4 * p, AV + 4 * p, "0" if p == 0 else None)
    else: mfma16(52, AV + 4 * p, AK + 4 * p, "0" if p == 0 else None)
if "km" in opts:
    a(f"""v_and_b32 v3, 15, v1
v_lshlrev_b32 v3, 5, v3
v_add_u32 v3, {KVF}, v3
v_add_u32 v4, 512, v3
s_mov_b32 exec_lo, 0xffff0000
s_mov_b32 exec_hi, 0xffff0000
v_mov_b32 v3, {MISC+512}
v_mov_b32 v4, {MISC+576}
s_mov_b64 exec, -1
v_cmp_ne_u32 vcc, 4, v2""")
else:
    a(f"v_and_b32 v3, 31, v1\nv_min_u32 v3, 16, v3\nv_lshlrev_b32 v3, 5, v3\nv_lshrrev_b32 v4, 5, v1\nv_lshl_add_u32 v3, v4, 4, v3\nv_add_u32 v3, {KVF}, v3\nv_cmp_ne_u32 vcc, 4, v2\ns_nop 0")
if PB: a("v_cvt_pk_bf16_f32 v52, v52, v53\nv_cvt_pk_bf16_f32 v53, v54, v55\nds_write_b64 v5, v[52:53]")
else: a("ds_write_b128 v5, v[52:55]")
a("ds_write_b32 v15, v56 offset:1024\ns_cbranch_vccz Lq0_done")
spin("Lq0", "ds_read_b32 v2, v12\ns_waitcnt lgkmcnt(0)\nv_cmp_ne_u32 vcc, 4, v2", T3, mult=8)
NB = 8
if QS:
    BM = opts.get("bm", "0")
    if BM == "0":
        seq = [(ct, s) for s in range(32) for ct in range(2)]
    else:
        seq = [(ct, s) for s in range(16) for ct in range(2)] + [(0, s) for s in range(16, 32)] + [(1, s) for s in range(16, 32)]
    lgq = LG()
    def qread(n):
        ct, s = seq[n]
        r = RG + (n % NB) * 4
        off = WQ + (s // 4) * 8192 + (s % 4) * 2048
        tr(r, 10 + ct, off); tr(r + 2, 10 + ct, off + 512)
        lgq.issue(f"q{n}"); lgq.issue(f"q{n}")
    PF = 6
    for n in range(PF):
        qread(n)
    stx()
    ph0 = phi_ops(64, 16, 96)[:16 + 10] if BM == "1" else []
    for n, (ct, s) in enumerate(seq):
        if n + PF == 28:
            a("ds_read_b32 v2, v12 offset:24"); lgq.issue("c")
        if n + PF == 32:
            lgq.wait("c")
            a("v_cmp_ne_u32 vcc, 4, v2\ns_cbranch_vccnz Lq1\nLq1_done:")
            rare.append(f"""Lq1:
    s_mov_b32 s{T3}, 0
    Lq1_top:
    ds_read_b32 v2, v12 offset:24
    s_waitcnt lgkmcnt(0)
    v_cmp_ne_u32 vcc, 4, v2
    s_cbranch_vccz Lq1_done
    s_add_u32 s{T3}, s{T3}, 1
    s_cmp_lt_u32 s{T3}, {SPIN*8}
    s_cbranch_scc1 Lq1_top
    s_branch Lq1_done""")
        if n + PF < 64:
            qread(n + PF)
        if n % 2 == 0: lgq.wait(f"q{n+1}")
        mfma(64 + 16 * ct, RG + (n % NB) * 4, XR + s * 4, "1.0" if s == 0 else None)
        if M5 and n == 30:
            lds_add(12, 13, 28); lgq.issue("sig")
        if M5 and n == 62:
            lds_add(12, 13, 32); lgq.issue("sig")
        if n >= 51:
            for op in ph0[:2]: a(op)
            ph0 = ph0[2:]
    assert not ph0
    stx()
    if BM == "0":
        a("s_nop 7\ns_nop 2")
        ph1 = phi_ops(64, 32, 96, pk=True)
        PQ = [64, 68, 72, 76]
    else:
        rest = phi_ops(64, 16, 96, pk=True)[8 + 10:]
        ph1 = rest + phi_ops(80, 16, 112, pk=True)
        PQ = [64, 68, 80, 84]
    for op in ph1[:-10]:
        a(op)
    a("ds_read_b32 v2, v12 offset:4")
    for op in ph1[-10:]:
        a(op)
    stx()
else:
    seq = [(ct, s) for ct in range(2) for s in range(32)]
    lgq = LG()
    def qread(n):
        ct, s = seq[n]
        r = RG + (n % NB) * 4
        off = WQ + (s // 4) * 8192 + (s % 4) * 2048
        tr(r, 10 + ct, off); tr(r + 2, 10 + ct, off + 512)
        lgq.issue(f"q{n}"); lgq.issue(f"q{n}")
    PF = 6
    for n in range(PF):
        qread(n)
    stx()
    ph0 = phi_ops(64, 16, 96)
    for n, (ct, s) in enumerate(seq):
        if n + PF < 64:
            qread(n + PF)
        if n % 2 == 0: lgq.wait(f"q{n+1}")
        mfma(64 + 16 * ct, RG + (n % NB) * 4, XR + s * 4, "1.0" if s == 0 else None)
        if n >= 35:
            k = (2 if n < 58 else 2) if n < 63 else len(ph0)
            for op in ph0[:k]:
                a(op)
            ph0 = ph0[k:]
    assert not ph0
    stx()
    ph1 = phi_ops(80, 16, 96, pk=True)
    for op in ph1[:-10]:
        a(op)
    a("ds_read_b32 v2, v12 offset:4")
    for op in ph1[-10:]:
        a(op)
    stx()
    PQ = [64, 68, 80, 84]
if "km" in opts: a("v_lshrrev_b32 v6, 5, v1\nv_lshl_add_u32 v3, v6, 4, v3\nv_lshl_add_u32 v4, v6, 4, v4")
a("s_waitcnt lgkmcnt(0)\nv_cmp_ne_u32 vcc, 4, v2\ns_cbranch_vccz Lkvw_done")
spin("Lkvw", "ds_read_b32 v2, v12 offset:4\ns_waitcnt lgkmcnt(0)\nv_cmp_ne_u32 vcc, 4, v2", T3, mult=8)
stx()
DN = [192, 208, 224, 240]
if "km" in opts:
    for h in range(4):
        a(f"ds_read_b128 v[{16+8*h}:{19+8*h}], v3 offset:{h*1024}")
        a(f"ds_read_b128 v[{20+8*h}:{23+8*h}], v4 offset:{h*1024}")
    def nm(h):
        a(f"s_waitcnt lgkmcnt({6-2*h})")
        mfma(DN[h], 16 + 8 * h, PQ[h], "0")
        mfma(DN[h], 20 + 8 * h, PQ[h])
    for h in range(2 if opts["km"] == "2" else 4): nm(h)
else:
    for h in range(4):
        a(f"ds_read_b128 v[{16+4*h}:{19+4*h}], v3 offset:{h*1024}")
    for h in range(4):
        a(f"s_waitcnt lgkmcnt({3-h})")
        mfma(DN[h], 16 + 4 * h, PQ[h], "0")
vm = VM()
def o_half(st_, hf, setup_only=False, do_setup=True):
    g = 2 * (st_ & 1) + hf
    if do_setup:
        a(f"s_add_u32 s{T2}, s{RW}, {2*g}")
        a(f"s_and_b32 s{T2}, s{T2}, 7")
        a(f"s_lshl_b32 s{T2}, s{T2}, 12")
        a(f"s_add_u32 s{T2}, s{T2}, s66")
        a(f"s_add_u32 m0, s67, {st_*(32768 if 'nosm' not in opts else 8192)+hf*4096}")
        if st_ < 2: a(f"s_xor_b32 s{T2}, s{T2}, 0x10000")
        else: a("s_nop 0")
    if setup_only: return
    for q in range(4):
        dma(14, WS, T2, q * 1024, f"o{st_}{hf}", vm, "sc1 ")
o_half(0, 0, setup_only=True)
if opts.get("km") == "2": a("s_nop 2")
for h in range(4):
    d = DN[h]
    a(f"v_add_f32 v{d+8}, s{SEP}, v{d+8}")
    a(f"v_rcp_f32 v{d+8}, v{d+8}")
    a("s_nop 0")
    for r in range(0, 8, 2):
        a(f"v_pk_mul_f32 v[{d+r}:{d+r+1}], v[{d+r}:{d+r+1}], v[{d+8}:{d+9}] op_sel_hi:[1,0]")
    for r in range(4):
        a(f"v_cvt_pk_bf16_f32 v{d+r}, v{d+2*r}, v{d+2*r+1}")
    if opts.get("km") == "2" and h < 2: nm(h + 2)
    a(f"buffer_store_dwordx4 v[{d}:{d+3}], v14, s[{WS}:{WS+3}], s68 offen offset:{h*1024} sc1")
lds_add(12, 13, 8)
stx()
if "noack" not in opts: a("s_waitcnt vmcnt(0)")
a(f"s_atomic_add s{ONE}, s[22:23], s69")
for r in range(1, OR):
    a(f"s_atomic_add s{ONE}, s[22:23], s69 offset:{r*RST}")
stx()
if "yp" not in opts:
    a("s_waitcnt lgkmcnt(0)" if "od" in opts else "")
    o_poll(24)
a("s_barrier")
stx()
o_half(0, 0, do_setup=False); o_half(0, 1)
if "xl" in opts:
    o_half(1, 0)
    vm.wait("o01"); a("s_barrier")
    o_half(1, 1); o_half(2, 0); o_half(2, 1)
    vm.wait("o11"); a("s_barrier")
    o_half(3, 0); o_half(3, 1)
    vm.wait("o21"); a("s_barrier")
else:
    for st_ in range(3):
        o_half(st_ + 1, 0); o_half(st_ + 1, 1)
        vm.wait(f"o{st_}1"); a("s_barrier")
if "sl" in opts: vm.wait("o30"); a("s_barrier")
vm.wait("o31"); a("s_barrier")
if STAMPS:
    if T128: a("s_barrier")
    while stx.n < STAMPS: stx()
    a("Lstamps:")
    a(f"v_subrev_u32 v40, {SWAVE*64}, v0")
    emit_stamp_store(a, 0, STAMPS, 70, 22, 2, 20, stmp=60, tid="v40")
a("Lend:")
a("s_endpgm")
for r in rare:
    a(r)
a("Lcode_end:")
open(sys.argv[1], "w").write(file_text([(NAME + "_kernel", 256, 512, 163840)], [(NAME + "_kernel", a.text(), 256, None)]))
```

```python
import sys, struct
from asmlib import *

opts = dict(o.split("=") if "=" in o else (o, "1") for o in sys.argv[2:])
STAMPS = int(opts.get("stamps", 0))
SWAVE = int(opts.get("swave", 0))
LAGA = 6
a = Asm()
KA = int(opts.get("ka", 1)); KAS = 0x14000
KR = int(opts.get("kr", 4)); OR = int(opts.get("or", 4)); RST = int(opts.get("rst", 256))

RSH = int(opts.get('rsh', 6)); RS = 1 << RSH
KVSTR = 1152 if RSH == 6 else 17 * RS
PB = int(opts.get('pb', 2))
ZO = 2048 if PB == 4 else 16 * RS
if PB == 4: KVSTR = 2176
WB = int(opts.get('wb', '0'), 0)
KVCNT = WB + 0x20000
OCNT = WB + 0x30000
GBUF = WB + 0x40000
OBUF = WB + 0x100000
KVACC = WB + 0x500000
WS_BYTES = WB + 0x600000
EPS = 0x358637bd
LOG2E = 0x3fb8aa3b
SPIN = int(opts.get("spin", 20000))
SL = [0, 32768, 65536, 98304, 131072]
WQ = SL[0]
STG = SL[2]
MISC = SL[4]
KVF = SL[4] + 4096
KVP = SL[4] + 8192
XCH = SL[4] + 16384

class Cnt:
    def __init__(self, name, mx): self.q = []; self.name = name; self.mx = mx
    def issue(self, tag): self.q.append(tag)
    def n_after(self, tag):
        idx = max(i for i, t in enumerate(self.q) if t == tag)
        return len(self.q) - 1 - idx
    def wait(self, *tags):
        n = min(self.mx, min(self.n_after(t) for t in tags))
        a(f"s_waitcnt {self.name}({n})")
def VM(): return Cnt("vmcnt", 63)
def LG(): return Cnt("lgkmcnt", 15)
TS = 's_memtime' if 'cyc' in opts else 's_memrealtime'
class Stamper:
    def __init__(self, start=0): self.n = start
    def __call__(self):
        if STAMPS:
            assert self.n < STAMPS, self.n
            a(f"{TS} s[{70+2*self.n}:{71+2*self.n}]")
            self.n += 1

X, W, WO, WS, OUT = 24, 28, 32, 40, 44
SLG, SEP = 36, 38
RT, CBK, RW, ONE = 48, 49, 50, 51
RB, CB, WV, ROT, XS, WSB, WL, T0, T1, T2, T3, WOS, T5, T4 = 52, 53, 54, 55, 56, 57, 58, 59, 60, 61, 62, 63, 64, 65

def mfma(d, sa, sb, c=None):
    cc = f"v[{d}:{d+15}]" if c is None else c
    a(f"v_mfma_f32_32x32x16_bf16 v[{d}:{d+15}], v[{sa}:{sa+3}], v[{sb}:{sb+3}], {cc}")
def mfma16(d, sa, sb, c=None):
    cc = f"v[{d}:{d+3}]" if c is None else c
    a(f"v_mfma_f32_16x16x32_bf16 v[{d}:{d+3}], v[{sa}:{sa+3}], v[{sb}:{sb+3}], {cc}")
def tr(r, addr, off):
    a(f"ds_read_b64_tr_b16 v[{r}:{r+1}], v{addr} offset:{off}")
def phi_ops(acc, n, tmp, pk=False):
    ops = []
    if pk:
        for r in range(0, n, 2):
            ops.append(f"v_pk_fma_f32 v[{tmp+r}:{tmp+r+1}], v[{acc+r}:{acc+r+1}], s[{SLG}:{SLG+1}], s[{SLG}:{SLG+1}] neg_lo:[0,0,1] neg_hi:[0,0,1]")
    else:
        for r in range(n):
            ops.append(f"v_fma_f32 v{tmp+r}, v{acc+r}, s{SLG}, -s{SLG}")
    for r in range(n):
        ops.append(f"v_exp_f32 v{tmp+r}, v{tmp+r} clamp")
        if r >= 2:
            ops.append(f"v_max_f32 v{acc+r-2}, v{acc+r-2}, v{tmp+r-2}")
    ops.append(f"v_max_f32 v{acc+n-2}, v{acc+n-2}, v{tmp+n-2}")
    ops.append(f"v_max_f32 v{acc+n-1}, v{acc+n-1}, v{tmp+n-1}")
    if pk:
        for r in range(0, n, 2):
            ops.append(f"v_pk_add_f32 v[{acc+r}:{acc+r+1}], v[{acc+r}:{acc+r+1}], s[{SEP}:{SEP+1}]")
    else:
        for r in range(n):
            ops.append(f"v_add_f32 v{acc+r}, s{SEP}, v{acc+r}")
    for r in range(n // 2):
        ops.append(f"v_cvt_pk_bf16_f32 v{acc+r}, v{acc+2*r}, v{acc+2*r+1}")
    return ops
def spin(label, body, cnt, sleep=None, mult=1):
    a(f"s_mov_b32 s{cnt}, 0\n{label}_top:")
    a(body)
    a(f"s_cbranch_vccz {label}_done")
    if sleep: a(f"s_sleep {sleep}")
    a(f"s_add_u32 s{cnt}, s{cnt}, 1\ns_cmp_lt_u32 s{cnt}, {SPIN*mult}\ns_cbranch_scc1 {label}_top")
    a(f"{label}_done:")
def sspin(label, body, cnt, sleep=None):
    a(f"s_mov_b32 s{cnt}, 0\n{label}_top:")
    a(body)
    a(f"s_cbranch_scc1 {label}_done")
    if sleep: a(f"s_sleep {sleep}")
    a(f"s_add_u32 s{cnt}, s{cnt}, 1\ns_cmp_lt_u32 s{cnt}, {SPIN}\ns_cbranch_scc1 {label}_top")
    a(f"{label}_done:")
def pspin(label, off, depth, gap, cnt, base=36):
    regs = [base + i for i in range(depth)]
    for r in regs: a(f"s_mov_b32 s{r}, 0")
    for r in regs[:-1]:
        a(f"s_load_dword s{r}, s[22:23], s{off} glc\ns_sleep {gap}")
    a(f"s_mov_b32 s{cnt}, 0\n{label}_top:")
    for i in range(depth):
        r = regs[(i - 1) % depth]
        a(f"s_load_dword s{r}, s[22:23], s{off} glc\ns_waitcnt lgkmcnt({depth-1})")
        a(f"s_max_u32 s{T4}, s{regs[0]}, s{regs[1]}")
        for q in regs[2:]: a(f"s_max_u32 s{T4}, s{T4}, s{q}")
        a(f"s_cmp_eq_u32 s{T4}, 16\ns_cbranch_scc1 {label}_done")
    a(f"s_add_u32 s{cnt}, s{cnt}, 1\ns_cmp_lt_u32 s{cnt}, {SPIN}\ns_cbranch_scc1 {label}_top\n{label}_done:")
rare = []
def lds_add(vaddr, vone, off):
    a(f"s_mov_b64 exec, 1\nds_add_u32 v{vaddr}, v{vone} offset:{off}\ns_mov_b64 exec, -1")
def dma(voff, sr, soff, off, tag, vmq, extra=""):
    o = f"offset:{off} " if off else ""
    a(f"buffer_load_dwordx4 v{voff}, s[{sr}:{sr+3}], s{soff} offen {o}{extra}lds")
    vmq.issue(tag)

st = Stamper()
st()
COMMON = f"""
s_load_dwordx16 s[4:19], s[0:1], 0
s_load_dwordx4 s[20:23], s[0:1], 64
s_and_b32 s{T3}, s2, 7
s_lshl2_add_u32 s{RT}, s{T3}, s3
s_lshr_b32 s{CB}, s{T3}, 1
s_lshl2_add_u32 s{CB}, s{CB}, s3
s_and_b32 s{RW}, s{WL}, 1
s_lshl1_add_u32 s{RW}, s3, s{RW}
s_mov_b32 s{ONE}, 1
"""
a(f"""
s_load_dwordx2 s[{X}:{X+1}], s[0:1], 0
s_and_b32 s{T0}, s2, 4
s_mul_i32 s{T0}, s{T0}, 6
s_load_dwordx2 s[{W}:{W+1}], s[0:1], s{T0} offset:8
v_readfirstlane_b32 s{WV}, v0
s_cmpk_ge_u32 s2, 256
s_cbranch_scc1 Lend
v_and_b32 v1, 63, v0
s_lshr_b32 s{T1}, s2, 3
s_and_b32 s{CBK}, s{T1}, 7
s_lshr_b32 s3, s{T1}, 3
s_and_b32 s{RB}, s2, 1
s_lshl3_add_u32 s{RB}, s{RB}, s{CBK}
s_lshr_b32 s{WL}, s{WV}, 6
s_and_b32 s{WL}, s{WL}, 3
s_cmpk_lt_u32 s{WV}, 256
s_cbranch_scc1 Lx
""")

vm = VM()
sty = Stamper(1)
a(f"""
v_lshrrev_b32 v20, 3, v1
v_and_b32 v21, 7, v1
v_lshrrev_b32 v22, 4, v1
v_xor_b32 v23, v21, v22
v_lshlrev_b32 v2, 10, v20
v_lshl_add_u32 v2, v23, 4, v2
s_add_u32 s{ROT}, s{CBK}, s3
s_lshl_b32 s{ROT}, s{ROT}, 2
s_and_b32 s{T0}, s{ROT}, 7
s_lshl2_add_u32 s{XS}, s{RB}, s{WL}
s_lshl_b32 s{XS}, s{XS}, 15
s_lshl_b32 s{T1}, s{T0}, 7
s_add_u32 s{T1}, s{T1}, s{XS}
s_lshl_b32 s67, s{WL}, 12
s_mov_b32 m0, s67
s_mov_b32 s{X+2}, {2048*1024}
s_mov_b32 s{X+3}, 0x20000
v_xor_b32 v3, 64, v2
v_add_u32 v3, {8192-1024}, v3
s_waitcnt lgkmcnt(0)
buffer_load_dwordx4 v2, s[{X}:{X+3}], s{T1} offen lds
v_add_u32 v4, {2*(8192-1024)}, v2
v_add_u32 v5, {2*(8192-1024)}, v3
buffer_load_dwordx4 v3, s[{X}:{X+3}], s{T1} offen offset:1024 lds
v_and_b32 v23, 1, v22
v_lshlrev_b32 v24, 1, v23
v_xor_b32 v24, v21, v24
v_mul_u32_u24 v25, 3072, v20
buffer_load_dwordx4 v4, s[{X}:{X+3}], s{T1} offen offset:2048 lds
v_lshl_add_u32 v6, v24, 4, v25
s_and_b32 s{WSB}, s2, 2
s_lshl1_add_u32 s{WSB}, s{WSB}, s3
s_lshl_b32 s{WSB}, s{WSB}, 7
s_mul_i32 s66, s{WL}, {16*3072}
buffer_load_dwordx4 v5, s[{X}:{X+3}], s{T1} offen offset:3072 lds
s_add_u32 s66, s66, s{WSB}
s_mul_i32 s{T2}, s{T0}, {64*3072}
s_add_u32 s{T2}, s{T2}, s66
s_mov_b32 s{W+2}, {512*3072}
s_mov_b32 s{W+3}, s{X+3}
s_add_u32 m0, s67, 16384
v_xor_b32 v7, 64, v6
buffer_load_dwordx4 v6, s[{W}:{W+3}], s{T2} offen offset:2048 lds
v_add_u32 v7, {8*3072-1024}, v7
v_add_u32 v10, 1024, v6
buffer_load_dwordx4 v7, s[{W}:{W+3}], s{T2} offen offset:3072 lds
v_add_u32 v11, 1024, v7
buffer_load_dwordx4 v10, s[{W}:{W+3}], s{T2} offen lds
buffer_load_dwordx4 v11, s[{W}:{W+3}], s{T2} offen offset:1024 lds
""")
for _ in range(8): vm.issue("c0")
def chunk_setup(c):
    slot = SL[c % 4]
    a(f"s_add_u32 s{T0}, s{ROT}, {c}")
    a(f"s_and_b32 s{T0}, s{T0}, 7")
    a(f"s_lshl_b32 s{T1}, s{T0}, 7")
    a(f"s_add_u32 m0, s67, {slot}")
    a(f"s_add_u32 s{T1}, s{T1}, s{XS}")
def issue_chunk(c, setup=True):
    slot = SL[c % 4]
    if setup: chunk_setup(c)
    for q in range(4):
        dma(2 + q, X, T1, q * 1024, f"c{c}", vm)
        if q == 0: a(f"s_mul_i32 s{T2}, s{T0}, {64*3072}")
        if q == 1: a(f"s_add_u32 s{T2}, s{T2}, s66")
    a(f"s_add_u32 m0, s67, {slot+16384}")
    a("s_nop 0")
    dma(10, W, T2, 0, f"c{c}", vm)
    dma(11, W, T2, 1024, f"c{c}", vm)
    dma(6, W, T2, 2048, f"c{c}", vm)
    dma(7, W, T2, 3072, f"c{c}", vm)
def issue_wq(h):
    for i in range(4):
        a(f"s_add_u32 s{T0}, s68, {i}")
        a(f"s_and_b32 s{T0}, s{T0}, 3")
        a(f"s_add_u32 s{T2}, s{T0}, s{ROT}")
        if h: a(f"s_add_u32 s{T2}, s{T2}, 4")
        a(f"s_and_b32 s{T2}, s{T2}, 7")
        a(f"s_mul_i32 s{T2}, s{T2}, {64*3072}")
        a(f"s_lshl_b32 s{T0}, s{T0}, 13")
        a(f"s_add_u32 s{T0}, s{T0}, s69")
        a(f"s_add_u32 m0, s{T0}, {WQ+h*32768}")
        a(f"s_add_u32 s{T2}, s{T2}, s66")
        for q in range(2):
            dma(26 + q, W, T2, q * 1024, f"q{h}", vm)
sty()
a(COMMON)
a(f"""
; Wq piece offsets v26,v27
v_lshlrev_b32 v24, 2, v23
v_xor_b32 v24, v21, v24
v_lshl_add_u32 v26, v24, 4, v25
v_add_u32 v27, {8*3072-1024}, v26
v_lshlrev_b32 v56, 10, v20
v_lshl_add_u32 v56, v24, 4, v56
v_add_u32 v57, {8192-1024}, v56
v_add_u32 v58, {2*(8192-1024)}, v56
v_add_u32 v59, {3*(8192-1024)}, v56
s_lshr_b32 s68, s{CBK}, 1
s_lshl_b32 s69, s{WL}, 11
v_lshrrev_b32 v8, 5, v1
v_and_b32 v24, 3, v1
v_bfe_u32 v25, v1, 2, 2
v_lshl_add_u32 v60, v8, 2, v25
v_lshlrev_b32 v60, 7, v60
v_lshl_add_u32 v60, v23, 5, v60
v_lshl_add_u32 v60, v24, 3, v60
v_bfe_u32 v25, v1, 3, 1
s_and_b32 s{T0}, s{WL}, 1
v_xor_b32 v25, s{T0}, v25
v_lshl_add_u32 v60, v25, 6, v60
v_lshlrev_b32 v19, 4, v1
v_mov_b32 v30, {MISC}
v_mov_b32 v31, 1
; atomic voffset v9 : g*256 + pos(d)*4
v_lshlrev_b32 v9, {RSH+2}, v22
v_lshl_add_u32 v9, v24, 2, v9
v_bfe_u32 v25, v1, 2, 1
v_lshl_add_u32 v9, v25, 5, v9
v_bfe_u32 v25, v1, 3, 1
v_lshl_add_u32 v9, v25, 4, v9
""")
T128 = opts.get("tm") == "128"
T128A = f"s_and_b32 s{T1}, s69, 0x1000\ns_add_u32 s{T1}, s{T1}, {KVP}\ns_and_b32 s{T0}, s{WL}, 1\ns_lshl_b32 s{T0}, s{T0}, 2"
T128B = f"v_and_b32 v25, 7, v1\nv_xor_b32 v25, s{T0}, v25"
T128C = f"""s_add_u32 s{T1}, s69, {KVP}
v_lshrrev_b32 v29, 3, v1
v_lshl_add_u32 v14, v29, 7, s{T1}
v_and_b32 v25, 7, v1
v_lshlrev_b32 v15, 10, v29
v_lshl_add_u32 v15, v25, 4, v15
v_xor_b32 v25, v25, v29
v_lshl_add_u32 v14, v25, 4, v14"""
T64C = f"""v_lshrrev_b32 v29, 2, v1
v_lshl_add_u32 v14, v29, 6, s{T1}
v_bfe_u32 v25, v1, 3, 2
v_xor_b32 v25, v25, v24
v_lshl_add_u32 v14, v25, 4, v14
v_lshlrev_b32 v15, 10, v29
v_lshl_add_u32 v15, v24, 4, v15"""
LATEV = f"""; partial read addresses v20,v21 ; out transposition v12 (write), v13 (write2), v14 (read), v15 (global)
s_add_u32 s{T1}, s69, {KVP}
v_add_u32 v20, s{T1}, v19
v_lshl_add_u32 v21, v1, 2, s{T1}
v_and_b32 v28, 31, v1
{T128A if T128 else ""}
v_lshl_add_u32 v12, v28, {7 if T128 else 6}, s{T1}
{T128B if T128 else "v_bfe_u32 v25, v1, 1, 2"}
{"v_lshl_add_u32 v12, v8, 3, v12" if "nof64" not in opts else "v_xor_b32 v25, v25, v8"}
v_lshl_add_u32 v12, v25, 4, v12
v_xor_b32 v13, 32, v12
v_xor_b32 v16, 16, v12
v_xor_b32 v18, 48, v12
{T128C if T128 else T64C}
v_lshrrev_b32 v29, 2, v1
; kv fetch voffset v22, frag write v23 ; g voffset v28
v_lshlrev_b32 v22, {RSH}, v29
v_lshl_add_u32 v22, v24, 4, v22
s_lshl_b32 s{T1}, s{WL}, 10
s_add_u32 s{WSB}, s{T1}, {KVF}
s_add_u32 s{T1}, s{T1}, {(MISC + 512) if "km" in opts else KVF}
v_lshl_add_u32 v23, v1, 3, s{T1}
v_lshlrev_b32 v28, 2, v28
; P3: o images v24 (own), v25 (partner) ; exchange v29 (write), v17 (read)
s_lshl_b32 s{T1}, s{WL}, {13 if "nosm" not in opts else 15}
v_add_u32 v24, s{T1}, v19
v_xor_b32 v25, {"0x2000" if "nosm" not in opts else "0x8000"}, v24
s_add_u32 s{T1}, s67, {XCH}
v_lshl_add_u32 v29, v1, {3 if "nox64" not in opts else 4}, s{T1}
v_xor_b32 v17, 0x2000, v29
"""
LATE = int(opts.get("late", 1))
if LATE < 0: a(LATEV)
a(f"""
s_cmp_ge_u32 s{WL}, 2
s_waitcnt lgkmcnt(0)
s_cselect_b32 s{WO}, s14, s8
s_cselect_b32 s{WO+1}, s15, s9
s_mov_b32 s{WO+2}, {512*1024}
s_mov_b32 s{WO+3}, 0x20000
; wo col offset s14 ; staging s15 ; kv acc s12 ; kv counter s13 ; gate row s6
s_lshl_b32 s14, s{CBK}, 7
s_lshl_b32 s15, s{WL}, 14
s_add_u32 s15, s15, {STG}
s_lshl_b32 s{WOS}, s{WL}, 13
v_add_u32 v46, s{WOS}, v60
v_xor_b32 v47, 0x2000, v46
v_add_u32 v60, s15, v60
v_xor_b32 v61, 0x4000, v60
s_lshr_b32 s{T1}, s{WL}, 1
s_lshl_b32 s{T1}, s{T1}, 2
s_add_u32 s{T1}, s{T1}, {MISC+16}
v_mov_b32 v62, s{T1}
s_lshl_b32 s{T0}, s{CB}, 2
s_add_u32 s{T0}, s{T0}, s{WL}
s_mul_i32 s12, s{T0}, {KVSTR}
s_add_u32 s12, s12, {KVACC}
s_and_b32 s3, s{RB}, {KA-1}
s_mul_i32 s3, s3, {KAS}
s_add_u32 s3, s3, s12
s_lshl_b32 s13, s{T0}, 10
s_add_u32 s13, s13, {KVCNT}
s_and_b32 s{T1}, s{RB}, {KR-1}
s_mul_i32 s{T1}, s{T1}, {RST}
s_add_u32 s13, s13, s{T1}
s_lshl_b32 s6, s{CB}, 11
s_add_u32 s6, s6, s{XS}
s_lshr_b32 s7, s6, 8
s_add_u32 s7, s7, {GBUF}
""")
LATES = f"""; P3: g s8 ; o counter s9 ; out s10,s11
s_lshl_b32 s{T1}, s{RT}, 1
s_lshr_b32 s{T0}, s{WL}, 1
s_add_u32 s{T1}, s{T1}, s{T0}
s_lshl_b32 s8, s{T1}, 7
s_add_u32 s8, s8, {GBUF}
s_lshl_b32 s9, s{T1}, 10
s_add_u32 s9, s9, {OCNT}
s_and_b32 s{T0}, s{CBK}, {OR-1}
s_mul_i32 s{T0}, s{T0}, {RST}
s_add_u32 s9, s9, s{T0}
s_lshl_b32 s10, s{T1}, 15
s_lshl_b32 s{T0}, s{CBK}, 7
s_add_u32 s10, s10, s{T0}
s_and_b32 s{T0}, s{WL}, 1
s_lshl_b32 s{T0}, s{T0}, {14 if T128 else 6}
s_add_u32 s10, s10, s{T0}
s_add_u32 s11, s10, {8192 if T128 else 16384}
"""
if LATE < 0: a(LATES)
a(f"""
v_mov_b32 v44, 0
v_mov_b32 v45, 0
""")
srd(a, WS, 22, WS_BYTES)
srd(a, OUT, 18, 2048 * 1024)
issue_chunk(1)
a("global_load_dwordx4 v[40:43], v19, s[16:17]")
vm.issue("gw")
for i in range(8):
    vm.wait(f"c{i}")
    a("s_barrier")
    if i in (0, 3, 7): sty()
    if i == 6: a(f"s_load_dword s{T4}, s[20:21], 0")
    if i == 7:
        a(f"""buffer_load_dwordx4 v[48:51], v19, s[{X}:{X+3}], s6 offen
buffer_load_dwordx4 v[52:55], v19, s[{X}:{X+3}], s6 offen offset:1024""")
        vm.issue("gate"); vm.issue("gate")
    if i + 2 < 8:
        issue_chunk(i + 2)
    else:
        issue_wq(i - 6)
    if i == LATE:
        a(LATEV); a(LATES)
WR = 128
def wreg(sg, hl, c): return WR + ((sg * 4 + hl) * 2 + c) * 4
def issue_wo(sg, part=(0, 1)):
    a(f"s_add_u32 s{T2}, s{RW}, {2*sg}")
    a(f"s_and_b32 s{T2}, s{T2}, 7")
    a(f"s_lshl_b32 s{T2}, s{T2}, 16")
    for p in part:
        if opts.get("mode") in ("5", "7") and sg >= 2:
            a(f"s_add_u32 m0, s{WOS}, {(sg - 2) * 32768 + p * 4096}")
        else:
            a(f"s_add_u32 m0, s15, {(sg % 2) * 8192 + p * 4096}")
        if p == part[0]: a(f"s_add_u32 s{T2}, s{T2}, s14")
        if p == 1: a(f"s_add_u32 s{T2}, s{T2}, 32768")
        for q in range(4):
            dma(56 + q, WO, T2, q * 1024, f"wo{sg}{p}", vm)
def wo_tr(sg, hls=range(4)):
    for hl in hls:
        for c in range(2):
            r = wreg(sg, hl, c)
            off = (sg % 2) * 8192 + hl * 2048
            b_ = 60
            if opts.get("mode") in ("5", "7") and sg >= 2:
                off = (sg - 2) * 32768 + hl * 2048; b_ = 46
            tr(r, b_ + c, off); tr(r + 2, b_ + c, off + 1024)
pc = [0]
def pair_add():
    lds_add(62, 31, 0); pc[0] += 2
def pair_wait(label):
    spin(label, f"ds_read_b32 v63, v62\ns_waitcnt lgkmcnt(0)\nv_cmp_gt_u32 vcc, {pc[0]}, v63", T3, mult=8)
def cnt_wait(label, off):
    spin(label, f"ds_read_b32 v63, v30 offset:{off}\ns_waitcnt lgkmcnt(0)\nv_cmp_gt_u32 vcc, 4, v63", T3, sleep=1, mult=8)
M5 = opts.get("mode") in ("5", "7")
QS = "qs" in opts or M5
if QS:
    vm.wait("q0")
    lds_add(30, 31, 0)
cnt_wait("Lad", 12)
E0 = opts.get("e0", "0")
if E0 == "0": issue_wo(0, part=(0,))
a(f"""
s_cmp_ge_u32 s{T4}, 64
s_cbranch_scc0 Lzc
Lzc_done:
""")
rare.append(f"""Lzc:
s_mov_b32 s{T3}, 0
Lzc_top:
s_load_dword s{T4}, s[20:21], 0 glc
s_waitcnt lgkmcnt(0)
s_cmp_ge_u32 s{T4}, 64
s_cbranch_scc1 Lzc_done
s_sleep 4
s_add_u32 s{T3}, s{T3}, 1
s_cmp_lt_u32 s{T3}, {SPIN}
s_cbranch_scc1 Lzc_top
s_branch Lzc_done""")
sty()
vm.wait("gate")
for k in range(4):
    a(f"v_dot2c_f32_bf16 v44, v{48+k}, v{40+k}")
    a(f"v_dot2c_f32_bf16 v45, v{52+k}, v{40+k}")
a(f"""
s_nop 2
v_permlane32_swap_b32 v44, v45
s_nop 1
v_add_f32 v44, v44, v45
s_nop 1
v_add_f32_dpp v44, v44, v44 row_ror:8 row_mask:0xf bank_mask:0xf
s_nop 1
v_add_f32_dpp v44, v44, v44 row_ror:4 row_mask:0xf bank_mask:0xf
s_nop 1
v_add_f32_dpp v44, v44, v44 row_ror:2 row_mask:0xf bank_mask:0xf
s_nop 1
v_add_f32_dpp v44, v44, v44 row_ror:1 row_mask:0xf bank_mask:0xf
v_mov_b32 v45, v44
s_nop 1
v_permlane16_swap_b32 v44, v45
s_nop 1
v_add_f32 v44, v44, v45
{"" if "nogr" in opts else "v_cvt_pk_bf16_f32 v44, v44, v44" + chr(10) + "v_and_b32 v44, 0xffff0000, v44"}
v_mul_f32 v44, 0xbfb8aa3b, v44
v_exp_f32 v44, v44
v_lshlrev_b32 v45, 2, v8
v_add_f32 v44, 1.0, v44
v_rcp_f32 v44, v44
{"" if "nogr" in opts else "s_nop 0" + chr(10) + "v_cvt_pk_bf16_f32 v44, v44, v44" + chr(10) + "v_and_b32 v44, 0xffff0000, v44"}
""")
if not QS:
    vm.wait("q1")
    lds_add(30, 31, 0)
a("s_setprio 2")
if PB:
    a(f"v_lshlrev_b32 v37, 2, v1\ns_and_b32 s{T0}, s{RB}, {PB-1}\ns_lshl_b32 s{T0}, s{T0}, 9\ns_add_u32 s{T0}, s{T0}, s12")
    spin("Lkp", "ds_read_b32 v36, v21 offset:1024\nds_read_b32 v32, v21\nds_read_b32 v33, v21 offset:256\ns_waitcnt lgkmcnt(0)\nv_cmp_eq_u32 vcc, 0, v36", T3, sleep=int(opts.get("psl", 1)), mult=8)
    for r in range(2):
        a(f"buffer_atomic_pk_add_bf16 v{32+r}, v37, s[{WS}:{WS+3}], s{T0} offen offset:{r*256}")
        vm.issue("atom")
else:
    spin("Lkp", "ds_read_b32 v36, v21 offset:1024\nds_read_b128 v[32:35], v20\ns_waitcnt lgkmcnt(0)\nv_cmp_eq_u32 vcc, 0, v36", T3, sleep=int(opts.get("psl", 1)), mult=8)
    for r in range(4):
        a(f"buffer_atomic_add_f32 v{32+r}, v9, s[{WS}:{WS+3}], s3 offen offset:{r*RS}")
        vm.issue("atom")
a(f"""
s_mov_b64 exec, 0xffff
s_add_u32 s3, s3, {ZO}
buffer_atomic_add_f32 v36, v9, s[{WS}:{WS+3}], s3 offen
s_mov_b32 exec_lo, 1
s_mov_b32 exec_hi, 1
buffer_store_dword v44, v45, s[{WS}:{WS+3}], s7 offen sc1
s_mov_b64 exec, -1
s_mov_b32 s{T4}, 1
s_mov_b32 s{T5}, 16
v_lshlrev_b32 v38, 3, v1
""")
vm.issue("atom"); vm.issue("gst")
sty()
if QS:
    vm.wait("q1")
    lds_add(30, 31, 24)
MODE = opts.get("mode", "4")
if E0 == "0": issue_wo(0, part=(1,))
if E0 == "1": issue_wo(0, part=(0,))
if E0 == "2":
    a("s_sleep 2"); issue_wo(0)
if MODE in ("1", "3"): issue_wo(1, part=(0,))
vm.wait("atom")
for r in range(1, KR):
    a(f"s_xor_b32 s{T0}, s13, {r*RST}\ns_atomic_add s{ONE}, s[22:23], s{T0}")
a(f"s_atomic_add s{T4}, s[22:23], s13 glc")
sty()
fst = sty.n + 1
def fetch():
    if "km" in opts:
        a(f"""s_mov_b32 m0, s{WSB}
s_mov_b32 s{T5}, -1
buffer_load_dwordx4 v19, s[{WS}:{WS+3}], s12 offen sc1 lds
s_mov_b64 exec, 0xf
buffer_load_dwordx4 v[40:43], v22, s[{WS}:{WS+3}], s3 offen sc1
s_waitcnt vmcnt(0)
v_cvt_pk_bf16_f32 v34, v40, v41
v_cvt_pk_bf16_f32 v35, v42, v43
ds_write_b64 v23, v[34:35]""")
    elif PB:
        a(f"buffer_load_dwordx2 v[32:33], v38, s[{WS}:{WS+3}], s12 offen sc1")
        for r in range(1, PB):
            a(f"buffer_load_dwordx2 v[{64+2*r}:{65+2*r}], v38, s[{WS}:{WS+3}], s12 offen offset:{512*r} sc1")
        a(f"""s_mov_b64 exec, 0xf
buffer_load_dwordx4 v[40:43], v22, s[{WS}:{WS+3}], s3 offen sc1
s_mov_b64 exec, -1
s_mov_b32 s{T5}, -1
s_waitcnt vmcnt(0)""")
        if PB > 1:
            for q in range(2):
                a(f"v_lshlrev_b32 v48, 16, v{32+q}\nv_and_b32 v49, 0xffff0000, v{32+q}")
                for r in range(1, PB):
                    a(f"v_lshlrev_b32 v50, 16, v{64+2*r+q}\nv_and_b32 v51, 0xffff0000, v{64+2*r+q}\nv_add_f32 v48, v48, v50\nv_add_f32 v49, v49, v51")
                a(f"v_cvt_pk_bf16_f32 v{32+q}, v48, v49")
        a(f"""ds_write_b64 v23, v[32:33]
v_cvt_pk_bf16_f32 v34, v40, v41
v_cvt_pk_bf16_f32 v35, v42, v43
s_mov_b64 exec, 0xf
ds_write_b64 v23, v[34:35] offset:512""")
    else:
        a(f"""buffer_load_dwordx4 v[32:35], v22, s[{WS}:{WS+3}], s12 offen sc1
s_mov_b64 exec, 0xf
buffer_load_dwordx4 v[36:39], v22, s[{WS}:{WS+3}], s3 offen sc1
s_mov_b64 exec, -1
s_mov_b32 s{T5}, -1
s_waitcnt vmcnt(0)
v_cvt_pk_bf16_f32 v32, v32, v33
v_cvt_pk_bf16_f32 v33, v34, v35
v_cvt_pk_bf16_f32 v34, v36, v37
v_cvt_pk_bf16_f32 v35, v38, v39
ds_write_b64 v23, v[32:33]
s_mov_b64 exec, 0xf
ds_write_b64 v23, v[34:35] offset:512""")
    lds_add(30, 31, 4)
    a("s_setprio 0")
    if STAMPS: a(f"{TS} s[{70+2*fst}:{71+2*fst}]")
POLL = f"s_load_dword s{T4}, s[22:23], s13 glc"
def maybe_fetch(k):
    a(f"s_cmp_eq_u32 s{T4}, s{T5}\ns_cbranch_scc0 Lmf{k}")
    fetch()
    a(f"Lmf{k}:")
def must_fetch():
    a(f"s_cmp_eq_u32 s{T5}, -1\ns_cbranch_scc1 Lkv_have\ns_cmp_eq_u32 s{T4}, 16\ns_cbranch_scc1 Lpollkv_done")
    if "kd" in opts:
        a("s_waitcnt lgkmcnt(0)")
        pspin("Lpollkv", 13, int(opts["kd"]), int(opts.get("kg", 5)), T3)
    else:
        sspin("Lpollkv", POLL + f"\ns_waitcnt lgkmcnt(0)\ns_cmp_eq_u32 s{T4}, 16", T3, sleep=int(opts.get("ksleep", 1)))
    fetch()
    a("Lkv_have:")
if E0 == "1": issue_wo(0, part=(1,))
S1 = opts.get("s1", "f")
if MODE == "4" and S1 != "f":
    if S1 == "h": issue_wo(1, part=(0,))
elif MODE != "7": issue_wo(1, part=((1,) if MODE in ("1", "3") else (0, 1)))
if MODE == "7":
    a(f"s_waitcnt lgkmcnt(0)\ns_add_u32 s{T4}, s{T4}, 1")
    sty(); sty.n += 1
    must_fetch()
    issue_wo(1)
    cnt_wait("Ls1", 8)
    issue_wo(2); issue_wo(3)
    vm.wait("wo11")
    pair_add(); pair_wait("Lps0")
    wo_tr(0); wo_tr(1)
    vm.wait("wo31")
    pair_add(); pair_wait("Lps2")
    wo_tr(2); wo_tr(3)
elif MODE in ("0", "1"):
    a(f"s_waitcnt lgkmcnt(0)\ns_add_u32 s{T4}, s{T4}, 1")
    maybe_fetch(0)
    vm.wait("wo11"); pair_add(); pair_wait("Lps0")
    a(POLL)
    wo_tr(0); wo_tr(1)
    a("s_waitcnt lgkmcnt(0)")
    pair_add()
    sty(); sty.n += 1
    must_fetch()
    pair_wait("Lps1")
    issue_wo(2)
    cnt_wait("Lxo", 8)
    issue_wo(3)
    vm.wait("wo31"); pair_add(); pair_wait("Lps2")
    wo_tr(2); wo_tr(3)
elif MODE == "5":
    cnt_wait("Ls0", 28)
    a(f"s_add_u32 s{T4}, s{T4}, 1")
    maybe_fetch(0)
    a(f"s_cmp_eq_u32 s{T5}, -1\ns_cbranch_scc1 Lnp5\n" + POLL + "\nLnp5:")
    issue_wo(2)
    a("s_waitcnt lgkmcnt(0)")
    sty(); sty.n += 1
    must_fetch()
    pair_add()
    if opts.get("s3") == "1":
        pair_wait("Lps0"); wo_tr(0)
    cnt_wait("Ls1", 32 if opts.get("s3") != "2" else 8)
    issue_wo(3)
    if opts.get("s3") != "1":
        pair_wait("Lps0"); wo_tr(0)
    wo_tr(1)
    vm.wait("wo31")
    pair_add(); pair_wait("Lps2")
    wo_tr(2); wo_tr(3)
elif MODE == "4":
    if "pa" in opts:
        vm.wait("wo11"); pair_add()
    a(f"s_waitcnt lgkmcnt(0)\ns_add_u32 s{T4}, s{T4}, 1")
    sty(); sty.n += 1
    must_fetch()
    if S1 != "f":
        issue_wo(1, part=((1,) if S1 == "h" else (0, 1)))
        vm.wait("wo11")
    if "pa" not in opts: pair_add()
    pair_wait("Lps0")
    if "fs" in opts:
        wo_tr(0)
        a("s_waitcnt lgkmcnt(0)")
        pair_add()
        wo_tr(1)
        pair_wait("Lps1")
        pair_add()
        issue_wo(2)
        pair_wait("Lps1b")
        issue_wo(3)
    else:
        wo_tr(0); wo_tr(1)
        a("s_waitcnt lgkmcnt(0)")
        pair_add(); pair_wait("Lps1")
        R2 = opts.get("r2", "0")
        if R2 == "0": cnt_wait("Lxo", 8)
        if R2 == "3":
            issue_wo(2, part=(0,)); cnt_wait("Lxo", 8); issue_wo(2, part=(1,))
        else:
            issue_wo(2)
        if R2 == "1": cnt_wait("Lxo", 8)
        issue_wo(3)
    if "nw" not in opts: vm.wait("wo31")
    if "nosm" in opts:
        pair_add(); pair_wait("Lps2")
        wo_tr(2); wo_tr(3)
else:
    vm.wait("wo01"); pair_add()
    a(f"s_waitcnt lgkmcnt(0)\ns_add_u32 s{T4}, s{T4}, 1")
    maybe_fetch(0)
    pair_wait("Lps0")
    a(POLL)
    wo_tr(0)
    vm.wait("wo11")
    a("s_waitcnt lgkmcnt(0)")
    pair_add()
    sty(); sty.n += 1
    must_fetch()
    pair_wait("Lps1")
    wo_tr(1)
    issue_wo(2)
    a("s_waitcnt lgkmcnt(0)")
    pair_add()
    cnt_wait("Lxo", 8)
    pair_wait("Lps2")
    issue_wo(3)
    vm.wait("wo31"); pair_add(); pair_wait("Lps3")
    wo_tr(2); wo_tr(3)
OV = ""
def o_poll(preg=36):
    a(f"s_bitcmp1_b32 s{WL}, 0\ns_cbranch_scc1 Lpollo_done")
    if "odel" in opts: a(f"s_sleep {opts['odel']}")
    if "od" in opts:
        pspin("Lpollo", 9, int(opts["od"]), int(opts.get("og", 4)), T3, preg)
    else:
        sspin("Lpollo", f"s_load_dword s{T4}, s[22:23], s9 glc\ns_waitcnt lgkmcnt(0)\ns_cmp_eq_u32 s{T4}, 16", T3, sleep=int(opts.get("osleep", 2)))
a("s_waitcnt lgkmcnt(0)")
if "yp" in opts: o_poll()
sty()
a("s_barrier")
if "nosm" not in opts and not M5:
    if "nw" in opts:
        vm.wait("wo31"); pair_add(); pair_wait("Lps2")
    wo_tr(2); wo_tr(3)
a(f"buffer_load_dword v2, v28, s[{WS}:{WS+3}], s8 offen sc1")
if "nosm" not in opts:
    a("v_add_u32 v10, 0x10000, v24\nv_add_u32 v11, 0x10000, v25\ns_waitcnt lgkmcnt(0)")
ACC = [32, 48]
OB = 64; NBUF = 16
lg = LG()
items = [(st_, k, c) for st_ in range(4) for k in range(8) for c in range(2)]
def rdO(n):
    st_, k, c = items[n]
    r = OB + 4 * (n % NBUF)
    if "nosm" not in opts:
        a(f"ds_read_b128 v[{r}:{r+3}], v{(24 if st_ < 2 else 10)+c} offset:{(st_&1)*32768 + k*1024}")
    else:
        a(f"ds_read_b128 v[{r}:{r+3}], v{24+c} offset:{st_*8192 + k*1024}")
    lg.issue(f"O{n}")
def mfO(n):
    st_, k, c = items[n]
    if n % 2 == 0: lg.wait(f"O{n+1}")
    mfma(ACC[1 if st_ < 2 else 0], wreg(2 * (st_ & 1) + (k >> 2), k & 3, c), OB + 4 * (n % NBUF), "0" if n in (0, 32) else None)
LAG = 4
done = 0
wq = list(range(4))
fin = ["s_waitcnt vmcnt(0)", "v_sub_f32 v4, 1.0, v2" + ("" if "nogr" in opts else "\nv_cvt_pk_bf16_f32 v4, v4, v4\nv_and_b32 v4, 0xffff0000, v4"), f"s_cmp_ge_u32 s{WL}, 2\ns_cselect_b64 vcc, -1, 0",
       "v_cndmask_b32 v6, v2, v4, vcc", "v_cndmask_b32 v4, v4, v2, vcc"]
for n in range(64):
    if n == 56 and "sl" in opts:
        a("s_barrier")
        rdO(n); rdO(n + 1)
    if n % 16 == 0:
        if n == 48: lg.wait("W")
        if n == 0 and OV == "4": a("s_waitcnt vmcnt(1)")
        a("s_barrier")
        if n == 0: sty()
        rdO(n); rdO(n + 1)
    if n % 16 < 14 and not ("sl" in opts and n in (54, 55)): rdO(n + 2)
    if n >= LAG:
        mfO(done); done += 1
        if "nox64" not in opts:
            wq = []
            if 36 <= done < 44:
                k = done - 36
                if k == 0: a("s_nop 1")
                a(f"ds_write_b64 v29, v[{48+2*k}:{49+2*k}] offset:{k*512}"); lg.issue("W")
            if 46 <= done < 54:
                k = done - 46
                a(f"ds_read_b64 v[{48+2*k}:{49+2*k}], v17 offset:{k*512}"); lg.issue("P")
        else:
            if done in (37, 38, 40, 42):
                k = wq.pop(0)
                a(f"ds_write_b128 v29, v[{48+4*k}:{51+4*k}] offset:{k*1024}"); lg.issue("W")
            if done >= 50 and done < 54:
                k = done - 50
                a(f"ds_read_b128 v[{48+4*k}:{51+4*k}], v17 offset:{k*1024}"); lg.issue("P")
        if done >= 54 and fin: a(fin.pop(0))
assert not wq and not fin
vq = [f"v_mul_f32 v{48+r}, v{48+r}, v4" for r in range(16)]
while done < 64:
    mfO(done); done += 1
    for _ in range(4):
        a(vq.pop(0))
sty()
a("s_nop 7")
if "nof64" not in opts:
    for p in range(4):
        for r in (4 * p, 4 * p + 2):
            a(f"v_pk_fma_f32 v[{32+r}:{33+r}], v[{32+r}:{33+r}], v[6:7], v[{48+r}:{49+r}] op_sel_hi:[1,0,1]")
        a(f"v_cvt_pk_bf16_f32 v{32+4*p}, v{32+4*p}, v{33+4*p}")
        a(f"v_cvt_pk_bf16_f32 v{33+4*p}, v{34+4*p}, v{35+4*p}")
        a(f"ds_write_b64 v{[12, 16, 13, 18][p]}, v[{32+4*p}:{33+4*p}]")
else:
    for r in range(0, 16, 2):
        a(f"v_pk_fma_f32 v[{32+r}:{33+r}], v[{32+r}:{33+r}], v[6:7], v[{48+r}:{49+r}] op_sel_hi:[1,0,1]")
    for r in range(8):
        a(f"v_cvt_pk_bf16_f32 v{32+r}, v{32+2*r}, v{33+2*r}")
if "nof64" in opts:
    a("""v_permlane32_swap_b32 v32, v34
v_permlane32_swap_b32 v33, v35
v_permlane32_swap_b32 v36, v38
v_permlane32_swap_b32 v37, v39
ds_write_b128 v12, v[32:35]
ds_write_b128 v13, v[36:39]""")
if T128: a("s_waitcnt lgkmcnt(0)\ns_barrier")
a(f"""
ds_read_b128 v[64:67], v14
ds_read_b128 v[68:71], v14 offset:1024
s_waitcnt lgkmcnt(1)
buffer_store_dwordx4 v[64:67], v15, s[{OUT}:{OUT+3}], s10 offen sc1
s_waitcnt lgkmcnt(0)
buffer_store_dwordx4 v[68:71], v15, s[{OUT}:{OUT+3}], s11 offen sc1
""")
if STAMPS:
    sty()
    a("s_waitcnt vmcnt(0)")
    while sty.n < STAMPS: sty()
    a("s_branch Lstamps")
else:
    a("s_endpgm")

vm = VM()
stx = Stamper(1)
a("Lx:")
PBV5 = f"s_lshl_b32 s{T1}, s{WL}, 11\ns_add_u32 s{T1}, s{T1}, {KVP}\nv_lshl_add_u32 v5, v20, 5, s{T1}\nv_lshl_add_u32 v5, v25, 4, v5\nv_lshl_add_u32 v5, v24, 3, v5"
a(COMMON)
a(f"""
s_getpc_b64 s[66:67]
Lpc0:
s_sub_u32 s66, s66, Lpc0-{NAME}_kernel
s_subb_u32 s67, s67, 0
s_and_b32 s{T0}, s{CBK}, 3
s_lshl_b32 s{T0}, s{T0}, 2
s_add_u32 s{T0}, s{T0}, s{WL}
s_lshl_b32 s{T0}, s{T0}, 10
v_lshl_add_u32 v140, v1, 7, s{T0}
v_min_u32 v140, Lcode_end-{NAME}_kernel-4, v140
s_mov_b64 exec, 0xff
global_load_dword v252, v140, s[66:67]
s_mov_b64 exec, -1
v_lshlrev_b32 v14, 4, v1
v_mov_b32 v240, 0
v_mov_b32 v241, 0
v_mov_b32 v242, 0
v_mov_b32 v243, 0
v_mov_b32 v12, {MISC}
v_mov_b32 v13, 1
s_lshl_b32 s{T1}, s{WL}, 11
s_add_u32 s{T1}, s{T1}, {KVP}
v_add_u32 v5, s{T1}, v14
v_lshl_add_u32 v15, v1, 2, s{T1}
ds_write_b128 v12, v[240:243]
ds_write_b32 v15, v240 offset:1024
s_lshl_b32 s{T1}, s{WL}, 10
v_add_u32 v20, s{T1}, v12
ds_write_b128 v20, v[240:243] offset:576
ds_write_b128 v20, v[240:243] offset:592
ds_write_b128 v12, v[240:243] offset:16
ds_write_b128 v12, v[240:243] offset:32
v_and_b32 v23, 3, v1
s_mov_b32 s{WS+2}, {WS_BYTES}
s_mov_b32 s{WS+3}, 0x20000
s_cmp_eq_u32 s{RB}, s{CB}
s_waitcnt lgkmcnt(0)
s_mov_b32 s{WS}, s22
s_mov_b32 s{WS+1}, s23
s_cbranch_scc0 Lnozero
s_lshl_b32 s{T0}, s{CB}, 2
s_add_u32 s{T0}, s{T0}, s{WL}
s_mul_i32 s{T1}, s{T0}, {KVSTR}
s_add_u32 s{T1}, s{T1}, {KVACC}
""")
for r in range(1, KA):
    a(f"""s_add_u32 s{T2}, s{T1}, {r*KAS}
buffer_store_dwordx4 v[240:243], v14, s[{WS}:{WS+3}], s{T2} offen sc1
s_mov_b64 exec, 0xf
buffer_store_dwordx4 v[240:243], v14, s[{WS}:{WS+3}], s{T2} offen offset:1024 sc1
s_mov_b64 exec, -1""")
a(f"""
buffer_store_dwordx4 v[240:243], v14, s[{WS}:{WS+3}], s{T1} offen sc1
{f"buffer_store_dwordx4 v[240:243], v14, s[{WS}:{WS+3}], s{T1} offen offset:1024 sc1" if (RSH == 7 or PB == 4) else ""}
s_add_u32 s{T1}, s{T1}, {ZO}
s_lshl_b32 s{T2}, s{T0}, 10
s_add_u32 s{T3}, s{T2}, {OCNT}
s_add_u32 s{T2}, s{T2}, {KVCNT}
buffer_store_dwordx4 v[240:243], v14, s[{WS}:{WS+3}], s{T2} offen sc1
buffer_store_dwordx4 v[240:243], v14, s[{WS}:{WS+3}], s{T3} offen sc1
s_mov_b64 exec, {"0xf" if "z64" in opts else "0xff"}
buffer_store_dwordx4 v[240:243], v14, s[{WS}:{WS+3}], s{T1} offen sc1
""")
if "nogz" not in opts:
    a(f"""s_lshl_b32 s{T2}, s{T0}, 7
s_add_u32 s{T2}, s{T2}, {GBUF}
buffer_store_dwordx4 v[240:243], v14, s[{WS}:{WS+3}], s{T2} offen sc1""")
a(f"""s_mov_b64 exec, -1
Lnozero:
s_mov_b32 s{SLG}, 0x{LOG2E:x}
s_mov_b32 s{SLG+1}, 0x{LOG2E:x}
s_mov_b32 s{SEP}, 0x{EPS:x}
s_mov_b32 s{SEP+1}, 0x{EPS:x}
v_and_b32 v20, 15, v1
v_lshrrev_b32 v21, 4, v1
v_lshrrev_b32 v22, 1, v20
v_xor_b32 v22, v21, v22
v_lshlrev_b32 v2, 7, v20
v_lshl_add_u32 v2, v22, 4, v2
v_xor_b32 v3, 64, v2
; W base v4
v_lshrrev_b32 v24, 5, v1
v_lshlrev_b32 v4, 12, v24
v_and_b32 v25, 1, v21
v_lshl_add_u32 v4, v25, 10, v4
v_lshrrev_b32 v26, 2, v20
v_lshl_add_u32 v4, v26, 7, v4
v_bfe_u32 v22, v1, 3, 2
v_xor_b32 v22, s{WL}, v22
v_lshl_add_u32 v4, v22, 5, v4
v_lshl_add_u32 v4, v23, 3, v4
v_add_u32 v4, 16384, v4
{PBV5 if PB else ""}
v_bfe_u32 v22, v1, 3, 1
v_lshl_add_u32 v10, v24, 3, v26
v_lshlrev_b32 v10, 7, v10
v_lshl_add_u32 v10, v25, 5, v10
v_lshl_add_u32 v10, v23, 3, v10
v_lshl_add_u32 v10, v22, 6, v10
v_xor_b32 v11, 64, v10
v_and_b32 v20, 31, v1
s_lshl_b32 s{T0}, s{WL}, 12
v_lshl_add_u32 v6, v20, 7, s{T0}
v_bfe_u32 v25, v1, 1, 3
v_xor_b32 v25, v24, v25
v_lshl_add_u32 v6, v25, 4, v6
v_xor_b32 v7, 32, v6
v_xor_b32 v8, 64, v6
v_xor_b32 v9, 96, v6
; o store s68 / counter s69 / o-load s66,s67 ; wo^T store T0 ; flag offset s24
s_lshl_b32 s{T1}, s{RB}, 2
s_add_u32 s{T1}, s{T1}, s{WL}
s_lshl_b32 s68, s{T1}, 16
s_lshl_b32 s{T3}, s{CB}, 12
s_add_u32 s68, s68, s{T3}
s_add_u32 s68, s68, {OBUF}
s_lshl_b32 s69, s{T1}, 10
s_add_u32 s69, s69, {OCNT}
s_lshr_b32 s{T2}, s{WL}, 1
s_lshl_b32 s66, s{RT}, 1
s_add_u32 s66, s66, s{T2}
s_lshl_b32 s66, s66, 16
s_lshl_b32 s{T2}, s{T2}, 15
s_add_u32 s66, s66, s{T2}
s_add_u32 s66, s66, {OBUF}
s_lshl_b32 s67, s{WL}, {13 if "nosm" not in opts else 15}
s_lshl_b32 s9, s{RT}, 1
s_lshr_b32 s{T0}, s{WL}, 1
s_add_u32 s9, s9, s{T0}
s_lshl_b32 s9, s9, 10
s_add_u32 s9, s9, {OCNT}
s_and_b32 s{T0}, s{CBK}, {OR-1}
s_mul_i32 s{T0}, s{T0}, {RST}
s_add_u32 s9, s9, s{T0}
""")
RG, BF, AK, AV, XR = 16, 48, 64, 96, 128
FLI = int(opts.get("fli", 2))
stx()
lg = LG()
for i in range(8):
    so = (i & 1) * 32768
    a("s_barrier")
    if i in (0, 7): stx()
    for sidx in range(16):
        n = (sidx - LAGA) % 16
        ci = i if sidx >= LAGA else i - 1
        ks = n >> 3; rt = n & 7
        em = ci >= 0
        first = (ci == 0 and ks == 0)
        if em:
            tags = [f"X{ci}_{n}"] + ([f"B{ci}_{ks}0", f"B{ci}_{ks}1"] if rt == 0 else [])
            if sidx % 2 == 0 and rt != 7:
                tags.append(f"X{ci}_{n+1}")
            if sidx % 2 == 0 or rt == 0:
                lg.wait(*tags)
            mfma16(AK + 4 * rt, RG + 4 * (n % 8), BF + ks * 8, "1.0" if first else None)
        def rdB(k_, sec, u):
            tr(BF + k_ * 8 + sec * 4 + 2 * u, 4, so + k_ * 8192 + sec * 2048 + u * 512)
            lg.issue(f"B{i}_{k_}{sec}")
        if sidx < 2:
            rdB(0, sidx, 0); rdB(0, sidx, 1)
        elif 6 <= sidx < 10:
            rdB(1, (sidx - 6) >> 1, sidx & 1)
        elif sidx in (10, 11, 12, 13):
            t = sidx - 10
            xr = XR + (4 * i + t) * 4
            a(f"ds_read_b128 v[{xr}:{xr+3}], v{6+t} offset:{so}")
            lg.issue("XR")
        elif (i & 1) and i < 7 and sidx == 14:
            a("v_xor_b32 v2, 0x10000, v2\nv_xor_b32 v4, 0x10000, v4")
        elif i > 0 and (i & 1) == 0 and sidx in (2, 3):
            k = 6 + 2 * (sidx - 2)
            a(f"v_xor_b32 v{k}, 0x10000, v{k}\nv_xor_b32 v{k+1}, 0x10000, v{k+1}")
        elif i > 0 and (i & 1) == 0 and sidx == 4:
            a("v_xor_b32 v3, 0x10000, v3")
        elif i == 1 and sidx == 2:
            a(f"s_cmp_eq_u32 s{RB}, s{CB}\ns_cbranch_scc1 Lflag\nLflag_done:")
            rare.append(f"Lflag:\ns_waitcnt vmcnt(0)\ns_atomic_add s{ONE}, s[20:21], 0\ns_branch Lflag_done")
        elif i == 5 and sidx == 2:
            a("s_waitcnt vmcnt(0)")
        if em:
            mfma16(AV + 4 * rt, RG + 4 * (n % 8), BF + ks * 8 + 4, "0" if first else None)
        r = RG + 4 * (sidx % 8)
        a(f"ds_read_b128 v[{r}:{r+3}], v{2 + (sidx >> 3)} offset:{so + (sidx & 7) * 2048}")
        lg.issue(f"X{i}_{sidx}")
for n in range(16 - LAGA, 16):
    lg.wait(f"X7_{n}")
    mfma16(AK + 4 * (n & 7), RG + 4 * (n % 8), BF + 8)
lds_add(12, 13, 12)
for n in range(16 - LAGA, 16):
    mfma16(AV + 4 * (n & 7), RG + 4 * (n % 8), BF + 12)
stx()
for op in phi_ops(AK, 32, RG, pk=True):
    a(op)
a("ds_read_b32 v2, v12")
for r in range(60, 64):
    a(f"v_mov_b32 v{r}, 0x3f803f80")
for r in range(16):
    a(f"v_cvt_pk_bf16_f32 v{AV+r}, v{AV+2*r}, v{AV+2*r+1}")
    if r % 4 == 1:
        mfma16(56, 60, AK + (r // 4) * 4, "0" if r < 4 else None)
a("s_waitcnt lgkmcnt(0)")
for p in range(4):
    if PB: mfma16(52, AK + 4 * p, AV + 4 * p, "0" if p == 0 else None)
    else: mfma16(52, AV + 4 * p, AK + 4 * p, "0" if p == 0 else None)
if "km" in opts:
    a(f"""v_and_b32 v3, 15, v1
v_lshlrev_b32 v3, 5, v3
v_add_u32 v3, {KVF}, v3
v_add_u32 v4, 512, v3
s_mov_b32 exec_lo, 0xffff0000
s_mov_b32 exec_hi, 0xffff0000
v_mov_b32 v3, {MISC+512}
v_mov_b32 v4, {MISC+576}
s_mov_b64 exec, -1
v_cmp_ne_u32 vcc, 4, v2""")
else:
    a(f"v_and_b32 v3, 31, v1\nv_min_u32 v3, 16, v3\nv_lshlrev_b32 v3, 5, v3\nv_lshrrev_b32 v4, 5, v1\nv_lshl_add_u32 v3, v4, 4, v3\nv_add_u32 v3, {KVF}, v3\nv_cmp_ne_u32 vcc, 4, v2\ns_nop 0")
if PB: a("v_cvt_pk_bf16_f32 v52, v52, v53\nv_cvt_pk_bf16_f32 v53, v54, v55\nds_write_b64 v5, v[52:53]")
else: a("ds_write_b128 v5, v[52:55]")
a("ds_write_b32 v15, v56 offset:1024\ns_cbranch_vccz Lq0_done")
spin("Lq0", "ds_read_b32 v2, v12\ns_waitcnt lgkmcnt(0)\nv_cmp_ne_u32 vcc, 4, v2", T3, mult=8)
NB = 8
FP = "fp" in opts
KF = 128 if FP else 16
def kreads():
    for h in range(4):
        a(f"ds_read_b128 v[{KF+8*h}:{KF+3+8*h}], v3 offset:{h*1024}")
        a(f"ds_read_b128 v[{KF+4+8*h}:{KF+7+8*h}], v4 offset:{h*1024}")
if QS:
    BM = opts.get("bm", "0")
    if BM == "0":
        seq = [(ct, s) for s in range(32) for ct in range(2)]
    else:
        seq = [(ct, s) for s in range(16) for ct in range(2)] + [(0, s) for s in range(16, 32)] + [(1, s) for s in range(16, 32)]
    lgq = LG()
    def qread(n):
        ct, s = seq[n]
        r = RG + (n % NB) * 4
        off = WQ + (s // 4) * 8192 + (s % 4) * 2048
        tr(r, 10 + ct, off); tr(r + 2, 10 + ct, off + 512)
        lgq.issue(f"q{n}"); lgq.issue(f"q{n}")
    PF = 6
    for n in range(PF):
        qread(n)
    stx()
    ph0 = phi_ops(64, 16, 96)[:16 + 10] if BM == "1" else []
    for n, (ct, s) in enumerate(seq):
        if n + PF == 28:
            a("ds_read_b32 v2, v12 offset:24"); lgq.issue("c")
        if n + PF == 32:
            lgq.wait("c")
            a("v_cmp_ne_u32 vcc, 4, v2\ns_cbranch_vccnz Lq1\nLq1_done:")
            rare.append(f"""Lq1:
    s_mov_b32 s{T3}, 0
    Lq1_top:
    ds_read_b32 v2, v12 offset:24
    s_waitcnt lgkmcnt(0)
    v_cmp_ne_u32 vcc, 4, v2
    s_cbranch_vccz Lq1_done
    s_add_u32 s{T3}, s{T3}, 1
    s_cmp_lt_u32 s{T3}, {SPIN*8}
    s_cbranch_scc1 Lq1_top
    s_branch Lq1_done""")
        if n + PF < 64:
            qread(n + PF)
        if n % 2 == 0: lgq.wait(f"q{n+1}")
        mfma(64 + 16 * ct, RG + (n % NB) * 4, XR + s * 4, "1.0" if s == 0 else None)
        if M5 and n == 30:
            lds_add(12, 13, 28); lgq.issue("sig")
        if M5 and n == 62:
            lds_add(12, 13, 32); lgq.issue("sig")
        if n >= 51:
            for op in ph0[:2]: a(op)
            ph0 = ph0[2:]
    assert not ph0
    stx()
    if BM == "0":
        a("s_nop 7\ns_nop 2")
        ph1 = phi_ops(64, 32, 96, pk=True)
        PQ = [64, 68, 72, 76]
    else:
        rest = phi_ops(64, 16, 96, pk=True)[8 + 10:]
        ph1 = rest + phi_ops(80, 16, 112, pk=True)
        PQ = [64, 68, 80, 84]
    for op in ph1[:-10]:
        a(op)
    a("ds_read_b32 v2, v12 offset:4")
    for op in ph1[-10:]:
        a(op)
    stx()
else:
    seq = [(ct, s) for ct in range(2) for s in range(32)]
    lgq = LG()
    def qread(n):
        ct, s = seq[n]
        r = RG + (n % NB) * 4
        off = WQ + (s // 4) * 8192 + (s % 4) * 2048
        tr(r, 10 + ct, off); tr(r + 2, 10 + ct, off + 512)
        lgq.issue(f"q{n}"); lgq.issue(f"q{n}")
    PF = 6
    for n in range(PF):
        qread(n)
    stx()
    ph0 = phi_ops(64, 16, 96)
    for n, (ct, s) in enumerate(seq):
        if n + PF < 64:
            qread(n + PF)
        if n % 2 == 0: lgq.wait(f"q{n+1}")
        mfma(64 + 16 * ct, RG + (n % NB) * 4, XR + s * 4, "1.0" if s == 0 else None)
        if FP and n == 4: a("v_lshrrev_b32 v6, 5, v1\nv_lshl_add_u32 v3, v6, 4, v3")
        if FP and n == 6: a("v_lshl_add_u32 v4, v6, 4, v4")
        if FP and n == 59:
            a("ds_read_b32 v2, v12 offset:4"); lgq.issue("c")
        if FP and n == 62:
            lgq.wait("c"); a("v_cmp_ne_u32 vcc, 4, v2")
        if FP and n == 63:
            a("s_cmp_eq_u64 vcc, 0\ns_cbranch_scc0 Lfp0")
            kreads()
            a("Lfp0:")
        if n >= 35:
            k = (2 if n < 58 else 2) if n < 63 else len(ph0)
            for op in ph0[:k]:
                a(op)
            ph0 = ph0[k:]
    assert not ph0
    stx()
    ph1 = phi_ops(80, 16, 96, pk=True)
    for i_, op in enumerate(ph1[:-10]):
        a(op)
        if FP and i_ in (9, 15, 21, 27):
            m_ = (i_ - 9) // 6; h = m_ >> 1
            a(f"s_cbranch_scc0 Lfq{m_}")
            if m_ == 0: a("s_waitcnt lgkmcnt(0)")
            mfma(192 + 16 * h, KF + 8 * h + 4 * (m_ & 1), 64 + 4 * h, "0" if m_ % 2 == 0 else None)
            a(f"Lfq{m_}:")
    a("ds_read_b32 v2, v12 offset:4")
    for op in ph1[-10:]:
        a(op)
    stx()
    PQ = [64, 68, 80, 84]
if "km" in opts and not FP: a("v_lshrrev_b32 v6, 5, v1\nv_lshl_add_u32 v3, v6, 4, v3\nv_lshl_add_u32 v4, v6, 4, v4")
if FP: a("s_cbranch_scc1 Lfast")
a("s_waitcnt lgkmcnt(0)\nv_cmp_ne_u32 vcc, 4, v2\ns_cbranch_vccz Lkvw_done")
spin("Lkvw", "ds_read_b32 v2, v12 offset:4\ns_waitcnt lgkmcnt(0)\nv_cmp_ne_u32 vcc, 4, v2", T3, mult=8)
stx()
DN = [192, 208, 224, 240]
if "km" in opts:
    kreads()
    def nm(h):
        a(f"s_waitcnt lgkmcnt({6-2*h})")
        mfma(DN[h], KF + 8 * h, PQ[h], "0")
        mfma(DN[h], KF + 4 + 8 * h, PQ[h])
    for h in range(2 if opts["km"] == "2" else 4): nm(h)
else:
    for h in range(4):
        a(f"ds_read_b128 v[{16+4*h}:{19+4*h}], v3 offset:{h*1024}")
    for h in range(4):
        a(f"s_waitcnt lgkmcnt({3-h})")
        mfma(DN[h], 16 + 4 * h, PQ[h], "0")
vm = VM()
def o_half(st_, hf, setup_only=False, do_setup=True):
    g = 2 * (st_ & 1) + hf
    if do_setup:
        a(f"s_add_u32 s{T2}, s{RW}, {2*g}")
        a(f"s_and_b32 s{T2}, s{T2}, 7")
        a(f"s_lshl_b32 s{T2}, s{T2}, 12")
        a(f"s_add_u32 s{T2}, s{T2}, s66")
        a(f"s_add_u32 m0, s67, {st_*(32768 if 'nosm' not in opts else 8192)+hf*4096}")
        if st_ < 2: a(f"s_xor_b32 s{T2}, s{T2}, 0x10000")
        else: a("s_nop 0")
    if setup_only: return
    for q in range(4):
        dma(14, WS, T2, q * 1024, f"o{st_}{hf}", vm, "sc1 ")
if FP:
    a("s_nop 7\ns_nop 0\nLfast:")
else:
    o_half(0, 0, setup_only=True)
    if opts.get("km") == "2": a("s_nop 2")
for h in range(4):
    d = DN[h]
    a(f"v_add_f32 v{d+8}, s{SEP}, v{d+8}")
    a(f"v_rcp_f32 v{d+8}, v{d+8}")
    a("s_nop 0")
    for r in range(0, 8, 2):
        a(f"v_pk_mul_f32 v[{d+r}:{d+r+1}], v[{d+r}:{d+r+1}], v[{d+8}:{d+9}] op_sel_hi:[1,0]")
    for r in range(4):
        a(f"v_cvt_pk_bf16_f32 v{d+r}, v{d+2*r}, v{d+2*r+1}")
    if opts.get("km") == "2" and h < 2: nm(h + 2)
    a(f"buffer_store_dwordx4 v[{d}:{d+3}], v14, s[{WS}:{WS+3}], s68 offen offset:{h*1024} sc1")
lds_add(12, 13, 8)
if FP: o_half(0, 0, setup_only=True)
stx()
if "noack" not in opts: a("s_waitcnt vmcnt(0)")
a(f"s_atomic_add s{ONE}, s[22:23], s69")
for r in range(1, OR):
    a(f"s_atomic_add s{ONE}, s[22:23], s69 offset:{r*RST}")
stx()
if "yp" not in opts:
    a("s_waitcnt lgkmcnt(0)" if "od" in opts else "")
    o_poll(24)
a("s_barrier")
stx()
o_half(0, 0, do_setup=False); o_half(0, 1)
if "xl" in opts:
    o_half(1, 0)
    vm.wait("o01"); a("s_barrier")
    o_half(1, 1); o_half(2, 0); o_half(2, 1)
    vm.wait("o11"); a("s_barrier")
    o_half(3, 0); o_half(3, 1)
    vm.wait("o21"); a("s_barrier")
else:
    for st_ in range(3):
        o_half(st_ + 1, 0); o_half(st_ + 1, 1)
        vm.wait(f"o{st_}1"); a("s_barrier")
if "sl" in opts: vm.wait("o30"); a("s_barrier")
vm.wait("o31"); a("s_barrier")
if STAMPS:
    if T128: a("s_barrier")
    while stx.n < STAMPS: stx()
    a("Lstamps:")
    a(f"v_subrev_u32 v40, {SWAVE*64}, v0")
    emit_stamp_store(a, 0, STAMPS, 70, 22, 2, 20, stmp=60, tid="v40")
a("Lend:")
a("s_endpgm")
for r in rare:
    a(r)
a("Lcode_end:")
open(sys.argv[1], "w").write(file_text([(NAME + "_kernel", 256, 512, 163840)], [(NAME + "_kernel", a.text(), 256, None)]))
```
